```python
import torch

def _softmax(x, axis=-1):
    return torch.softmax(x, dim=axis)
def _gelu(x):
    return torch.nn.functional.gelu(x, approximate="tanh")
def _silu(x):
    return torch.nn.functional.silu(x)
def _sigmoid(x):
    return torch.sigmoid(x)
def _layernorm(x, axis=-1, eps=1e-5):
    m = x.mean(dim=axis, keepdim=True)
    v = x.var(dim=axis, keepdim=True, unbiased=False)
    return (x - m) / torch.sqrt(v + eps)
def _scatter_add(tgt, idx, src, axis=0):
    return tgt.clone().index_add_(axis, idx, src)
def _segment_sum(src, seg, n):
    out = torch.zeros((n,) + src.shape[1:], dtype=src.dtype)
    return out.index_add_(0, seg, src)
def _pad(x, pw):
    flat = tuple(v for pair in reversed(pw) for v in pair)
    return torch.nn.functional.pad(x, flat)

kernel_name = 'parallel_sum__ssm_conv_s4__dense_activation_gelu__prompt'

def setup_inputs():

    _w = (lambda a: (lambda t: t.to(torch.bfloat16) if t.is_floating_point() else t)(torch.as_tensor(a)))
    def _A_setup():
        B, L, D, N = 1, 2048, 576, 128
        A_re = -(lambda _x: torch.exp(torch.as_tensor(_x)))((lambda *s: torch.randn(*s, dtype=torch.bfloat16) * 6.4)(D, N))
        A_im = torch.pi * (lambda *s: torch.randn(*s, dtype=torch.bfloat16) * 0.05)(D, N)
        B_re = (lambda *s: torch.randn(*s, dtype=torch.bfloat16) * 0.1)(D, N)
        B_im = (lambda *s: torch.randn(*s, dtype=torch.bfloat16) * 0.1)(D, N)
        C_re = (lambda *s: torch.randn(*s, dtype=torch.bfloat16) * 0.1)(D, N)
        C_im = (lambda *s: torch.randn(*s, dtype=torch.bfloat16) * 0.1)(D, N)
        log_dt = (lambda *s: torch.randn(*s, dtype=torch.bfloat16) * 0.05)(D) * 0.5 - 4.0
        Dskip = (lambda *s: torch.randn(*s, dtype=torch.bfloat16) * 0.05)(D)
        return {
            "u": _w((lambda *s: torch.randn(*s, dtype=torch.bfloat16) * 0.05)(B, L, D)),
            "A_re": _w(A_re),
            "A_im": _w(A_im),
            "B_re": _w(B_re),
            "B_im": _w(B_im),
            "C_re": _w(C_re),
            "C_im": _w(C_im),
            "log_dt": _w(log_dt),
            "Dskip": _w(Dskip),
        }
    _A_in = _A_setup()

    def _B_setup():
        B, S, D, F = 1, 2048, 576, 4608
        return {
            "x": _w((lambda *s: torch.randn(*s, dtype=torch.bfloat16) * 0.05)(B, S, D)),
            "w1": _w((lambda *s: torch.randn(*s, dtype=torch.bfloat16) * 0.8)(D, F) * (D ** -0.5)),
            "b1": _w((lambda *s: torch.randn(*s, dtype=torch.bfloat16) * 0.2)(F) * 0.01),
            "w2": _w((lambda *s: torch.randn(*s, dtype=torch.bfloat16) * 0.2)(F, D) * (F ** -0.5)),
            "b2": _w((lambda *s: torch.randn(*s, dtype=torch.bfloat16) * 0.2)(D) * 0.01),
        }
    _B_in = _B_setup()

    return {
        "A_u": _A_in["u"],
        "A_A_re": _A_in["A_re"],
        "A_A_im": _A_in["A_im"],
        "A_B_re": _A_in["B_re"],
        "A_B_im": _A_in["B_im"],
        "A_C_re": _A_in["C_re"],
        "A_C_im": _A_in["C_im"],
        "A_log_dt": _A_in["log_dt"],
        "A_Dskip": _A_in["Dskip"],
        "B_x": _B_in["x"],
        "B_w1": _B_in["w1"],
        "B_b1": _B_in["b1"],
        "B_w2": _B_in["w2"],
        "B_b2": _B_in["b2"],
    }

def reference(A_u, A_A_re, A_A_im, A_B_re, A_B_im, A_C_re, A_C_im, A_log_dt, A_Dskip, B_x, B_w1, B_b1, B_w2, B_b2):
    def _A_ref(u, A_re, A_im, B_re, B_im, C_re, C_im, log_dt, Dskip):
        Bsz, L, D = u.shape
        dt = torch.exp(log_dt)[:, None]
        A = A_re + 1j * A_im
        Bc = B_re + 1j * B_im
        Cc = C_re + 1j * C_im
        logdA = dt * A
        dB = dt * Bc
        l = (lambda x, dt: x.to(dt))(torch.arange(L), A_re.dtype)
        P = torch.exp(logdA[:, :, None] * l[None, None, :])
        K = torch.einsum("dn,dnl,dn->dl", Cc, P, dB).real
        L2 = 2 * L
        Kp = _pad(K, ((0, 0), (0, L)))
        up = (lambda x, *d: x.permute(*d))(u, 0, 2, 1)
        up = _pad(up, ((0, 0), (0, 0), (0, L)))
        Kf = (lambda x, axes=(-2,-1): torch.fft.rfft2(x.float(), dim=axes))(Kp[:, None, :], axes=(-2, -1))
        Uf = (lambda x, axes=(-2,-1): torch.fft.rfft2(x.float(), dim=axes))(up[:, :, None, :], axes=(-2, -1))
        Yf = Uf * Kf[None, :, :, :]
        y = (lambda x, s, axes=(-2,-1): torch.fft.irfft2(x, s=s, dim=axes).to(torch.bfloat16))(Yf, (1, L2), axes=(-2, -1))[:, :, 0, :L]
        y = (lambda x, *d: x.permute(*d))(y, 0, 2, 1) + u * Dskip[None, None, :]
        return y

    def _B_ref(x, w1, b1, w2, b2):
        h = torch.einsum("bsd,df->bsf", x, w1) + b1
        h = _gelu(h)
        return torch.einsum("bsf,fd->bsd", h, w2) + b2

    x = A_u
    xn = _layernorm(x, axis=-1)
    return x + _A_ref(xn, A_A_re, A_A_im, A_B_re, A_B_im, A_C_re, A_C_im, A_log_dt, A_Dskip) + _B_ref(xn, B_w1, B_b1, B_w2, B_b2)
```

```python
class Prog:
    def __init__(self):
        self.lines = []
        self.lg = []
        self.vm = []
        self.nlabel = 0
    def emit(self, s):
        self.lines.append("    " + s)
    def comment(self, s):
        self.lines.append("    ; " + s)
    def label(self, name):
        self.lines.append(name + ":")
    def newlabel(self, p="L"):
        self.nlabel += 1
        return f"{p}_{self.nlabel}"
    def ds(self, s, tag=None):
        self.emit(s); self.lg.append(tag)
    def vmem(self, s, tag=None, maybe=False):
        self.emit(s); self.vm.append((tag, maybe))
    def _lgN(self, tags):
        idx = -1
        for i, t in enumerate(self.lg):
            if t in tags: idx = i
        if idx < 0: return None
        return idx
    def wait(self, lg=(), vm=(), lg_all=False, vm_all=False):
        parts = []
        if isinstance(lg, str) or isinstance(lg, tuple) and lg and not isinstance(lg[0], (str, tuple)): lg = [lg]
        if isinstance(vm, str): vm = [vm]
        lg = list(lg); vm = list(vm)
        if vm_all:
            if self.vm:
                parts.append("vmcnt(0)"); self.vm = []
        elif vm:
            idx = -1
            for i, (t, m) in enumerate(self.vm):
                if t in vm: idx = i
            if idx >= 0:
                n = sum(1 for (t, m) in self.vm[idx+1:] if not m)
                n = min(n, 63)
                parts.append(f"vmcnt({n})")
                self.vm = self.vm[idx+1:]
        if lg_all:
            if self.lg:
                parts.append("lgkmcnt(0)"); self.lg = []
        elif lg:
            idx = self._lgN(lg)
            if idx is not None:
                n = len(self.lg) - 1 - idx
                if n > 15:
                    n = 15; idx = len(self.lg) - 16
                parts.append(f"lgkmcnt({n})")
                self.lg = self.lg[idx+1:]
        if parts: self.emit("s_waitcnt " + " ".join(parts))
    def text(self):
        return "\n".join(self.lines) + "\n"

def vr(a, n=1):
    return f"v{a}" if n == 1 else f"v[{a}:{a+n-1}]"
def sr(a, n=1):
    return f"s{a}" if n == 1 else f"s[{a}:{a+n-1}]"
import struct
def f2u(x): return struct.unpack("<I", struct.pack("<f", x))[0]
def fhex(x): return "0x%08x" % f2u(x)
```

```python
from asmlib import *
import math, os
DIAG = int(os.environ.get("DIAG", "0")); PRO = int(os.environ.get("PRO", "0"))
NODMA = int(os.environ.get("NODMA", "0")); NOREAD = int(os.environ.get("NOREAD", "0")); NOST = int(os.environ.get("NOST", "0"))
NOBAR = int(os.environ.get("NOBAR", "0")); NOBG = int(os.environ.get("NOBG", "0"))
PRIO = int(os.environ.get("PRIO", "0")); FRONT = int(os.environ.get("FRONT", "1")); MAP = 1
RA = int(os.environ.get("RA", "4"))

PART_OFF = 0
XNT_OFF = 37748736
RING = 0; PREG = 98304; STAT = 155648; RCT = 157696; BIAS = 158720
SX, SW1, SW2, SWS, SB1 = 4, 8, 12, 16, 20
sW, sH, sQI, sFJ, sMI = 24, 25, 26, 27, 28
sRP1, sRP1X, sRP8, sRP8X, sRP2, sRP2K0, sRP2X, sM0W, sM0X, sT = 29, 30, 31, 32, 33, 34, 35, 36, 37, 38
sT2, sXS, sXM, sT3, sONE, sMASK, sT4, sT5, sAL = 39, 40, 41, 42, 43, 44, 45, 46, 47
sRP1H, sRP8H, sM0H = 48, 49, 50
vLANE, vG, vI = 1, 2, 3
vA = {}
n = 4
for own in (0, 1):
    for hi in (0, 1):
        vA[('n', own, hi)] = n; n += 1
vA['8'] = 8
for t in (0, 1):
    for hi in (0, 1):
        vA[('p', t, hi)] = 9 + 2*t + hi
vOW1, vOW8, vOW2 = 13, 14, 15
vPW, vPR, vBI, vBI8, vOO, vXR, vR, vC, v8R, vP8 = 16, 17, 18, 19, 20, 21, 22, 23, 24, 25
vXT = 26
TMP = 34
WF = 50
NWF = 5
vROW, vXTA = 70, 71
SB = 72; SC = 88; SA = 96
QB = 112
def Q(slot): return QB + slot * 4
C0 = -2.0 * 0.7978845608028654 * math.log2(math.e)
C1 = C0 * 0.044715
ALPHA = (-C1) ** (1.0 / 3.0)
CA = -C0 / ALPHA

def gen():
    p = Prog()
    e = p.emit
    stamps = []
    def stamp(name):
        if DIAG and len(stamps) < 22:
            e(f"s_memtime s[{56+2*len(stamps)}:{57+2*len(stamps)}]")
            stamps.append(name)
    T = [TMP + i for i in range(16)]
    e("s_cmp_ge_u32 s2, 256")
    e("s_cbranch_scc1 K1_END")
    stamp("start")
    e("s_load_dwordx2 s[4:5], s[0:1], 0")
    e("s_load_dwordx4 s[48:51], s[0:1], 80")
    e("s_load_dwordx2 s[12:13], s[0:1], 96")
    e("s_load_dwordx2 s[16:17], s[0:1], 128")
    e(f"v_lshrrev_b32 v{T[0]}, 6, v0")
    e(f"v_and_b32 v{vLANE}, 63, v0")
    e(f"v_readfirstlane_b32 s{sW}, v{T[0]}")
    e(f"v_lshrrev_b32 v{vG}, 4, v{vLANE}")
    e(f"v_and_b32 v{vI}, 15, v{vLANE}")
    nb = 1 + MAP
    e("s_and_b32 s3, s2, 7")
    e(f"s_lshr_b32 s{sMI}, s2, 3")
    e(f"s_and_b32 s{sFJ}, s{sMI}, {(1<<nb)-1}")
    e(f"s_lshr_b32 s{sT}, s3, {MAP}")
    e(f"s_lshl_b32 s{sT}, s{sT}, {nb}")
    e(f"s_add_u32 s{sFJ}, s{sFJ}, s{sT}")
    e(f"s_lshr_b32 s{sMI}, s{sMI}, {nb}")
    e(f"s_and_b32 s3, s3, {(1<<MAP)-1}")
    e(f"s_lshl_b32 s3, s3, {4-MAP}")
    e(f"s_add_u32 s{sMI}, s{sMI}, s3")
    e(f"s_lshr_b32 s{sH}, s{sW}, 2")
    e(f"s_and_b32 s{sQI}, s{sW}, 3")
    e(f"s_mov_b32 s{sONE}, 0x3f803f80")
    e(f"s_mov_b32 s{sMASK}, 0xffff0000")
    e(f"s_mov_b32 s{sAL}, {fhex(ALPHA)}")
    e(f"v_lshrrev_b32 v{T[2]}, 3, v{vLANE}")
    e(f"v_and_b32 v{T[3]}, 7, v{vLANE}")
    e(f"v_xor_b32 v{T[4]}, v{vG}, v{T[3]}")
    e(f"v_mul_u32_u24 v{T[5]}, 2304, v{T[2]}")
    e(f"v_lshl_add_u32 v{T[0]}, v{T[4]}, 4, v{T[5]}")
    e(f"v_xor_b32 v{T[1]}, 64, v{T[0]}")
    e(f"s_lshl_b32 s{sXS}, s{sMI}, 7")
    e(f"s_lshr_b32 s{sT}, s{sW}, 1"); e(f"s_lshl_b32 s{sT}, s{sT}, 5"); e(f"s_add_u32 s{sXS}, s{sXS}, s{sT}")
    e(f"s_and_b32 s{sT}, s{sW}, 1"); e(f"s_add_u32 s{sXS}, s{sXS}, s{sT}")
    e(f"s_mul_i32 s{sXS}, s{sXS}, 1152")
    e(f"s_lshl_b32 s{sXM}, s{sW}, 11")
    e(f"v_min_u32 v{T[9]}, 287, v0")
    e(f"v_lshlrev_b32 v{T[9]}, 7, v{T[9]}")
    e(f"s_and_b32 s{sT4}, s{sFJ}, 3"); e(f"s_mul_i32 s{sT4}, s{sT4}, {288*128}")
    e(f"s_mul_i32 s{sT5}, s{sMI}, {128*1152}"); e(f"s_add_u32 s{sT4}, s{sT4}, s{sT5}")
    e(f"s_getpc_b64 s[52:53]")
    e(f"v_subrev_u32 v{T[10]}, 320, v0")
    e(f"v_min_u32 v{T[10]}, K1_CODE_LINES, v{T[10]}")
    e(f"v_lshlrev_b32 v{T[10]}, 7, v{T[10]}")
    e("s_waitcnt lgkmcnt(0)")
    if PRO: stamp("karg")
    e("s_mov_b32 s6, 2359296"); e("s_mov_b32 s7, 0x00020000")
    e("s_mov_b32 s8, s48"); e("s_mov_b32 s9, s49"); e("s_mov_b32 s10, 5308416"); e("s_mov_b32 s11, 0x00020000")
    e("s_mov_b32 s14, 5308416"); e("s_mov_b32 s15, 0x00020000")
    e("s_mov_b32 s18, 268435456"); e("s_mov_b32 s19, 0x00020000")
    e("s_mov_b32 s20, s50"); e("s_mov_b32 s21, s51"); e("s_mov_b32 s22, 9216"); e("s_mov_b32 s23, 0x00020000")
    Lc = p.newlabel("K1_PF"); Ld = p.newlabel("K1_PF")
    e(f"s_cmp_ge_u32 s{sW}, 5"); e(f"s_cbranch_scc1 {Lc}")
    p.vmem(f"buffer_load_dword v{T[8]}, v{T[9]}, s[{SX}:{SX+3}], s{sT4} offen", tag='pf')
    e(f"s_branch {Ld}")
    p.label(Lc)
    e(f"global_load_dword v{T[8]}, v{T[10]}, s[52:53]")
    p.label(Ld)
    def xdma(c):
        for nn in range(2):
            e(f"s_add_u32 m0, s{sXM}, {16384*c + 1024*nn}")
            e(f"s_add_u32 s{sT}, s{sXS}, {128*c + nn*16*1152}")
            p.vmem(f"buffer_load_dwordx4 v{T[nn]}, s[{SX}:{SX+3}], s{sT} offen lds", tag=('x', c))
    e("s_setprio 3")
    for c in range(3): xdma(c)
    e("s_setprio 0")
    e(f"s_and_b32 s{sT2}, s{sFJ}, 1")
    e(f"s_mul_i32 s{sT3}, s{sFJ}, 576")
    e(f"s_add_u32 s{sT5}, s{sQI}, 8")
    e(f"s_mul_i32 s{sRP1}, s{sW}, {8*9216}"); e(f"s_mul_i32 s{sRP1X}, s{sT5}, {8*9216}")
    e(f"s_lshl_b32 s{sT4}, s{sT2}, 6"); e(f"s_add_u32 s{sT4}, s{sT4}, s{sT3}")
    e(f"s_lshl_b32 s{sT}, s{sT2}, 9"); e(f"s_sub_u32 s{sT}, 512, s{sT}"); e(f"s_add_u32 s{sT}, s{sT}, s{sT3}")
    e(f"s_add_u32 s{sRP8}, s{sRP1}, s{sT}"); e(f"s_add_u32 s{sRP8X}, s{sRP1X}, s{sT}")
    e(f"s_add_u32 s{sRP1}, s{sRP1}, s{sT4}"); e(f"s_add_u32 s{sRP1X}, s{sRP1X}, s{sT4}")
    e(f"s_mul_i32 s{sT}, s{sH}, {96*9216}"); e(f"s_add_u32 s{sRP1H}, s{sRP1X}, s{sT}")
    e(f"s_mul_i32 s{sT}, s{sH}, {192*9216}"); e(f"s_add_u32 s{sRP8H}, s{sRP8X}, s{sT}")
    def rowperm(dst, nreg, tmp):
        e(f"s_lshr_b32 s{dst}, s{nreg}, 2"); e(f"s_lshl_b32 s{dst}, s{dst}, 5")
        e(f"s_and_b32 s{tmp}, s{nreg}, 1"); e(f"s_lshl_b32 s{tmp}, s{tmp}, 4"); e(f"s_add_u32 s{dst}, s{dst}, s{tmp}")
        e(f"s_and_b32 s{tmp}, s{nreg}, 2"); e(f"s_lshl_b32 s{tmp}, s{tmp}, 2"); e(f"s_add_u32 s{dst}, s{dst}, s{tmp}")
    rowperm(sRP2, sW, sT4); rowperm(sRP2X, sT5, sT4)
    e(f"s_mul_i32 s{sT}, s{sFJ}, 288"); e(f"s_lshl_b32 s{sT4}, s{sT2}, 5"); e(f"s_add_u32 s{sT}, s{sT}, s{sT4}"); e(f"s_sub_u32 s{sT}, s{sT}, 32")
    e(f"s_add_u32 s{sRP2}, s{sRP2}, s{sT}"); e(f"s_add_u32 s{sRP2X}, s{sRP2X}, s{sT}")
    e(f"s_or_b32 s{sT4}, s{sT2}, s{sH}"); e(f"s_cmp_eq_u32 s{sT4}, 0"); e(f"s_cselect_b32 s{sT4}, 288, 0")
    e(f"s_add_u32 s{sRP2K0}, s{sRP2}, s{sT4}")
    e(f"s_mul_i32 s{sRP2}, s{sRP2}, 1152"); e(f"s_mul_i32 s{sRP2X}, s{sRP2X}, 1152"); e(f"s_mul_i32 s{sRP2K0}, s{sRP2K0}, 1152")
    e(f"s_lshl_b32 s{sM0W}, s{sW}, 10"); e(f"s_lshl_b32 s{sM0X}, s{sT5}, 10")
    e(f"s_mul_i32 s{sT}, s{sH}, 12288"); e(f"s_add_u32 s{sM0H}, s{sM0X}, s{sT}")
    e("s_setprio 2")
    for c in range(3, 6): xdma(c)
    e("s_setprio 0")
    e(f"v_and_b32 v{T[4]}, 1, v{vG}")
    e(f"v_lshlrev_b32 v{T[4]}, 2, v{T[4]}")
    e(f"v_xor_b32 v{T[4]}, v{T[4]}, v{T[3]}")
    e(f"v_mul_u32_u24 v{T[10]}, 9216, v{T[2]}")
    e(f"v_lshl_add_u32 v{vOW1}, v{T[4]}, 4, v{T[10]}")
    e(f"v_lshrrev_b32 v{T[11]}, 2, v{T[4]}")
    e(f"v_mul_u32_u24 v{T[11]}, {96*9216}, v{T[11]}")
    e(f"v_and_b32 v{T[4]}, 3, v{T[4]}")
    e(f"v_lshlrev_b32 v{T[4]}, 4, v{T[4]}")
    e(f"v_add3_u32 v{vOW8}, v{T[4]}, v{T[10]}, v{T[11]}")
    e(f"v_lshlrev_b32 v{T[4]}, 1, v{vG}")
    e(f"v_xor_b32 v{T[4]}, v{T[4]}, v{T[3]}")
    e(f"v_mul_u32_u24 v{T[10]}, 1152, v{T[2]}")
    e(f"v_lshl_add_u32 v{vOW2}, v{T[4]}, 4, v{T[10]}")
    e(f"v_lshrrev_b32 v{T[4]}, 2, v{vI}")
    e(f"v_and_b32 v{T[10]}, 3, v{vLANE}")
    e(f"v_lshlrev_b32 v{T[10]}, 3, v{T[10]}")
    e(f"v_lshrrev_b32 v{T[5]}, 1, v{vG}")
    e(f"v_lshl_add_u32 v{T[9]}, v{T[5]}, 3, v{T[4]}")
    e(f"v_lshl_add_u32 v{T[9]}, v{T[9]}, 7, v{T[10]}")
    e(f"v_lshrrev_b32 v{T[11]}, 1, v{T[4]}")
    e(f"v_xor_b32 v{T[11]}, s{sH}, v{T[11]}")
    e(f"v_lshl_add_u32 v{T[9]}, v{T[11]}, 6, v{T[9]}")
    e(f"v_and_b32 v{T[11]}, 1, v{vG}")
    e(f"v_lshl_add_u32 v{vA['8']}, v{T[11]}, 5, v{T[9]}")
    e(f"s_mul_i32 s{sT4}, s{sH}, 12288"); e(f"s_sub_u32 s{sT5}, 12288, s{sT4}")
    e(f"v_add_u32 v{vA[('n',0,0)]}, s{sT4}, v{vA['8']}"); e(f"v_add_u32 v{vA[('n',1,0)]}, s{sT5}, v{vA['8']}")
    e(f"v_add_u32 v{vA[('n',0,1)]}, 49152, v{vA[('n',0,0)]}"); e(f"v_add_u32 v{vA[('n',1,1)]}, 49152, v{vA[('n',1,0)]}")
    e(f"v_lshl_add_u32 v{T[9]}, v{vG}, 2, v{T[4]}")
    e(f"v_lshl_add_u32 v{T[10]}, v{T[9]}, 7, v{T[10]}")
    e(f"v_bfe_u32 v{T[9]}, v{T[9]}, 1, 2")
    e(f"s_lshl_b32 s{sT}, s{sH}, 1")
    e(f"v_xor_b32 v{T[9]}, s{sT}, v{T[9]}")
    e(f"v_lshl_add_u32 v{vA[('p',0,0)]}, v{T[9]}, 5, v{T[10]}")
    e(f"v_xor_b32 v{vA[('p',1,0)]}, 32, v{vA[('p',0,0)]}")
    for t in (0, 1): e(f"v_add_u32 v{vA[('p',t,1)]}, 49152, v{vA[('p',t,0)]}")
    e(f"s_lshl_b32 s{sT}, s{sQI}, 11"); e(f"s_add_u32 s{sT}, s{sT}, {PREG}")
    e(f"v_lshlrev_b32 v{T[11]}, 4, v{vLANE}")
    e(f"v_add_u32 v{T[11]}, s{sT}, v{T[11]}")
    e(f"s_lshl_b32 s{sT4}, s{sH}, 13"); e(f"v_add_u32 v{vPW}, s{sT4}, v{T[11]}")
    e(f"v_xor_b32 v{vXR}, 8192, v{vPW}")
    e(f"s_lshl_b32 s{sT4}, s{sH}, 10"); e(f"v_add_u32 v{vP8}, s{sT4}, v{T[11]}")
    e(f"s_lshl_b32 s{sT4}, s{sH}, 14"); e(f"v_add_u32 v{v8R}, s{sT4}, v{T[11]}")
    e(f"v_lshlrev_b32 v{T[9]}, 9, v{vG}")
    e(f"v_lshl_add_u32 v{T[9]}, v{vI}, 4, v{T[9]}")
    e(f"v_add_u32 v{vPR}, s{sT}, v{T[9]}")
    e(f"v_lshlrev_b32 v{T[9]}, 4, v{T[5]}")
    e(f"v_add_u32 v{vBI8}, {BIAS}, v{T[9]}")
    e(f"s_lshl_b32 s{sT4}, s{sH}, 7"); e(f"v_add_u32 v{vBI}, s{sT4}, v{vBI8}")
    e(f"s_mul_i32 s{sT}, s{sFJ}, 144"); e(f"s_lshl_b32 s{sT4}, s{sH}, 3"); e(f"s_add_u32 s{sT}, s{sT}, s{sT4}")
    e(f"s_lshl_b32 s{sT}, s{sT}, 14")
    e(f"s_lshl_b32 s{sT4}, s{sMI}, 10"); e(f"s_add_u32 s{sT}, s{sT}, s{sT4}")
    e(f"s_lshl_b32 s{sT4}, s{sQI}, 8"); e(f"s_add_u32 s{sT}, s{sT}, s{sT4}")
    e(f"v_lshlrev_b32 v{vOO}, 14, v{vG}")
    e(f"v_lshl_add_u32 v{vOO}, v{vI}, 4, v{vOO}")
    e(f"v_add_u32 v{vOO}, s{sT}, v{vOO}")
    e("s_setprio 1")
    for c in range(6, 9): xdma(c)
    e("s_setprio 0")
    if PRO: stamp("xissued")
    e(f"v_cmp_gt_u32 vcc, 32, v0")
    e(f"v_mov_b32 v{T[6]}, -32")
    e(f"v_mov_b32 v{T[7]}, 256")
    e(f"v_cndmask_b32 v{T[6]}, v{T[6]}, v{T[7]}, vcc")
    e(f"s_sub_u32 s{sT4}, s{sT2}, 1")
    e(f"v_and_b32 v{T[6]}, s{sT4}, v{T[6]}")
    e(f"v_add_u32 v{T[6]}, v{T[6]}, v0")
    e(f"v_min_u32 v{T[6]}, 287, v{T[6]}")
    e(f"v_lshlrev_b32 v{T[6]}, 1, v{T[6]}")
    p.vmem(f"buffer_load_ushort v{T[7]}, v{T[6]}, s[{SB1}:{SB1+3}], s{sT3} offen", tag='bias')
    e(f"v_min_u32 v{T[9]}, 359, v0")
    e(f"v_mul_u32_u24 v{T[10]}, 205, v{T[9]}")
    e(f"v_lshrrev_b32 v{T[10]}, 10, v{T[10]}")
    e(f"v_mul_u32_u24 v{T[11]}, 5, v{T[10]}")
    e(f"v_sub_u32 v{T[9]}, v{T[9]}, v{T[11]}")
    e(f"v_mul_u32_u24 v{T[10]}, 9216, v{T[10]}")
    e(f"v_lshl_add_u32 v{T[9]}, v{T[9]}, 7, v{T[10]}")
    e(f"s_and_b32 s{sT5}, s{sMI}, 7")
    e(f"s_mul_i32 s{sT}, s{sT5}, {72*9216}")
    e(f"s_and_b32 s{sT4}, s{sT3}, 0xffffff80")
    e(f"s_add_u32 s{sT}, s{sT}, s{sT4}")
    p.vmem(f"buffer_load_dword v{T[8]}, v{T[9]}, s[{SW1}:{SW1+3}], s{sT} offen", tag='pf')
    def w2_prefetch():
        e(f"v_min_u32 v{T[9]}, 323, v0")
        e(f"v_lshlrev_b32 v{T[9]}, 7, v{T[9]}")
        e(f"s_and_b32 s{sT5}, s{sMI}, 7")
        e(f"s_mul_i32 s{sT}, s{sFJ}, {288*1152}")
        e(f"s_mul_i32 s{sT4}, s{sT5}, {324*128}")
        e(f"s_add_u32 s{sT}, s{sT}, s{sT4}")
        p.vmem(f"buffer_load_dword v{T[8]}, v{T[9]}, s[{SW2}:{SW2+3}], s{sT} offen", tag='pf')
    XA = lambda j: SA + j
    e(f"v_and_b32 v{T[10]}, 31, v{vLANE}")
    e(f"v_bfe_u32 v{T[9]}, v{vLANE}, 1, 3")
    e(f"v_xor_b32 v{T[9]}, v{T[9]}, v{T[5]}")
    e(f"s_lshl_b32 s{sT}, s{sQI}, 5")
    e(f"v_add_u32 v{vROW}, s{sT}, v{T[10]}")
    e(f"v_lshlrev_b32 v{T[10]}, 7, v{vROW}")
    for j in range(6):
        e(f"s_mul_i32 s{sT}, s{sH}, 6"); e(f"s_add_u32 s{sT}, s{sT}, {j}")
        e(f"s_and_b32 s{sT4}, s{sT}, 3"); e(f"s_lshl_b32 s{sT4}, s{sT4}, 1")
        e(f"s_lshr_b32 s{sT}, s{sT}, 2"); e(f"s_lshl_b32 s{sT}, s{sT}, 14")
        e(f"v_xor_b32 v{T[11]}, s{sT4}, v{T[9]}")
        e(f"v_lshl_add_u32 v{T[11]}, v{T[11]}, 4, v{T[10]}")
        e(f"v_add_u32 v{XA(j)}, s{sT}, v{T[11]}")
    e(f"v_lshrrev_b32 v{T[9]}, 1, v{T[4]}")
    e(f"v_lshl_add_u32 v{T[9]}, v{vG}, 2, v{T[9]}")
    e(f"v_and_b32 v{T[10]}, 1, v{T[4]}")
    e(f"v_lshl_add_u32 v{T[9]}, v{T[10]}, 4, v{T[9]}")
    e(f"v_bfe_u32 v{T[10]}, v{vLANE}, 1, 1")
    e(f"s_and_b32 s{sT}, s{sW}, 6")
    e(f"v_or_b32 v{T[10]}, s{sT}, v{T[10]}")
    e(f"v_lshlrev_b32 v{T[11]}, 1, v{vG}")
    e(f"v_xor_b32 v{T[10]}, v{T[10]}, v{T[11]}")
    e(f"v_lshlrev_b32 v{T[9]}, 7, v{T[9]}")
    e(f"v_and_b32 v{T[11]}, 1, v{vLANE}")
    e(f"v_lshl_add_u32 v{T[9]}, v{T[11]}, 3, v{T[9]}")
    e(f"s_and_b32 s{sT}, s{sW}, 1"); e(f"s_lshl_b32 s{sT}, s{sT}, 13")
    e(f"s_lshl_b32 s{sT4}, s{sFJ}, 14"); e(f"s_add_u32 s{sT}, s{sT}, s{sT4}")
    e(f"v_add_u32 v{T[9]}, s{sT}, v{T[9]}")
    e(f"v_lshl_add_u32 v{vXTA}, v{T[10]}, 4, v{T[9]}")
    vXTB = SA + 6
    e(f"v_xor_b32 v{vXTB}, 16, v{vXTA}")
    ACC = [SA + 8, SA + 9, SA + 10]
    for a in ACC: e(f"v_mov_b32 v{a}, 0")
    for i in range(4): e(f"v_mov_b32 v{WF+i}, s{sONE}")

    D = [(('B', 0, 0), ('B', 0, 1)), (('8', 0), ('8', 1)), (('B', 0, 2), ('B', 0, 3)), (('B', 0, 4), ('B', 0, 5)), (('8', 2), None)]
    for tau in (1, 2, 3):
        for k in range(3): D.append((('B', tau, 2*k), ('B', tau, 2*k+1)))
    p2 = [('E', 0, 0), ('E', 0, 1), ('E', 1, 0), ('E', 1, 1), ('E', 0, 2), ('E', 1, 2)]
    for j in range(2, 9): p2 += [('E', j, k) for k in range(3)]
    for i in range(0, len(p2), 2): D.append((p2[i], p2[i+1] if i + 1 < len(p2) else None))
    uloc = {}
    for k, (a, b) in enumerate(D):
        uloc[a] = (k, 0)
        if b: uloc[b] = (k, 1)
    def uparams(u):
        if u[0] == 'B': return SW1, vOW1, 96 * u[2] * 9216 + 128 * u[1], sRP1, sRP1X, sRP1H
        if u[0] == '8': return SW1, vOW8, 192 * u[1] * 9216, sRP8, sRP8X, sRP8H
        return SW2, vOW2, 96 * u[2] * 1152 + 128 * u[1], (sRP2K0 if u[2] == 0 else sRP2), sRP2X, None
    def dma_double(k):
        ops = []
        lds0 = (k % 4) * 24576
        def one(m0r, m0i, sr_, base, srd, vo, maybe=False):
            e(f"s_add_u32 m0, s{m0r}, {m0i}")
            e(f"s_add_u32 s{sT}, s{sr_}, {base}")
            p.vmem(f"buffer_load_dwordx4 v{vo}, s[{srd}:{srd+3}], s{sT} offen lds", tag=('u', k), maybe=maybe)
        for half, u in enumerate(D[k]):
            if not u: continue
            srd, vo, base, r, rx, rh = uparams(u)
            ops.append(lambda srd=srd, vo=vo, base=base, r=r, half=half: one(sM0W, lds0 + half*12288, r, base, srd, vo))
        a, b = D[k]
        if b and a[0] != 'E':
            srd, vo, base, r, rx, rh = uparams(a)
            ops.append(lambda: one(sM0H, lds0, rh, base, srd, vo))
        else:
            for half, u in enumerate(D[k]):
                if not u: continue
                srd, vo, base, r, rx, rh = uparams(u)
                def extra(srd=srd, vo=vo, base=base, rx=rx, half=half):
                    L = p.newlabel("K1_X")
                    e(f"s_cmp_eq_u32 s{sH}, {half}")
                    e(f"s_cbranch_scc0 {L}")
                    one(sM0X, lds0 + half*12288, rx, base, srd, vo, maybe=True)
                    p.label(L)
                ops.append(extra)
        return ops

    if PRO: stamp("setup")
    for R in range(3):
        p.wait(vm=[('x', 3*R+2)], lg_all=True)
        e("s_barrier")
        stamp(f"xround{R}")
        for j in range(6):
            p.ds(f"ds_read_b128 {vr(Q(12*R+j), 4)}, v{XA(j)}", tag=('raw', R, j))
        if R >= 1:
            for k in (2*(R-1), 2*(R-1)+1):
                for op in dma_double(k): op()
        if R < 2:
            for j in range(6): e(f"v_add_u32 v{XA(j)}, 49152, v{XA(j)}")
        L = p.newlabel("K1_XT")
        e(f"s_sub_u32 s{sT}, s{sFJ}, {3*R}")
        e(f"s_cmp_lt_u32 s{sT}, 3")
        e(f"s_cbranch_scc0 {L}")
        for job in range(2):
            e(f"ds_read_b64_tr_b16 {vr(vXT+4*job, 2)}, v{vXTA} offset:{4096*job}")
            e(f"ds_read_b64_tr_b16 {vr(vXT+4*job+2, 2)}, v{vXTB} offset:{4096*job+256}")
        e("s_waitcnt lgkmcnt(0)")
        p.label(L)
        for j in range(6):
            p.wait(lg=[('raw', R, j)])
            first = (R == 0 and j == 0)
            e(f"v_mfma_f32_32x32x16_bf16 {vr(SB,16)}, {vr(WF,4)}, {vr(Q(12*R+j),4)}, " + ("0" if first else vr(SB,16)))
            for d in range(4):
                x = Q(12*R+j) + d
                e(f"v_dot2_f32_bf16 v{ACC[1+(d&1)]}, v{x}, v{x}, v{ACC[1+(d&1)]}")
        if R == 1: w2_prefetch()
    p.wait(vm=['bias'])
    e(f"v_lshlrev_b32 v{T[7]}, 16, v{T[7]}")
    e(f"v_mov_b32 v{T[5]}, {fhex(ALPHA)}")
    e(f"v_mov_b32 v{T[4]}, {fhex(ALPHA*0.5)}")
    e(f"v_cmp_gt_u32 vcc, 32, v0")
    e(f"v_min_u32 v{T[6]}, 287, v0")
    e(f"v_lshlrev_b32 v{T[6]}, 2, v{T[6]}")
    e(f"v_cndmask_b32 v{T[5]}, v{T[5]}, v{T[4]}, vcc")
    e(f"v_add_u32 v{T[6]}, {BIAS}, v{T[6]}")
    e(f"v_mul_f32 v{T[7]}, v{T[7]}, v{T[5]}")
    e(f"v_cmp_gt_u32 vcc, 288, v0")
    e(f"s_and_saveexec_b64 s[54:55], vcc")
    p.ds(f"ds_write_b32 v{T[6]}, v{T[7]}")
    e(f"s_mov_b64 exec, s[54:55]")
    e(f"v_add_f32 v{ACC[1]}, v{ACC[1]}, v{ACC[2]}")
    e(f"v_mov_b32 v{T[0]}, v{ACC[1]}")
    e(f"s_lshl_b32 s{sT}, s{sH}, 3"); e(f"s_add_u32 s{sT}, s{sT}, {STAT}")
    e(f"v_lshlrev_b32 v{T[4]}, 4, v{vROW}")
    e(f"v_permlane32_swap_b32 v{ACC[1]}, v{T[0]}")
    e(f"v_add_u32 v{T[5]}, s{sT}, v{T[4]}")
    e(f"v_mov_b32 v{ACC[0]}, v{SB}")
    e(f"v_add_f32 v{ACC[1]}, v{ACC[1]}, v{T[0]}")
    p.ds(f"ds_write_b64 v{T[5]}, v[{ACC[0]}:{ACC[1]}]")
    e(f"v_add_u32 v{T[4]}, {STAT}, v{T[4]}")
    p.wait(lg_all=True)
    e("s_barrier")
    stamp("statbar")
    p.ds(f"ds_read_b128 {vr(T[8], 4)}, v{T[4]}", tag='st')
    def bias_init(S, tau):
        if tau == 8: return [lambda gg=gg: p.ds(f"ds_read_b128 {vr(S + gg*4, 4)}, v{vBI8} offset:{gg*32}", tag=('bias', tau)) for gg in range(4)]
        return [lambda gg=gg: p.ds(f"ds_read_b128 {vr(S + gg*4, 4)}, v{vBI} offset:{(32+64*tau+8*gg)*4}", tag=('bias', tau)) for gg in range(4)]
    for op in bias_init(SA, 0) + bias_init(SB, 8): op()
    p.wait(lg=['st'])
    inv = 1.0 / 576.0
    b = T[8]
    for s_ in [f"v_add_f32 v{b}, v{b}, v{b+2}", f"v_add_f32 v{b+1}, v{b+1}, v{b+3}",
            f"v_mul_f32 v{b}, {fhex(inv)}, v{b}", f"v_mul_f32 v{b+1}, {fhex(inv)}, v{b+1}",
            f"v_fma_f32 v{b+1}, -v{b}, v{b}, v{b+1}", f"v_max_f32 v{b+1}, 0, v{b+1}",
            f"v_cvt_pk_bf16_f32 v{b+2}, v{b}, v{b+1}", f"v_lshlrev_b32 v{b}, 16, v{b+2}",
            f"v_and_b32 v{b+1}, s{sMASK}, v{b+2}", f"v_add_f32 v{b+1}, {fhex(1e-5)}, v{b+1}",
            f"v_cvt_pk_bf16_f32 v{b+1}, v{b+1}, v{b+1}", f"v_and_b32 v{b+1}, s{sMASK}, v{b+1}",
            f"v_sqrt_f32 v{b+1}, v{b+1}", "s_nop 0", f"v_cvt_pk_bf16_f32 v{b+1}, v{b+1}, v{b+1}",
            f"v_and_b32 v{b+1}, s{sMASK}, v{b+1}", f"v_rcp_f32 v{b+2}, v{b+1}",
            f"v_lshlrev_b32 v{T[4]}, 3, v{vROW}",
            f"v_mul_f32 v{b+3}, -v{b}, v{b+2}", f"v_add_u32 v{T[4]}, {RCT}, v{T[4]}",
            f"v_mul_f32 v{vR}, s{sAL}, v{b+2}", f"v_mul_f32 v{vC}, s{sAL}, v{b+3}"]: e(s_)
    p.ds(f"ds_write_b64 v{T[4]}, v[{b+2}:{b+3}]", tag='w')

    seq = []
    def G(k, areg, imm, d2, mfs, need=()):
        seq.append(dict(kind='G', unit=k, areg=areg, imm=imm, d2=d2, mf=mfs, need=list(need)))
    def BAR(bg=(), pre=()):
        seq.append(dict(kind='BAR', bg=list(bg), first=list(pre)))
    def p1_group(tau, S, Dk, own, j, need=()):
        k = uloc[('B', tau, 2*Dk)][0]; slot = k % 4
        q = Q(12*Dk + 6*own + j)
        G(k, vA[('n', own, slot >> 1)], (slot & 1) * 24576 + j * 2048, 512,
          [lambda wf: f"v_mfma_f32_32x32x16_bf16 {vr(S,16)}, {vr(wf,4)}, {vr(q,4)}, {vr(S,16)}"], need)
    def b8_group(Dk, j, need=()):
        k, half = uloc[('8', Dk)]; slot = k % 4
        assert slot < 2
        q = Q(12*Dk + j)
        G(k, vA['8'], slot * 24576 + half * 12288 + j * 2048, 512,
          [lambda wf: f"v_mfma_f32_32x32x16_bf16 {vr(SB,16)}, {vr(wf,4)}, {vr(q,4)}, {vr(SB,16)}"], need)
    def norm_ops(slot0, buf):
        ops = []
        for sg in range(2):
            q = Q(slot0 + sg)
            tt = [TMP + 8*sg + i for i in range(8)]
            for d in range(4):
                ops.append(lambda d=d, q=q, tt=tt: e(f"v_lshlrev_b32 v{tt[2*d]}, 16, v{q+d}"))
                ops.append(lambda d=d, q=q, tt=tt: e(f"v_and_b32 v{tt[2*d+1]}, s{sMASK}, v{q+d}"))
            for d in range(8):
                ops.append(lambda d=d, tt=tt: e(f"v_fma_f32 v{tt[d]}, v{tt[d]}, v{vR}, v{vC}"))
            for d in range(4):
                ops.append(lambda d=d, q=q, tt=tt: e(f"v_cvt_pk_bf16_f32 v{q+d}, v{tt[2*d]}, v{tt[2*d+1]}"))
            ops.append(lambda q=q, sg=sg: p.ds(f"ds_write_b128 v{vPW}, {vr(q,4)} offset:{buf*16384+sg*1024}", tag='w'))
        return ops
    def gelu_ops(regs4, dst2, tbase):
        ops = []
        tt = [tbase + i for i in range(4)]
        for i in range(4): ops.append(lambda i=i: e(f"v_fmaak_f32 v{tt[i]}, v{regs4+i}, v{regs4+i}, {fhex(CA)}"))
        for i in range(4): ops.append(lambda i=i: e(f"v_mul_f32 v{tt[i]}, v{regs4+i}, v{tt[i]}"))
        for i in range(4): ops.append(lambda i=i: e(f"v_exp_f32 v{tt[i]}, -v{tt[i]}"))
        for i in range(4): ops.append(lambda i=i: e(f"v_fma_f32 v{tt[i]}, v{tt[i]}, s{sAL}, s{sAL}"))
        for i in range(4): ops.append(lambda i=i: e(f"v_rcp_f32 v{tt[i]}, v{tt[i]}"))
        for i in range(4): ops.append(lambda i=i: e(f"v_mul_f32 v{tt[i]}, v{regs4+i}, v{tt[i]}"))
        for i in range(2): ops.append(lambda i=i: e(f"v_cvt_pk_bf16_f32 v{dst2+i}, v{tt[2*i]}, v{tt[2*i+1]}"))
        return ops
    def gelu_block(S, tau):
        ops = []
        slot = (1 + 2*tau) if tau < 3 else 0
        for kap in range(2):
            pw = TMP + 8 + 4*kap
            for t in range(2):
                ops += gelu_ops(S + (kap*2+t)*4, pw + 2*t, TMP + 4*t)
            ops.append(lambda pw=pw, kap=kap: p.ds(f"ds_write_b128 v{vPW}, {vr(pw,4)} offset:{slot*8192+kap*1024}", tag='w'))
        return ops
    def s8_write():
        return [lambda gg=gg: p.ds(f"ds_write_b128 v{vPW}, {vr(SB+4*gg,4)} offset:{24576 + (gg>>1)*16384 + (gg&1)*1024}", tag='w') for gg in range(4)]
    def s8_read():
        ops = []
        for hh in range(2):
            for c in range(2):
                dst = (SC if hh == 0 else vXT) + 4*c
                ops.append(lambda hh=hh, c=c, dst=dst: p.ds(f"ds_read_b128 {vr(dst,4)}, v{v8R} offset:{24576 + hh*8192 + c*1024}", tag='s8'))
        return ops
    def gelu_b8():
        ops = [lambda: p.wait(lg=['s8'])]
        for i in range(8): ops.append(lambda i=i: e(f"v_add_f32 v{SC+i}, v{SC+i}, v{vXT+i}"))
        pw = TMP + 8
        for t in range(2): ops += gelu_ops(SC + 4*t, pw + 2*t, TMP + 4*t)
        ops.append(lambda: p.ds(f"ds_write_b128 v{vP8}, {vr(pw,4)}", tag='w'))
        return ops
    def pread(kk):
        slot = kk if kk < 7 else kk - 7
        return [lambda sg=sg: p.ds(f"ds_read_b128 {vr(Q(2*kk+sg),4)}, v{vPR} offset:{slot*8192+sg*256}", tag=('P', kk)) for sg in range(2)]
    def xt_job():
        L = p.newlabel("K1_XJ")
        e(f"s_cmp_lt_u32 s{sFJ}, 9")
        e(f"s_cbranch_scc0 {L}")
        e(f"s_lshl_b32 s{sT}, s{sFJ}, 6"); e(f"s_and_b32 s{sT4}, s{sW}, 6"); e(f"s_lshl_b32 s{sT4}, s{sT4}, 3")
        e(f"s_add_u32 s{sT}, s{sT}, s{sT4}"); e(f"s_lshl_b32 s{sT}, s{sT}, 12")
        e(f"s_lshl_b32 s{sT4}, s{sMI}, 8"); e(f"s_add_u32 s{sT}, s{sT}, s{sT4}")
        e(f"s_and_b32 s{sT4}, s{sW}, 1"); e(f"s_lshl_b32 s{sT5}, s{sT4}, 7"); e(f"s_add_u32 s{sT}, s{sT}, s{sT5}")
        e(f"s_add_u32 s{sT}, s{sT}, {XNT_OFF}")
        e(f"s_lshl_b32 s{sT4}, s{sT4}, 9"); e(f"s_add_u32 s{sT4}, s{sT4}, {RCT}")
        va, vb, v1_, v2_ = SC, SC+1, SC+2, SC+3
        e(f"v_lshlrev_b32 v{vb}, 5, v{vG}")
        e(f"v_add_u32 v{vb}, s{sT4}, v{vb}")
        e(f"s_add_u32 s{sT5}, s{sXM}, {PREG+40960}")
        e(f"v_lshlrev_b32 v{va}, 4, v{vG}")
        e(f"v_lshl_add_u32 v{va}, v{vI}, 7, v{va}")
        e(f"v_add_u32 v{va}, s{sT5}, v{va}")
        for job in range(2):
            x = vXT + 4*job
            for q in range(4):
                e(f"ds_read_b128 {vr(TMP+4*q,4)}, v{vb} offset:{256*job+128*(q>>1)+16*(q&1)}")
            e("s_waitcnt lgkmcnt(0)")
            for d in range(4):
                e(f"v_lshlrev_b32 v{v1_}, 16, v{x+d}")
                e(f"v_and_b32 v{v2_}, s{sMASK}, v{x+d}")
                e(f"v_fma_f32 v{v1_}, v{v1_}, v{TMP+2*d}, v{TMP+2*d+1}")
                e(f"v_fma_f32 v{v2_}, v{v2_}, v{TMP+8+2*d}, v{TMP+8+2*d+1}")
                e(f"v_cvt_pk_bf16_f32 v{x+d}, v{v1_}, v{v2_}")
            e(f"ds_write_b128 v{va}, {vr(x,4)} offset:{64*job}")
        e(f"v_lshlrev_b32 v{va}, 4, v{vLANE}")
        e(f"v_add_u32 v{va}, s{sT5}, v{va}")
        e(f"v_lshrrev_b32 v{vb}, 3, v{vLANE}")
        e(f"v_lshlrev_b32 v{vb}, 12, v{vb}")
        e(f"v_and_b32 v{v1_}, 7, v{vLANE}")
        e(f"v_lshl_add_u32 v{vb}, v{v1_}, 4, v{vb}")
        e("s_waitcnt lgkmcnt(0)")
        e(f"ds_read_b128 {vr(TMP,4)}, v{va}")
        e(f"ds_read_b128 {vr(TMP+4,4)}, v{va} offset:1024")
        e(f"s_add_u32 s{sT4}, s{sT}, {8*4096}")
        e("s_waitcnt lgkmcnt(0)")
        p.vmem(f"buffer_store_dwordx4 {vr(TMP,4)}, v{vb}, s[{SWS}:{SWS+3}], s{sT} offen", maybe=True)
        p.vmem(f"buffer_store_dwordx4 {vr(TMP+4,4)}, v{vb}, s[{SWS}:{SWS+3}], s{sT4} offen", maybe=True)
        e("s_nop 1")
        p.label(L)

    for op in norm_ops(0, 0): op()
    for r in range(9):
        Dk, j = divmod(r, 3)
        pre = [lambda sg=sg, r=r, Dk=Dk, j=j: p.ds(f"ds_read_b128 {vr(Q(12*Dk+6+2*j+sg),4)}, v{vXR} offset:{(r%2)*16384+sg*1024}", tag=('oth', r)) for sg in range(2)]
        bg = []
        if r + 1 < 9:
            Dn, jn = divmod(r + 1, 3)
            bg = norm_ops(12*Dn + 2*jn, (r + 1) % 2)
        else:
            bg = [xt_job]
        BAR(bg=bg, pre=pre)
        nd = [('bias', 0), ('bias', 8)] if r == 0 else []
        for sg in range(2):
            b8_group(Dk, 2*j+sg, nd); p1_group(0, SA, Dk, 0, 2*j+sg, nd)
        for sg in range(2): p1_group(0, SA, Dk, 1, 2*j+sg, [('oth', r)])
    Sbuf = {0: SA, 1: SB, 2: SA, 3: SB}
    for tau in (1, 2, 3):
        gl = gelu_block(Sbuf[tau-1], tau-1)
        n3 = (len(gl) + 2) // 3
        for Dk in range(3):
            pre = []
            if tau == 1 and Dk == 0: pre = s8_write() + bias_init(SB, 1)
            bg = gl[Dk*n3:(Dk+1)*n3]
            if tau == 1 and Dk == 1: bg = s8_read() + bg
            if tau == 3 and Dk == 0: bg = gelu_b8() + bg
            if Dk == 2 and tau < 3: bg = bg + bias_init(Sbuf[tau+1], tau+1)
            if tau == 3 and Dk == 1: bg = pread(1) + pread(2) + pread(0) + bg
            if tau == 3 and Dk == 2: bg = pread(3) + pread(4) + bg
            BAR(bg=bg, pre=pre)
            for own in range(2):
                for j in range(6):
                    p1_group(tau, Sbuf[tau], Dk, own, j, [('bias', tau)] if (Dk == 0 and own == 0 and j == 0) else [])
    OB = {0: Q(18), 1: Q(22)}
    ET = Q(26)
    def epi(j):
        O = OB[j % 2]
        ops = []
        for t in range(2):
            dst = ET + 4*t + 8*(j % 2)
            for sg in range(2):
                for i in range(2):
                    ops.append(lambda t=t, sg=sg, i=i, dst=dst: e(f"v_cvt_pk_bf16_f32 v{dst+2*sg+i}, v{O+(t*2+sg)*4+2*i}, v{O+(t*2+sg)*4+2*i+1}"))
            def st(t=t, dst=dst):
                e(f"s_mov_b32 s{sT}, {(16*j+4*t)*16384}")
                p.vmem(f"buffer_store_dwordx4 {vr(dst,4)}, v{vOO}, s[{SWS}:{SWS+3}], s{sT} offen")
            if not NOST: ops.append(st)
        return ops
    gl3 = gelu_block(SB, 3)
    for i, u in enumerate(p2):
        _, j, k = u
        kd, half = uloc[u]
        if half == 0:
            bg = []; pre = []
            if i == 0: pre = pread(5) + pread(6); bg = gl3[:len(gl3)//2]
            if i == 2: bg = gl3[len(gl3)//2:]
            if i == 4: pre = pread(7) + pread(8)
            BAR(bg=bg, pre=pre)
        slot = kd % 4
        O = OB[j % 2]
        for jj in range(3):
            kk = 3*k + jj
            for t in range(2):
                first = (kk == 0)
                mfs = [lambda wf, t=t, sg=sg, kk=kk, first=first, O=O: f"v_mfma_f32_16x16x32_bf16 {vr(O+(t*2+sg)*4,4)}, {vr(wf,4)}, {vr(Q(2*kk+sg),4)}, " + ("0" if first else vr(O+(t*2+sg)*4,4)) for sg in range(2)]
                G(kd, vA[('p', t, slot >> 1)], (slot & 1) * 24576 + half * 12288 + jj * 4096, 2048, mfs, [('P', kk)])
        if k == 2:
            seq.append(dict(kind='EPI', ops=epi(j)))
    gidx = [i for i, s in enumerate(seq) if s['kind'] == 'G']
    pos_of_g = {g: n for n, g in enumerate(gidx)}
    bars = [i for i, s in enumerate(seq) if s['kind'] == 'BAR']
    first_read_pos = {}; last_use = {}
    for n, g in enumerate(gidx):
        k = seq[g]['unit']
        rp = gidx[n - RA] if n - RA >= 0 else -1
        first_read_pos.setdefault(k, rp)
        last_use[k] = g
    land = {}; rel = {}
    for k in first_read_pos:
        prev = [b for b in bars if b < first_read_pos[k]]
        land.setdefault(prev[-1] if prev else bars[0], []).append(k)
        nxt = [b for b in bars if b > last_use[k]]
        if nxt and k + 4 < len(D): rel.setdefault(nxt[0], []).append(k + 4)
    wf_of = {}
    def issue_reads(n):
        if n >= len(gidx): return
        s = seq[gidx[n]]
        wf = WF + 4 * (n % NWF)
        wf_of[n] = wf
        if NOREAD: return
        p.ds(f"ds_read_b64_tr_b16 {vr(wf,2)}, v{s['areg']} offset:{s['imm']}", tag=('wf', n))
        p.ds(f"ds_read_b64_tr_b16 {vr(wf+2,2)}, v{s['areg']} offset:{s['imm']+s['d2']}", tag=('wf', n))
    bgq = []
    def groups_left(i):
        c = 0
        for s in seq[i:]:
            if s['kind'] == 'BAR': break
            if s['kind'] == 'G': c += 1
        return c
    delay = []
    for i, s in enumerate(seq):
        if s['kind'] == 'EPI':
            delay.append([3, s['ops']])
        elif s['kind'] == 'BAR':
            for op in bgq: op()
            p.wait(vm=[('u', k) for k in land.get(i, [])], lg=['w'])
            if not NOBAR: e("s_barrier")
            bi = bars.index(i)
            if bi in ((0, 3, 6, 9, 12, 15, 18, 21, 24, 27, 30) if PRO else (0, 1, 3, 6, 9, 10, 12, 15, 18, 19, 20, 21, 24, 27, 30)): stamp(f"bar{bi}")
            if i == bars[0]:
                for n in range(RA): issue_reads(n)
            if bi == 9: e("s_nop 7")
            for op in s['first']: op()
            dm = []
            for k in rel.get(i, []):
                if not NODMA: dm += dma_double(k)
            bgq = []
            b = [] if NOBG else list(s['bg'])
            step = max(1, len(b) // (len(dm) + 1)) if dm else 0
            while dm or b:
                if dm: bgq.append(dm.pop(0))
                take = b[:step] if dm else b
                bgq += take; b = b[len(take):]
        else:
            n = pos_of_g[i]
            left = groups_left(i)
            if seq[i-1]['kind'] == 'BAR': segn = left
            done = segn - left
            if PRIO and (done == 0 or (done * 4) // segn != ((done - 1) * 4) // segn):
                e(f"s_setprio {3 - (done * 4) // segn}")
            left = max(left - FRONT, 1)
            for dl in delay: dl[0] -= 1
            while delay and delay[0][0] <= 0: bgq += delay.pop(0)[1]
            k = -(-len(bgq) // left)
            p.wait(lg=[('wf', n)] + s['need'])
            nm = len(s['mf'])
            for mi_, mf in enumerate(s['mf']):
                e(mf(wf_of[n]))
                if mi_ == 0: issue_reads(n + RA)
                lo = (k * mi_) // nm; hi = (k * (mi_ + 1)) // nm
                for op in bgq[lo:hi]: op()
            bgq = bgq[k:]
    e("s_nop 7")
    for op in bgq: op()
    for dl in delay:
        for op in dl[1]: op()
    if DIAG:
        stamp("lastissue")
        e("s_waitcnt vmcnt(0)")
        stamp("end")
        e("s_waitcnt lgkmcnt(0)")
        for i in range(len(stamps)):
            e(f"s_sub_u32 s{sT}, s{56+2*i}, s56")
            e(f"v_writelane_b32 v{TMP}, s{sT}, {i}")
        e(f"s_lshl_b32 s{sT}, s2, 3"); e(f"s_add_u32 s{sT}, s{sT}, s{sW}"); e(f"s_lshl_b32 s{sT}, s{sT}, 8")
        e(f"s_add_u32 s{sT}, s{sT}, 0x4000000")
        e(f"v_lshlrev_b32 v{TMP+1}, 2, v{vLANE}")
        e(f"buffer_store_dword v{TMP}, v{TMP+1}, s[{SWS}:{SWS+3}], s{sT} offen")
        open("stamps.txt", "w").write(" ".join(stamps))
    p.label("K1_END")
    e("s_endpgm")
    return p.text()
```

```python
from asmlib import *
import math, os
LAUNCH = "grid=(144,1,1) block=(1024,1,1) lds=163840"
VGPRS = 128
XNT_OFF = 37748736
CH = 22272; UCP = 4512; KR = 18048
SCR = 89088
TBL = 154624
DIAG = int(os.environ.get("DIAG2", "0"))
NUP = int(os.environ.get("NUP", "11"))
LOG2E = math.log2(math.e)
R1 = [0,1,2,3,4,5,6,7,256,258,260,262,512,128,1280,1536]
def tidx(lr):
    if lr < 256: return lr, 3
    if lr < 512: return 256 + (lr-256)//2, 2
    if lr < 1024: return 384 + (lr-512)//4, 1
    return 512 + (lr-1024)//8, 0
def rowc(a, i):
    valid = (i != 13) if a == 0 else (i in (4, 8, 10, 12, 14, 15))
    if not valid: return (641, 0)
    return tidx(R1[i] + 512*a)

def gen():
    p = Prog(); e = p.emit
    stamps = []
    def stamp(name):
        if DIAG and len(stamps) < 12:
            e(f"s_memtime s[{76+2*len(stamps)}:{77+2*len(stamps)}]"); stamps.append(name)
    sW, sCH, sWQ, sEB, sD, sT, sT2, sT3, sMASK, sCB, sPB = 20, 21, 22, 23, 24, 25, 26, 27, 28, 29, 30
    vLANE, vG, vI, vY16, vPO = 1, 2, 3, 4, 5
    GA = 6
    SA = 10
    T = 12
    P1, P0 = 28, 40
    ACC = 52; FR = 68; PL = 84
    def plreg(sp):
        if sp < 11: return PL + 4*sp
        if sp < 14: return P0 + 4*(sp-11)
        return P1 + 4*(sp-14)
    XR = P1 + 8
    e("s_cmp_ge_u32 s2, 144"); e("s_cbranch_scc1 K2_END")
    stamp("start")
    e("s_load_dwordx16 s[32:47], s[0:1], 8")
    e("s_load_dwordx2 s[16:17], s[0:1], 128")
    e("s_load_dwordx2 s[4:5], s[0:1], 0")
    e("s_load_dwordx4 s[52:55], s[0:1], 104")
    e("v_lshrrev_b32 v5, 6, v0")
    e(f"v_and_b32 v{vLANE}, 63, v0")
    e(f"v_readfirstlane_b32 s{sW}, v5")
    e(f"v_lshrrev_b32 v{vG}, 4, v{vLANE}")
    e(f"v_and_b32 v{vI}, 15, v{vLANE}")
    e(f"s_and_b32 s{sEB}, s2, 7"); e(f"s_mul_i32 s{sEB}, s{sEB}, 18"); e(f"s_lshr_b32 s{sT}, s2, 3"); e(f"s_add_u32 s{sEB}, s{sEB}, s{sT}")
    e(f"s_lshr_b32 s{sCH}, s{sW}, 2"); e(f"s_and_b32 s{sWQ}, s{sW}, 3")
    e(f"s_lshl_b32 s{sD}, s{sEB}, 2"); e(f"s_add_u32 s{sD}, s{sD}, s{sCH}")
    e(f"s_mul_i32 s{sCB}, s{sCH}, {CH}")
    e(f"s_mov_b32 s{sMASK}, 0xffff0000")
    e(f"s_lshl_b32 s{sT}, s{sD}, 8"); e(f"s_lshl_b32 s{sT2}, s{sWQ}, 6"); e(f"s_add_u32 s{sT}, s{sT}, s{sT2}")
    e(f"v_lshlrev_b32 v{T}, 4, v{vG}")
    e(f"v_add_u32 v{T}, s{sT}, v{T}")
    e(f"v_and_b32 v{T+1}, 255, v0")
    e(f"v_lshlrev_b32 v{vY16}, 4, v{T+1}")
    e(f"v_lshlrev_b32 v{vPO}, 4, v0")
    e(f"s_lshl_b32 s{sPB}, s{sEB}, 14")
    e("s_mov_b32 s18, 268435456"); e("s_mov_b32 s19, 0x00020000")
    e("s_mov_b32 s6, 2359296"); e("s_mov_b32 s7, 0x00020000")
    e("s_mov_b32 s14, 2359296"); e("s_mov_b32 s15, 0x00020000")
    e("s_waitcnt lgkmcnt(0)")
    for s_ in range(2):
        for a in range(6):
            p.vmem(f"global_load_dwordx2 {vr((P0, P1)[s_]+2*a,2)}, v{T}, s[{32+2*a}:{33+2*a}] offset:{8*s_}", tag=('par', s_))
    e(f"s_lshl_b32 s{sT}, s{sEB}, 3")
    e(f"s_load_dwordx2 s[56:57], s[44:45], s{sT}")
    e(f"s_load_dwordx2 s[58:59], s[46:47], s{sT}")
    e(f"s_load_dwordx2 s[60:61], s[52:53], s{sT}")
    e("s_mov_b32 s12, s54"); e("s_mov_b32 s13, s55")
    U = ACC
    e(f"s_lshl_b32 s{sT}, s{sD}, 12"); e(f"s_add_u32 s{sT}, s{sT}, {XNT_OFF}")
    p.vmem(f"buffer_load_dwordx4 {vr(U+2,4)}, v{vY16}, s[16:19], s{sT} offen", tag='u')
    e(f"s_sub_u32 s{sT2}, s{sT}, 8")
    p.vmem(f"buffer_load_dwordx2 {vr(U,2)}, v{vY16}, s[16:19], s{sT2} offen", tag='u')
    def pload(sp):
        e(f"s_add_u32 s{sT3}, s{sPB}, {sp*144*16384}")
        p.vmem(f"buffer_load_dwordx4 {vr(plreg(sp),4)}, v{vPO}, s[16:19], s{sT3} offen", tag=('pl', sp))
    nxt = 0
    for sp in range(NUP): pload(sp); nxt += 1
    stamp("issued")
    Z = FR
    for i in range(4): e(f"v_mov_b32 v{Z+i}, 0")
    e(f"v_add_u32 v{vY16}, s{sCB}, v{vY16}")
    e(f"v_cmp_gt_u32 vcc, 24, v{T+1}")
    e("s_and_saveexec_b64 s[62:63], vcc")
    e("s_cbranch_execz K2_Z1")
    for c in range(4): e(f"ds_write_b128 v{vY16}, {vr(Z,4)} offset:{c*UCP}")
    e(f"v_cmp_gt_u32 vcc, 8, v{T+1}")
    e("s_and_b64 exec, exec, vcc")
    e(f"ds_write_b128 v{vY16}, {vr(Z,4)} offset:{KR+4096}")
    p.label("K2_Z1")
    e("s_mov_b64 exec, s[62:63]")
    e(f"v_lshlrev_b32 v{T+2}, 3, v{T+1}")
    e(f"v_sub_u32 v{T+2}, 2047, v{T+2}")
    e(f"v_cvt_f32_u32 v{T+3}, v{T+2}")
    e(f"v_add_u32 v{T+2}, 0x4280, v{T+2}")
    e(f"v_add_u32 v{T+6}, -1, v{T+2}")
    e(f"v_lshl_or_b32 v{T+2}, v{T+6}, 16, v{T+2}")
    e(f"v_cmp_le_u32 vcc, 240, v{T+1}")
    for q in range(4):
        e(f"v_add_f32 v{T+4}, {fhex(-2.0*q)}, v{T+3}")
        e(f"v_add_f32 v{T+5}, {fhex(-2.0*q-1)}, v{T+3}")
        e(f"v_cvt_pk_bf16_f32 v{T+4}, v{T+4}, v{T+5}")
        e(f"v_subrev_u32 v{T+5}, {hex(0x20002*q)}, v{T+2}")
        e(f"v_cndmask_b32 v{GA+q}, v{T+4}, v{T+5}, vcc")
    e(f"s_and_b32 s{sT}, s{sWQ}, 1"); e(f"s_lshl_b32 s{sT}, s{sT}, 4")
    e(f"v_add_u32 v{T+2}, s{sT}, v{vI}")
    e(f"v_lshlrev_b32 v{T+3}, 4, v{vG}")
    e(f"s_cmp_ge_u32 s{sWQ}, 2")
    for r in range(4):
        w = []
        for a in range(2):
            f = [rowc(a, 4*g+r) for g in range(4)]
            f = [b*4+sh for (b, sh) in f]
            w.append((f[0] | f[1] << 16, f[2] | f[3] << 16))
        e(f"s_mov_b32 s64, {hex(w[0][0])}"); e(f"s_cselect_b32 s64, {hex(w[1][0])}, s64")
        e(f"s_mov_b32 s65, {hex(w[0][1])}"); e(f"s_cselect_b32 s65, {hex(w[1][1])}, s65")
        e(f"v_lshrrev_b64 {vr(T+4,2)}, v{T+3}, s[64:65]")
        e(f"v_and_b32 v{T+5}, 3, v{T+4}")
        e(f"v_bfe_u32 v{T+4}, v{T+4}, 2, 10")
        e(f"v_lshlrev_b32 v{T+5}, v{T+5}, v{T+2}")
        if r & 1 == 0: e(f"v_add_u32 v{SA+r//2}, v{T+4}, v{T+5}")
        else:
            e(f"v_add_u32 v{T+4}, v{T+4}, v{T+5}")
            e(f"v_lshl_or_b32 v{SA+r//2}, v{T+4}, 16, v{SA+r//2}")
    HR, HC = T+14, T+15
    e(f"v_lshlrev_b32 v{T+2}, 1, v{vI}"); e(f"v_add_u32 v{T+2}, 240, v{T+2}")
    e(f"v_cmp_gt_u32 vcc, 8, v{vI}")
    e(f"s_mov_b32 s64, {hex(512 | 128 << 16)}"); e(f"s_mov_b32 s65, {hex(1280 | 1536 << 16)}")
    e(f"v_lshlrev_b32 v{T+3}, 4, v{vI}")
    e(f"v_cndmask_b32 v{T+2}, v{T+2}, v{vI}, vcc")
    e(f"v_lshrrev_b64 {vr(T+4,2)}, v{T+3}, s[64:65]")
    e(f"v_cmp_le_u32 vcc, 12, v{vI}")
    e(f"v_and_b32 v{T+4}, 0xffff, v{T+4}")
    e(f"v_lshlrev_b32 v{T+3}, 3, v{vI}")
    e(f"v_cndmask_b32 v{T+2}, v{T+2}, v{T+4}, vcc")
    e(f"v_cvt_f32_u32 v{HC}, v{T+3}")
    e(f"v_cvt_f32_u32 v{HR}, v{T+2}")
    e("s_waitcnt lgkmcnt(0)")
    def pick(dst, pair):
        e(f"s_lshl_b32 s{sT}, s{sCH}, 4")
        e(f"s_lshr_b64 s[64:65], s[{pair}:{pair+1}], s{sT}")
        e(f"s_lshl_b32 s{dst}, s64, 16")
    pick(66, 56); pick(67, 58)
    e(f"v_mov_b32 v{T+2}, {fhex(LOG2E)}"); e(f"v_mul_f32 v{T+2}, s66, v{T+2}"); e(f"v_exp_f32 v{T+2}, v{T+2}"); e("s_nop 0")
    e(f"v_cvt_pk_bf16_f32 v{T+2}, v{T+2}, v{T+2}"); e(f"v_and_b32 v{T+2}, s{sMASK}, v{T+2}")
    e(f"v_log_f32 v{T+3}, v{T+2}")
    e(f"v_mul_f32 v{T+4}, {fhex(LOG2E)}, v{T+2}")
    e(f"v_mul_f32 v{T+5}, {fhex(1/(2*math.pi))}, v{T+2}")
    e(f"v_readfirstlane_b32 s68, v{T+3}"); e(f"v_readfirstlane_b32 s69, v{T+4}"); e(f"v_readfirstlane_b32 s70, v{T+5}")
    p.wait(vm=['u'])
    e(f"v_cmp_eq_u32 vcc, 0, v{T+1}"); e("s_nop 1")
    e(f"v_cndmask_b32 v{U}, v{U}, v{Z}, vcc"); e(f"v_cndmask_b32 v{U+1}, v{U+1}, v{Z}, vcc")
    p.ds(f"ds_write_b128 v{vY16}, {vr(U+2,4)} offset:{3*UCP+384}")
    for i in range(5): e(f"v_alignbit_b32 v{FR+4+i}, v{U+1+i}, v{U+i}, 16")
    for i in range(4): e(f"v_mov_b32 v{FR+10+i}, v{FR+5+i}")
    for i in range(4): e(f"v_mov_b32 v{U+6+i}, v{U+1+i}")
    p.ds(f"ds_write_b128 v{vY16}, {vr(FR+4,4)} offset:{0*UCP+384}")
    p.ds(f"ds_write_b128 v{vY16}, {vr(FR+10,4)} offset:{2*UCP+384}")
    p.ds(f"ds_write_b128 v{vY16}, {vr(U+6,4)} offset:{1*UCP+384}")
    p.wait(lg_all=True)
    stamp("ucopy")
    RA1, RA2, CB1, CB2 = FR, FR+4, FR+8, FR+12
    a2, b2, wr, wi, t0, t1, t2, t3, t4, t5, t6, t7, t8, t9 = range(T, T+14)
    DP = "row_mask:0xf bank_mask:0xf"
    for s_ in range(2):
        PB = (P0, P1)[s_]
        p.wait(vm=[('par', s_)])
        for nn in range(4):
            def unp(dst, arr):
                src = PB + 2*arr + (nn >> 1)
                if nn & 1: e(f"v_and_b32 v{dst}, s{sMASK}, v{src}")
                else: e(f"v_lshlrev_b32 v{dst}, 16, v{src}")
            unp(a2, 0); unp(b2, 1)
            e(f"v_mul_f32 v{a2}, s69, v{a2}"); e(f"v_mul_f32 v{b2}, s70, v{b2}")
            e(f"v_mul_f32 v{t0}, v{a2}, v{HR}"); e(f"v_mul_f32 v{t1}, v{b2}, v{HR}")
            e(f"v_fma_f32 v{t3}, v{a2}, v{HC}, s68"); e(f"v_mul_f32 v{t4}, v{b2}, v{HC}")
            e(f"v_exp_f32 v{t0}, v{t0}"); e(f"v_fract_f32 v{t1}, v{t1}")
            e(f"v_exp_f32 v{t3}, v{t3}"); e(f"v_fract_f32 v{t4}, v{t4}")
            e(f"v_cos_f32 v{t2}, v{t1}"); unp(t6, 2)
            e(f"v_sin_f32 v{t1}, v{t1}"); unp(t7, 3)
            e(f"v_cos_f32 v{t5}, v{t4}"); unp(t8, 4)
            e(f"v_sin_f32 v{t4}, v{t4}"); unp(t9, 5)
            e(f"v_mul_f32 v{t2}, v{t0}, v{t2}")
            e(f"v_mul_f32 v{t1}, v{t0}, v{t1}")
            e(f"v_mul_f32 v{wr}, v{t8}, v{t6}"); e(f"v_mul_f32 v{wi}, v{t8}, v{t7}")
            e(f"v_fma_f32 v{wr}, -v{t9}, v{t7}, v{wr}"); e(f"v_fmac_f32 v{wi}, v{t9}, v{t6}")
            e(f"v_cvt_pk_bf16_f32 v{RA1+nn}, v{t2}, v{t1}")
            e(f"v_mul_f32 v{wr}, v{t3}, v{wr}"); e(f"v_mul_f32 v{wi}, v{t3}, v{wi}")
            e(f"v_mul_f32_dpp v{t6}, v{t2}, v{t2} row_newbcast:12 {DP}")
            e(f"v_mul_f32_dpp v{t7}, v{t1}, v{t2} row_newbcast:12 {DP}")
            e(f"v_mul_f32 v{t8}, v{wr}, v{t5}"); e(f"v_mul_f32 v{t9}, v{wr}, v{t4}")
            e(f"v_fmac_f32_dpp v{t6}, -v{t1}, v{t1} row_newbcast:12 {DP}")
            e(f"v_fmac_f32_dpp v{t7}, v{t2}, v{t1} row_newbcast:12 {DP}")
            e(f"v_fma_f32 v{t8}, -v{wi}, v{t4}, v{t8}"); e(f"v_fmac_f32 v{t9}, v{wi}, v{t5}")
            e(f"v_cvt_pk_bf16_f32 v{RA2+nn}, v{t6}, v{t7}")
            e(f"v_mul_f32_dpp v{t0}, v{t2}, v{t8} row_newbcast:13 {DP}")
            e(f"v_mul_f32_dpp v{t3}, v{t1}, v{t8} row_newbcast:13 {DP}")
            e(f"v_cvt_pk_bf16_f32 v{CB1+nn}, v{t8}, -v{t9}")
            e(f"v_fmac_f32_dpp v{t0}, -v{t1}, v{t9} row_newbcast:13 {DP}")
            e(f"v_fmac_f32_dpp v{t3}, v{t2}, v{t9} row_newbcast:13 {DP}")
            e(f"v_cvt_pk_bf16_f32 v{CB2+nn}, v{t0}, -v{t3}")
            if nxt < 11:
                for _ in range(2):
                    if nxt < 11: pload(nxt); nxt += 1
        for _ in range(3 if s_ == 0 else 2):
            while nxt < 11: pload(nxt); nxt += 1
            pload(nxt); nxt += 1
        for a in range(2):
            for b in range(2):
                d = ACC + 4*(2*a+b)
                c = "0" if s_ == 0 else vr(d, 4)
                e(f"v_mfma_f32_16x16x32_bf16 {vr(d,4)}, {vr((RA1,RA2)[a],4)}, {vr((CB1,CB2)[b],4)}, {c}")
    vTA, vXO = T+12, T+13
    e(f"v_lshrrev_b32 v{t0}, 1, v{vG}"); e(f"v_and_b32 v{t1}, 1, v{vG}")
    e(f"v_lshl_add_u32 v{t0}, v{t0}, 5, v{t1}"); e(f"v_lshl_add_u32 v{t0}, v{vI}, 1, v{t0}")
    e(f"s_lshl_b32 s{sT}, s{sW}, 7"); e(f"v_add_u32 v{vTA}, s{sT}, v{t0}")
    e(f"v_mul_u32_u24 v{vXO}, 1152, v{vTA}")
    e(f"s_lshl_b32 s71, s{sEB}, 3"); e(f"s_add_u32 s72, s71, {64*1152}")
    p.vmem(f"buffer_load_dwordx2 {vr(XR,2)}, v{vXO}, s[4:7], s71 offen", tag='x')
    p.vmem(f"buffer_load_dwordx2 {vr(XR+2,2)}, v{vXO}, s[4:7], s72 offen", tag='x')
    e(f"s_lshl_b32 s{sT}, s{sW}, 12"); e(f"s_add_u32 s{sT}, s{sT}, {SCR}")
    e(f"v_lshlrev_b32 v{t0}, 4, v{vLANE}"); e(f"v_add_u32 v{t1}, s{sT}, v{t0}")
    e(f"s_lshl_b32 s{sT}, s{sCH}, 14"); e(f"s_lshl_b32 s{sT2}, s{sWQ}, 10"); e(f"s_add_u32 s{sT}, s{sT}, s{sT2}"); e(f"s_add_u32 s{sT}, s{sT}, {SCR}")
    e(f"v_add_u32 v{t2}, s{sT}, v{t0}")
    e(f"s_mul_i32 s{sT}, s{sCH}, 1536"); e(f"s_add_u32 s73, s{sT}, {TBL}"); e(f"s_sub_u32 s74, s73, {0x8500}")
    e("s_nop 4")
    for t in range(4): p.ds(f"ds_write_b128 v{t1}, {vr(ACC+4*t,4)} offset:{1024*t}")
    for r in range(4):
        e(f"v_mad_u32_u16 v{t4+r}, v{SA+r//2}, 2, s73 op_sel:[{r&1},0,0,0]")
    e(f"v_cmp_eq_u32 vcc, 0, v{SA}")
    p.lines.pop()
    e(f"v_and_b32 v{t3}, 255, v0"); e(f"v_cmp_eq_u32 vcc, 0, v{t3}")
    e(f"v_mov_b32 v{t3}, s67"); e("s_nop 0"); e(f"v_cndmask_b32 v{t3}, 0, v{t3}, vcc")
    p.wait(lg_all=True)
    stamp("kgen")
    e("s_barrier")
    for q in range(4): p.ds(f"ds_read_b128 {vr(ACC+4*q,4)}, v{t2} offset:{4096*q}", tag=('sq', q))
    GAD = FR
    for k in range(8):
        e(f"v_mad_u32_u16 v{GAD+k}, v{GA+k//2}, 2, s74 op_sel:[{k&1},0,0,0]")
    p.wait(lg=[('sq', 1)])
    e(f"v_add_f32 v{ACC}, v{ACC}, v{t3}")
    for r in range(4): e(f"v_add_f32 v{ACC+r}, v{ACC+r}, v{ACC+4+r}")
    p.wait(lg=[('sq', 3)])
    for r in range(4): e(f"v_add_f32 v{ACC+8+r}, v{ACC+8+r}, v{ACC+12+r}")
    for r in range(4): e(f"v_add_f32 v{ACC+r}, v{ACC+r}, v{ACC+8+r}")
    e(f"v_cvt_pk_bf16_f32 v{ACC+4}, v{ACC}, v{ACC+1}"); e(f"v_cvt_pk_bf16_f32 v{ACC+5}, v{ACC+2}, v{ACC+3}")
    for r in range(4):
        p.ds(f"ds_write_b16{'_d16_hi' if r&1 else ''} v{t4+r}, v{ACC+4+r//2}")
    p.wait(lg_all=True)
    e("s_barrier")
    for k in range(8):
        p.ds(f"ds_read_u16 v{ACC+4+k}, v{GAD+k}")
    SEL1, SEL2, S1, S2 = T, T+4, GA, T+8
    tq = FR+8
    e(f"v_and_b32 v{tq}, 1, v{vI}"); e(f"v_lshlrev_b32 v{tq}, 4, v{tq}"); e(f"v_mov_b32 v{tq+1}, 0x3f80"); e(f"v_lshlrev_b32 v{tq}, v{tq}, v{tq+1}")
    e(f"v_lshrrev_b32 v{tq+1}, 1, v{vI}"); e(f"v_lshlrev_b32 v{tq+2}, 2, v{vG}"); e(f"v_sub_u32 v{tq+1}, v{tq+1}, v{tq+2}")
    for h in range(2):
        for r in range(4):
            e(f"v_cmp_eq_i32 s[{62+2*(r&1)}:{63+2*(r&1)}], {r-8*h}, v{tq+1}")
            if r & 1:
                e("s_nop 0")
                e(f"v_cndmask_b32 v{SEL1+4*h+r-1}, 0, v{tq}, s[62:63]")
                e(f"v_cndmask_b32 v{SEL1+4*h+r}, 0, v{tq}, s[64:65]")
    e("s_lshl_b32 s62, s60, 16"); e(f"s_and_b32 s63, s60, s{sMASK}"); e("s_lshl_b32 s64, s61, 16"); e(f"s_and_b32 s65, s61, s{sMASK}")
    p.wait(lg_all=True)
    for q in range(4): e(f"v_lshl_or_b32 v{ACC+q}, v{ACC+5+2*q}, 16, v{ACC+4+2*q}")
    p.ds(f"ds_write_b128 v{vY16}, {vr(ACC,4)} offset:{KR}")
    for r in range(4):
        e(f"v_mov_b32 v{S1+r}, s{62+r}"); e(f"v_mov_b32 v{S2+r}, s{62+r}")
    vUA, vKA = SA, SA+1
    e(f"v_and_b32 v{tq}, 3, v{vI}"); e(f"v_mul_u32_u24 v{tq}, {UCP}, v{tq}")
    e(f"v_lshrrev_b32 v{tq+1}, 2, v{vI}"); e(f"v_lshl_add_u32 v{tq}, v{tq+1}, 7, v{tq}"); e(f"v_lshl_add_u32 v{tq}, v{vG}, 4, v{tq}")
    e(f"s_lshl_b32 s{sT}, s{sWQ}, 7"); e(f"s_add_u32 s{sT}, s{sT}, s{sCB}")
    e(f"v_add_u32 v{vUA}, s{sT}, v{tq}")
    e(f"v_lshlrev_b32 v{tq}, 4, v{vG}"); e(f"v_lshlrev_b32 v{tq+1}, 3, v{vI}"); e(f"v_sub_u32 v{tq}, v{tq}, v{tq+1}")
    e(f"s_add_u32 s{sT}, s{sT}, {KR + 3704 - 3584}")
    e(f"v_add_u32 v{vKA}, s{sT}, v{tq}")
    stamp("table")
    def psum(sp):
        p.wait(vm=[('pl', sp)])
        e(f"v_mfma_f32_16x16x32_bf16 {vr(S1,4)}, {vr(SEL1,4)}, {vr(plreg(sp),4)}, {vr(S1,4)}")
        e(f"v_mfma_f32_16x16x32_bf16 {vr(S2,4)}, {vr(SEL2,4)}, {vr(plreg(sp),4)}, {vr(S2,4)}")
    for sp in range(11): psum(sp)
    p.wait(lg_all=True)
    stamp("psum1")
    e("s_barrier")
    CA = 52; KF = 84; UF = 116
    e("s_nop 4")
    def kload(rr, dl):
        off = 512*(7-dl) + 64*rr
        p.ds(f"ds_read_b64 {vr(KF+4*dl,2)}, v{vKA} offset:{off}", tag=('k', rr, dl))
        p.ds(f"ds_read_b64 {vr(KF+4*dl+2,2)}, v{vKA} offset:{off+8}", tag=('k', rr, dl))
    seq = [(rr, a) for rr in range(2) for a in (range(8) if rr == 0 else range(7, -1, -1))]
    def uload(idx):
        rr, a = seq[idx]
        p.ds(f"ds_read_b128 {vr(UF+4*(idx%3),4)}, v{vUA} offset:{512*a+64*rr}", tag=('uf', idx))
    uload(0)
    for dl in range(8): kload(0, dl)
    uload(1)
    first = set()
    def kslot(rr, dl): return KF + 4*(dl if rr == 0 else 7-dl)
    def kload1(dl):
        off = 512*(7-dl) + 64
        p.ds(f"ds_read_b64 {vr(kslot(1,dl),2)}, v{vKA} offset:{off}", tag=('k', 1, dl))
        p.ds(f"ds_read_b64 {vr(kslot(1,dl)+2,2)}, v{vKA} offset:{off+8}", tag=('k', 1, dl))
    for idx, (rr, a) in enumerate(seq):
        if idx + 2 < 16: uload(idx + 2)
        if rr == 0 and a >= 2: kload1(a - 2)
        if rr == 1 and a >= 6: kload1(6 + 7 - a)
        dls = list(range(0, 8 - a))
        for dl in dls:
            p.wait(lg=[('uf', idx), ('k', rr, dl)])
            ct = a + dl
            c = vr(CA+4*ct, 4) if ct in first else "0"
            first.add(ct)
            e(f"v_mfma_f32_16x16x32_bf16 {vr(CA+4*ct,4)}, {vr(UF+4*(idx%3),4)}, {vr(kslot(rr,dl),4)}, {c}")
    stamp("conv")
    e(f"s_lshl_b32 s{sT}, s{sW}, 13")
    e(f"v_lshlrev_b32 v{vUA}, 4, v{vLANE}"); e(f"v_add_u32 v{vUA}, s{sT}, v{vUA}")
    e(f"v_lshlrev_b32 v{vKA}, 2, v{vTA}"); e(f"v_add_u32 v{vY16}, 0x10000, v{vKA}")
    e("s_barrier")
    e("s_nop 4")
    for ct in range(8): p.ds(f"ds_write_b128 v{vUA}, {vr(CA+4*ct,4)} offset:{1024*ct}")
    for sp in range(11, 16): psum(sp)
    p.wait(lg_all=True)
    e("s_barrier")
    RD = 84
    for q in range(16):
        p.ds(f"ds_read2st64_b32 {vr(RD+2*q,2)}, v{(vKA, vY16)[q>>3]} offset0:{32*(q&7)} offset1:{32*(q&7)+1}", tag=('rd', q))
    p.wait(vm=['x'])
    XU = 52
    for h in range(2):
        for c in range(4):
            src = XR + 2*h + (c >> 1)
            if c & 1: e(f"v_and_b32 v{XU+4*h+c}, s{sMASK}, v{src}")
            else: e(f"v_lshlrev_b32 v{XU+4*h+c}, 16, v{src}")
    e("s_nop 3")
    for h in range(2):
        for c in range(4): e(f"v_add_f32 v{XU+4*h+c}, v{XU+4*h+c}, v{(S1,S2)[h]+c}")
    for c in range(4):
        p.wait(lg=[('rd', 4*c+3)])
        for h in range(2):
            b = RD + 8*c + h
            e(f"v_add_f32 v{b}, v{b}, v{b+2}"); e(f"v_add_f32 v{b+4}, v{b+4}, v{b+6}")
        for h in range(2):
            b = RD + 8*c + h
            e(f"v_add_f32 v{b}, v{b}, v{b+4}")
        for h in range(2):
            e(f"v_add_f32 v{XU+4*h+c}, v{XU+4*h+c}, v{RD+8*c+h}")
    for h in range(2):
        for q in range(2): e(f"v_cvt_pk_bf16_f32 v{XU+8+2*h+q}, v{XU+4*h+2*q}, v{XU+4*h+2*q+1}")
    e(f"buffer_store_dwordx2 {vr(XU+8,2)}, v{vXO}, s[12:15], s71 offen")
    e(f"buffer_store_dwordx2 {vr(XU+10,2)}, v{vXO}, s[12:15], s72 offen")
    stamp("end")
    if DIAG:
        e("s_waitcnt lgkmcnt(0)")
        e(f"s_lshl_b32 s{sT}, s2, 4"); e(f"s_add_u32 s{sT}, s{sT}, s{sW}"); e(f"s_lshl_b32 s{sT}, s{sT}, 8"); e(f"s_add_u32 s{sT}, s{sT}, 0x4400000")
        e("v_mov_b32 v1, 0")
        for i in range(len(stamps)):
            e(f"s_sub_u32 s{sT2}, s{76+2*i}, s76"); e(f"v_mov_b32 v2, s{sT2}")
            e(f"buffer_store_dword v2, v1, s[16:19], s{sT} offen offset:{4*i}")
        open("stamps2.txt", "w").write(" ".join(stamps))
    p.label("K2_END")
    e("s_endpgm")
    return p.text()
```

```python
import sys, importlib
sys.path.insert(0, "gen")
import k1
NAME = "parallel_sum__ssm_conv_s4__dense_activation_gelu__prompt"
hdr = open(f"cdna_kernels/{NAME}.s.ref").read().split("; Override launch")[0]
def kd(name, vgpr, sgpr=102):
    return f""".section .rodata,"a"
.p2align 6
.amdhsa_kernel {name}
  .amdhsa_next_free_vgpr {vgpr}
  .amdhsa_next_free_sgpr {sgpr}
  .amdhsa_accum_offset {(vgpr+3)//4*4}
  .amdhsa_group_segment_fixed_size 0
  .amdhsa_kernarg_size 136
  .amdhsa_user_sgpr_count 2
  .amdhsa_user_sgpr_kernarg_segment_ptr 1
  .amdhsa_system_sgpr_workgroup_id_x 1
  .amdhsa_float_denorm_mode_32 3
.end_amdhsa_kernel
"""
def build(only=None):
    out = hdr
    launches = []
    body = '.amdgcn_target "amdgcn-amd-amdhsa--gfx950"\n.text\n'
    kds = ""
    ks = [("mlp_kernel", k1, "grid=(256,1,1) block=(512,1,1) lds=163840", 256)]
    try:
        import os; k2 = importlib.import_module(os.environ.get("K2MOD", "k2"))
        ks.append(("ssm_kernel", k2, k2.LAUNCH, k2.VGPRS))
    except ImportError:
        pass
    for name, mod, launch, vg in ks:
        if only and name not in only: continue
        out += f"; @launch kernel={name} {launch}\n"
        body += f".globl {name}\n.p2align 8\n.type {name},@function\n{name}:\n" + mod.gen()
        kds += kd(name, vg)
    import os
    endl = "K2_END" if (os.environ.get("CE", "0") == "1" and not only) else "K1_END"
    body = body.replace("K1_CODE_LINES", f"(({endl} - mlp_kernel - 1024) / 128)")
    body = body.replace("K2_CODE_LINES", "((K2_END - ssm_kernel - 128) / 128)")
    return out + body + kds
if __name__ == "__main__":
    dst = sys.argv[1] if len(sys.argv) > 1 else f"cdna_kernels/{NAME}.s"
    only = sys.argv[2].split(",") if len(sys.argv) > 2 else None
    open(dst, "w").write(build(only))
```

```python
from asmlib import *
import math, os
DIAG = int(os.environ.get("DIAG", "0")); PRO = int(os.environ.get("PRO", "0"))
NODMA = int(os.environ.get("NODMA", "0")); NOREAD = int(os.environ.get("NOREAD", "0")); NOST = int(os.environ.get("NOST", "0"))
NOBAR = int(os.environ.get("NOBAR", "0")); NOBG = int(os.environ.get("NOBG", "0"))
PRIO = int(os.environ.get("PRIO", "0")); FRONT = int(os.environ.get("FRONT", "1")); MAP = 1
RA = int(os.environ.get("RA", "4"))

PART_OFF = 0
X4_OFF = 37748736
XNT_OFF = 40108032
W1T = int(os.environ.get("W1T", "2")); W2T = int(os.environ.get("W2T", "1"))
RING = 0; PREG = 98304; STAT = 155648; RCT = 157696; BIAS = 158720
SX, SW1, SW2, SWS, SB1 = 4, 8, 12, 16, 20
sW, sH, sQI, sFJ, sMI = 24, 25, 26, 27, 28
sRP1, sRP1X, sRP8, sRP8X, sRP2, sRP2K0, sRP2X, sM0W, sM0X, sT = 29, 30, 31, 32, 33, 34, 35, 36, 37, 38
sT2, sXS, sXM, sT3, sONE, sMASK, sT4, sT5, sAL = 39, 40, 41, 42, 43, 44, 45, 46, 47
sRP1H, sRP8H, sM0H = 48, 49, 50
vLANE, vG, vI = 1, 2, 3
vA = {}
n = 4
for own in (0, 1):
    for hi in (0, 1):
        vA[('n', own, hi)] = n; n += 1
vA['8'] = 8
for t in (0, 1):
    for hi in (0, 1):
        vA[('p', t, hi)] = 9 + 2*t + hi
vOW1, vOW8, vOW2 = 13, 14, 15
vPW, vPR, vBI, vBI8, vOO, vXR, vR, vC, v8R, vP8 = 16, 17, 18, 19, 20, 21, 22, 23, 24, 25
vXT = 26
TMP = 34
WF = 50
NWF = 5
vROW, vXTA = 70, 71
SB = 72; SC = 88; SA = 96
QB = 112
def Q(slot): return QB + slot * 4
C0 = -2.0 * 0.7978845608028654 * math.log2(math.e)
C1 = C0 * 0.044715
ALPHA = (-C1) ** (1.0 / 3.0)
CA = -C0 / ALPHA

def gen():
    p = Prog()
    e = p.emit
    stamps = []
    def stamp(name):
        if DIAG and len(stamps) < 22:
            e(f"s_memtime s[{56+2*len(stamps)}:{57+2*len(stamps)}]")
            stamps.append(name)
    T = [TMP + i for i in range(16)]
    e("s_cmp_ge_u32 s2, 256")
    e("s_cbranch_scc1 K1_END")
    stamp("start")
    e("s_load_dwordx2 s[4:5], s[0:1], 0")
    e("s_load_dwordx4 s[48:51], s[0:1], 80")
    e("s_load_dwordx2 s[12:13], s[0:1], 96")
    e("s_load_dwordx2 s[16:17], s[0:1], 128")
    e(f"v_lshrrev_b32 v{T[0]}, 6, v0")
    e(f"v_and_b32 v{vLANE}, 63, v0")
    e(f"v_readfirstlane_b32 s{sW}, v{T[0]}")
    e(f"v_lshrrev_b32 v{vG}, 4, v{vLANE}")
    e(f"v_and_b32 v{vI}, 15, v{vLANE}")
    nb = 1 + MAP
    e("s_and_b32 s3, s2, 7")
    e(f"s_lshr_b32 s{sMI}, s2, 3")
    e(f"s_and_b32 s{sFJ}, s{sMI}, {(1<<nb)-1}")
    e(f"s_lshr_b32 s{sT}, s3, {MAP}")
    e(f"s_lshl_b32 s{sT}, s{sT}, {nb}")
    e(f"s_add_u32 s{sFJ}, s{sFJ}, s{sT}")
    e(f"s_lshr_b32 s{sMI}, s{sMI}, {nb}")
    e(f"s_and_b32 s3, s3, {(1<<MAP)-1}")
    e(f"s_lshl_b32 s3, s3, {4-MAP}")
    e(f"s_add_u32 s{sMI}, s{sMI}, s3")
    e(f"s_lshr_b32 s{sH}, s{sW}, 2")
    e(f"s_and_b32 s{sQI}, s{sW}, 3")
    e(f"s_mov_b32 s{sONE}, 0x3f803f80")
    e(f"s_mov_b32 s{sMASK}, 0xffff0000")
    e(f"s_mov_b32 s{sAL}, {fhex(ALPHA)}")
    e(f"v_lshrrev_b32 v{T[2]}, 3, v{vLANE}")
    e(f"v_and_b32 v{T[3]}, 7, v{vLANE}")
    e(f"v_xor_b32 v{T[4]}, v{vG}, v{T[3]}")
    e(f"v_mul_u32_u24 v{T[5]}, 2304, v{T[2]}")
    e(f"v_lshl_add_u32 v{T[0]}, v{T[4]}, 4, v{T[5]}")
    e(f"v_xor_b32 v{T[1]}, 64, v{T[0]}")
    e(f"s_lshl_b32 s{sXS}, s{sMI}, 7")
    e(f"s_lshr_b32 s{sT}, s{sW}, 1"); e(f"s_lshl_b32 s{sT}, s{sT}, 5"); e(f"s_add_u32 s{sXS}, s{sXS}, s{sT}")
    e(f"s_and_b32 s{sT}, s{sW}, 1"); e(f"s_add_u32 s{sXS}, s{sXS}, s{sT}")
    e(f"s_mul_i32 s{sXS}, s{sXS}, 1152")
    e(f"s_lshl_b32 s{sXM}, s{sW}, 11")
    e(f"v_min_u32 v{T[9]}, 287, v0")
    e(f"v_lshlrev_b32 v{T[9]}, 7, v{T[9]}")
    e(f"s_and_b32 s{sT4}, s{sFJ}, 3"); e(f"s_mul_i32 s{sT4}, s{sT4}, {288*128}")
    e(f"s_mul_i32 s{sT5}, s{sMI}, {128*1152}"); e(f"s_add_u32 s{sT4}, s{sT4}, s{sT5}")
    e(f"s_getpc_b64 s[52:53]")
    e(f"v_subrev_u32 v{T[10]}, 320, v0")
    e(f"v_min_u32 v{T[10]}, K1_CODE_LINES, v{T[10]}")
    e(f"v_lshlrev_b32 v{T[10]}, 7, v{T[10]}")
    e("s_waitcnt lgkmcnt(0)")
    if PRO: stamp("karg")
    e("s_mov_b32 s6, 2359296"); e("s_mov_b32 s7, 0x00020000")
    e("s_mov_b32 s8, s48"); e("s_mov_b32 s9, s49"); e("s_mov_b32 s10, 5308416"); e("s_mov_b32 s11, 0x00020000")
    e("s_mov_b32 s14, 5308416"); e("s_mov_b32 s15, 0x00020000")
    e("s_mov_b32 s18, 268435456"); e("s_mov_b32 s19, 0x00020000")
    e("s_mov_b32 s20, s50"); e("s_mov_b32 s21, s51"); e("s_mov_b32 s22, 9216"); e("s_mov_b32 s23, 0x00020000")
    Lc = p.newlabel("K1_PF"); Ld = p.newlabel("K1_PF")
    e(f"s_cmp_ge_u32 s{sW}, 5"); e(f"s_cbranch_scc1 {Lc}")
    p.vmem(f"buffer_load_dword v{T[8]}, v{T[9]}, s[{SX}:{SX+3}], s{sT4} offen", tag='pf')
    e(f"s_branch {Ld}")
    p.label(Lc)
    e(f"global_load_dword v{T[8]}, v{T[10]}, s[52:53]")
    p.label(Ld)
    def xdma(c):
        for nn in range(2):
            e(f"s_add_u32 m0, s{sXM}, {16384*c + 1024*nn}")
            e(f"s_add_u32 s{sT}, s{sXS}, {128*c + nn*16*1152}")
            p.vmem(f"buffer_load_dwordx4 v{T[nn]}, s[{SX}:{SX+3}], s{sT} offen lds", tag=('x', c))
    e("s_setprio 3")
    for c in range(3): xdma(c)
    e("s_setprio 0")
    e(f"s_and_b32 s{sT2}, s{sFJ}, 1")
    e(f"s_mul_i32 s{sT3}, s{sFJ}, 576")
    e(f"s_add_u32 s{sT5}, s{sQI}, 8")
    e(f"s_mul_i32 s{sRP1}, s{sW}, {8*9216}"); e(f"s_mul_i32 s{sRP1X}, s{sT5}, {8*9216}")
    e(f"s_lshl_b32 s{sT4}, s{sT2}, 6"); e(f"s_add_u32 s{sT4}, s{sT4}, s{sT3}")
    e(f"s_lshl_b32 s{sT}, s{sT2}, 9"); e(f"s_sub_u32 s{sT}, 512, s{sT}"); e(f"s_add_u32 s{sT}, s{sT}, s{sT3}")
    e(f"s_add_u32 s{sRP8}, s{sRP1}, s{sT}"); e(f"s_add_u32 s{sRP8X}, s{sRP1X}, s{sT}")
    e(f"s_add_u32 s{sRP1}, s{sRP1}, s{sT4}"); e(f"s_add_u32 s{sRP1X}, s{sRP1X}, s{sT4}")
    e(f"s_mul_i32 s{sT}, s{sH}, {96*9216}"); e(f"s_add_u32 s{sRP1H}, s{sRP1X}, s{sT}")
    e(f"s_mul_i32 s{sT}, s{sH}, {192*9216}"); e(f"s_add_u32 s{sRP8H}, s{sRP8X}, s{sT}")
    def rowperm(dst, nreg, tmp):
        e(f"s_lshr_b32 s{dst}, s{nreg}, 2"); e(f"s_lshl_b32 s{dst}, s{dst}, 5")
        e(f"s_and_b32 s{tmp}, s{nreg}, 1"); e(f"s_lshl_b32 s{tmp}, s{tmp}, 4"); e(f"s_add_u32 s{dst}, s{dst}, s{tmp}")
        e(f"s_and_b32 s{tmp}, s{nreg}, 2"); e(f"s_lshl_b32 s{tmp}, s{tmp}, 2"); e(f"s_add_u32 s{dst}, s{dst}, s{tmp}")
    rowperm(sRP2, sW, sT4); rowperm(sRP2X, sT5, sT4)
    e(f"s_mul_i32 s{sT}, s{sFJ}, 288"); e(f"s_lshl_b32 s{sT4}, s{sT2}, 5"); e(f"s_add_u32 s{sT}, s{sT}, s{sT4}"); e(f"s_sub_u32 s{sT}, s{sT}, 32")
    e(f"s_add_u32 s{sRP2}, s{sRP2}, s{sT}"); e(f"s_add_u32 s{sRP2X}, s{sRP2X}, s{sT}")
    e(f"s_or_b32 s{sT4}, s{sT2}, s{sH}"); e(f"s_cmp_eq_u32 s{sT4}, 0"); e(f"s_cselect_b32 s{sT4}, 288, 0")
    e(f"s_add_u32 s{sRP2K0}, s{sRP2}, s{sT4}")
    e(f"s_mul_i32 s{sRP2}, s{sRP2}, 1152"); e(f"s_mul_i32 s{sRP2X}, s{sRP2X}, 1152"); e(f"s_mul_i32 s{sRP2K0}, s{sRP2K0}, 1152")
    e(f"s_lshl_b32 s{sM0W}, s{sW}, 10"); e(f"s_lshl_b32 s{sM0X}, s{sT5}, 10")
    e(f"s_mul_i32 s{sT}, s{sH}, 12288"); e(f"s_add_u32 s{sM0H}, s{sM0X}, s{sT}")
    e("s_setprio 2")
    for c in range(3, 6): xdma(c)
    e("s_setprio 0")
    e(f"v_and_b32 v{T[4]}, 1, v{vG}")
    e(f"v_lshlrev_b32 v{T[4]}, 2, v{T[4]}")
    e(f"v_xor_b32 v{T[4]}, v{T[4]}, v{T[3]}")
    e(f"v_mul_u32_u24 v{T[10]}, 9216, v{T[2]}")
    e(f"v_lshl_add_u32 v{vOW1}, v{T[4]}, 4, v{T[10]}")
    e(f"v_lshrrev_b32 v{T[11]}, 2, v{T[4]}")
    e(f"v_mul_u32_u24 v{T[11]}, {96*9216}, v{T[11]}")
    e(f"v_and_b32 v{T[4]}, 3, v{T[4]}")
    e(f"v_lshlrev_b32 v{T[4]}, 4, v{T[4]}")
    e(f"v_add3_u32 v{vOW8}, v{T[4]}, v{T[10]}, v{T[11]}")
    e(f"v_lshlrev_b32 v{T[4]}, 1, v{vG}")
    e(f"v_xor_b32 v{T[4]}, v{T[4]}, v{T[3]}")
    e(f"v_mul_u32_u24 v{T[10]}, 1152, v{T[2]}")
    e(f"v_lshl_add_u32 v{vOW2}, v{T[4]}, 4, v{T[10]}")
    e(f"v_lshrrev_b32 v{T[4]}, 2, v{vI}")
    e(f"v_and_b32 v{T[10]}, 3, v{vLANE}")
    e(f"v_lshlrev_b32 v{T[10]}, 3, v{T[10]}")
    e(f"v_lshrrev_b32 v{T[5]}, 1, v{vG}")
    e(f"v_lshl_add_u32 v{T[9]}, v{T[5]}, 3, v{T[4]}")
    e(f"v_lshl_add_u32 v{T[9]}, v{T[9]}, 7, v{T[10]}")
    e(f"v_lshrrev_b32 v{T[11]}, 1, v{T[4]}")
    e(f"v_xor_b32 v{T[11]}, s{sH}, v{T[11]}")
    e(f"v_lshl_add_u32 v{T[9]}, v{T[11]}, 6, v{T[9]}")
    e(f"v_and_b32 v{T[11]}, 1, v{vG}")
    e(f"v_lshl_add_u32 v{vA['8']}, v{T[11]}, 5, v{T[9]}")
    e(f"s_mul_i32 s{sT4}, s{sH}, 12288"); e(f"s_sub_u32 s{sT5}, 12288, s{sT4}")
    e(f"v_add_u32 v{vA[('n',0,0)]}, s{sT4}, v{vA['8']}"); e(f"v_add_u32 v{vA[('n',1,0)]}, s{sT5}, v{vA['8']}")
    e(f"v_add_u32 v{vA[('n',0,1)]}, 49152, v{vA[('n',0,0)]}"); e(f"v_add_u32 v{vA[('n',1,1)]}, 49152, v{vA[('n',1,0)]}")
    e(f"v_lshl_add_u32 v{T[9]}, v{vG}, 2, v{T[4]}")
    e(f"v_lshl_add_u32 v{T[10]}, v{T[9]}, 7, v{T[10]}")
    e(f"v_bfe_u32 v{T[9]}, v{T[9]}, 1, 2")
    e(f"s_lshl_b32 s{sT}, s{sH}, 1")
    e(f"v_xor_b32 v{T[9]}, s{sT}, v{T[9]}")
    e(f"v_lshl_add_u32 v{vA[('p',0,0)]}, v{T[9]}, 5, v{T[10]}")
    e(f"v_xor_b32 v{vA[('p',1,0)]}, 32, v{vA[('p',0,0)]}")
    for t in (0, 1): e(f"v_add_u32 v{vA[('p',t,1)]}, 49152, v{vA[('p',t,0)]}")
    e(f"s_lshl_b32 s{sT}, s{sQI}, 11"); e(f"s_add_u32 s{sT}, s{sT}, {PREG}")
    e(f"v_lshlrev_b32 v{T[11]}, 4, v{vLANE}")
    e(f"v_add_u32 v{T[11]}, s{sT}, v{T[11]}")
    e(f"s_lshl_b32 s{sT4}, s{sH}, 13"); e(f"v_add_u32 v{vPW}, s{sT4}, v{T[11]}")
    e(f"v_xor_b32 v{vXR}, 8192, v{vPW}")
    e(f"s_lshl_b32 s{sT4}, s{sH}, 10"); e(f"v_add_u32 v{vP8}, s{sT4}, v{T[11]}")
    e(f"s_lshl_b32 s{sT4}, s{sH}, 14"); e(f"v_add_u32 v{v8R}, s{sT4}, v{T[11]}")
    e(f"v_lshlrev_b32 v{T[9]}, 9, v{vG}")
    e(f"v_lshl_add_u32 v{T[9]}, v{vI}, 4, v{T[9]}")
    e(f"v_add_u32 v{vPR}, s{sT}, v{T[9]}")
    e(f"v_lshlrev_b32 v{T[9]}, 4, v{T[5]}")
    e(f"v_add_u32 v{vBI8}, {BIAS}, v{T[9]}")
    e(f"s_lshl_b32 s{sT4}, s{sH}, 7"); e(f"v_add_u32 v{vBI}, s{sT4}, v{vBI8}")
    e(f"s_mul_i32 s{sT}, s{sFJ}, 144"); e(f"s_lshl_b32 s{sT4}, s{sH}, 3"); e(f"s_add_u32 s{sT}, s{sT}, s{sT4}")
    e(f"s_lshl_b32 s{sT}, s{sT}, 14")
    e(f"s_lshl_b32 s{sT4}, s{sMI}, 10"); e(f"s_add_u32 s{sT}, s{sT}, s{sT4}")
    e(f"s_lshl_b32 s{sT4}, s{sQI}, 8"); e(f"s_add_u32 s{sT}, s{sT}, s{sT4}")
    e(f"v_lshlrev_b32 v{vOO}, 14, v{vG}")
    e(f"v_lshl_add_u32 v{vOO}, v{vI}, 4, v{vOO}")
    e(f"v_add_u32 v{vOO}, s{sT}, v{vOO}")
    e("s_setprio 1")
    for c in range(6, 9): xdma(c)
    e("s_setprio 0")
    if PRO: stamp("xissued")
    e(f"v_cmp_gt_u32 vcc, 32, v0")
    e(f"v_mov_b32 v{T[6]}, -32")
    e(f"v_mov_b32 v{T[7]}, 256")
    e(f"v_cndmask_b32 v{T[6]}, v{T[6]}, v{T[7]}, vcc")
    e(f"s_sub_u32 s{sT4}, s{sT2}, 1")
    e(f"v_and_b32 v{T[6]}, s{sT4}, v{T[6]}")
    e(f"v_add_u32 v{T[6]}, v{T[6]}, v0")
    e(f"v_min_u32 v{T[6]}, 287, v{T[6]}")
    e(f"v_lshlrev_b32 v{T[6]}, 1, v{T[6]}")
    p.vmem(f"buffer_load_ushort v{T[7]}, v{T[6]}, s[{SB1}:{SB1+3}], s{sT3} offen", tag='bias')
    e(f"v_min_u32 v{T[9]}, 359, v0")
    e(f"v_mul_u32_u24 v{T[10]}, 205, v{T[9]}")
    e(f"v_lshrrev_b32 v{T[10]}, 10, v{T[10]}")
    e(f"v_mul_u32_u24 v{T[11]}, 5, v{T[10]}")
    e(f"v_sub_u32 v{T[9]}, v{T[9]}, v{T[11]}")
    e(f"v_mul_u32_u24 v{T[10]}, 9216, v{T[10]}")
    e(f"v_lshl_add_u32 v{T[9]}, v{T[9]}, 7, v{T[10]}")
    e(f"s_and_b32 s{sT5}, s{sMI}, 7")
    e(f"s_mul_i32 s{sT}, s{sT5}, {72*9216}")
    e(f"s_and_b32 s{sT4}, s{sT3}, 0xffffff80")
    e(f"s_add_u32 s{sT}, s{sT}, s{sT4}")
    if W1T == 1: p.vmem(f"buffer_load_dword v{T[8]}, v{T[9]}, s[{SW1}:{SW1+3}], s{sT} offen", tag='pf')
    def w2_touch(wv):
        L = p.newlabel("K1_T")
        e(f"s_cmp_eq_u32 s{sW}, {wv}")
        e(f"s_cbranch_scc0 {L}")
        e(f"v_min_u32 v{vXTA}, 323, v0")
        e(f"v_lshlrev_b32 v{vXTA}, 7, v{vXTA}")
        e(f"s_and_b32 s{sT5}, s{sMI}, 7")
        e(f"s_mul_i32 s{sT}, s{sFJ}, {288*1152}")
        e(f"s_mul_i32 s{sT4}, s{sT5}, {324*128}")
        e(f"s_add_u32 s{sT}, s{sT}, s{sT4}")
        p.vmem(f"buffer_load_dword v{vROW}, v{vXTA}, s[{SW2}:{SW2+3}], s{sT} offen", maybe=True)
        p.label(L)
    def w1_touch(wv):
        L = p.newlabel("K1_T")
        e(f"s_cmp_eq_u32 s{sW}, {wv}")
        e(f"s_cbranch_scc0 {L}")
        e(f"v_min_u32 v{vXTA}, 359, v0")
        e(f"v_mul_u32_u24 v{vROW}, 205, v{vXTA}")
        e(f"v_lshrrev_b32 v{vROW}, 10, v{vROW}")
        e(f"v_lshlrev_b32 v{vXTA}, 7, v{vXTA}")
        e(f"v_mul_u32_u24 v{vROW}, {9216-640}, v{vROW}")
        e(f"v_add_u32 v{vXTA}, v{vXTA}, v{vROW}")
        e(f"s_and_b32 s{sT5}, s{sMI}, 7")
        e(f"s_mul_i32 s{sT}, s{sT5}, {72*9216}")
        e(f"s_and_b32 s{sT4}, s{sT3}, 0xffffff80")
        e(f"s_add_u32 s{sT}, s{sT}, s{sT4}")
        p.vmem(f"buffer_load_dword v{vROW}, v{vXTA}, s[{SW1}:{SW1+3}], s{sT} offen", maybe=True)
        p.label(L)
    e(f"v_bfe_u32 v{T[12]}, v{vLANE}, 1, 3")
    e(f"v_xor_b32 v{T[12]}, s{sW}, v{T[12]}")
    e(f"v_lshlrev_b32 v{T[12]}, 4, v{T[12]}")
    e(f"v_lshl_add_u32 v{T[12]}, v{vI}, 7, v{T[12]}")
    e(f"v_lshl_add_u32 v{T[12]}, v{vG}, 12, v{T[12]}")
    e(f"s_sub_u32 s51, s{sFJ}, 7")
    e(f"s_lshl_b32 s{sT}, s51, 14")
    e(f"v_add_u32 v{T[12]}, s{sT}, v{T[12]}")
    e(f"v_add_u32 v{T[13]}, 8, v{T[12]}")
    e(f"v_lshlrev_b32 v{T[14]}, 4, v{vLANE}")
    e(f"s_lshl_b32 s52, s51, 18"); e(f"s_lshl_b32 s{sT}, s{sW}, 15"); e(f"s_add_u32 s52, s52, s{sT}")
    e(f"s_lshl_b32 s{sT}, s{sMI}, 10"); e(f"s_add_u32 s52, s52, s{sT}"); e(f"s_add_u32 s52, s52, {X4_OFF}")
    e(f"s_add_u32 s53, s52, 16384")
    def w2_prefetch():
        e(f"v_min_u32 v{T[9]}, 323, v0")
        e(f"v_lshlrev_b32 v{T[9]}, 7, v{T[9]}")
        e(f"s_and_b32 s{sT5}, s{sMI}, 7")
        e(f"s_mul_i32 s{sT}, s{sFJ}, {288*1152}")
        e(f"s_mul_i32 s{sT4}, s{sT5}, {324*128}")
        e(f"s_add_u32 s{sT}, s{sT}, s{sT4}")
        p.vmem(f"buffer_load_dword v{T[8]}, v{T[9]}, s[{SW2}:{SW2+3}], s{sT} offen", tag='pf')
    XA = lambda j: SA + j
    e(f"v_and_b32 v{T[10]}, 31, v{vLANE}")
    e(f"v_bfe_u32 v{T[9]}, v{vLANE}, 1, 3")
    e(f"v_xor_b32 v{T[9]}, v{T[9]}, v{T[5]}")
    e(f"s_lshl_b32 s{sT}, s{sQI}, 5")
    e(f"v_add_u32 v{vROW}, s{sT}, v{T[10]}")
    e(f"v_lshlrev_b32 v{T[10]}, 7, v{vROW}")
    for j in range(6):
        e(f"s_mul_i32 s{sT}, s{sH}, 6"); e(f"s_add_u32 s{sT}, s{sT}, {j}")
        e(f"s_and_b32 s{sT4}, s{sT}, 3"); e(f"s_lshl_b32 s{sT4}, s{sT4}, 1")
        e(f"s_lshr_b32 s{sT}, s{sT}, 2"); e(f"s_lshl_b32 s{sT}, s{sT}, 14")
        e(f"v_xor_b32 v{T[11]}, s{sT4}, v{T[9]}")
        e(f"v_lshl_add_u32 v{T[11]}, v{T[11]}, 4, v{T[10]}")
        e(f"v_add_u32 v{XA(j)}, s{sT}, v{T[11]}")
    e(f"v_lshrrev_b32 v{T[9]}, 1, v{T[4]}")
    e(f"v_lshl_add_u32 v{T[9]}, v{vG}, 2, v{T[9]}")
    e(f"v_and_b32 v{T[10]}, 1, v{T[4]}")
    e(f"v_lshl_add_u32 v{T[9]}, v{T[10]}, 4, v{T[9]}")
    e(f"v_bfe_u32 v{T[10]}, v{vLANE}, 1, 1")
    e(f"s_and_b32 s{sT}, s{sW}, 6")
    e(f"v_or_b32 v{T[10]}, s{sT}, v{T[10]}")
    e(f"v_lshlrev_b32 v{T[11]}, 1, v{vG}")
    e(f"v_xor_b32 v{T[10]}, v{T[10]}, v{T[11]}")
    e(f"v_lshlrev_b32 v{T[9]}, 7, v{T[9]}")
    e(f"v_and_b32 v{T[11]}, 1, v{vLANE}")
    e(f"v_lshl_add_u32 v{T[9]}, v{T[11]}, 3, v{T[9]}")
    e(f"s_and_b32 s{sT}, s{sW}, 1"); e(f"s_lshl_b32 s{sT}, s{sT}, 13")
    e(f"s_lshl_b32 s{sT4}, s{sFJ}, 14"); e(f"s_add_u32 s{sT}, s{sT}, s{sT4}")
    e(f"v_add_u32 v{T[9]}, s{sT}, v{T[9]}")
    e(f"v_lshl_add_u32 v{vXTA}, v{T[10]}, 4, v{T[9]}")
    vXTB = SA + 6
    e(f"v_xor_b32 v{vXTB}, 16, v{vXTA}")
    ACC = [SA + 8, SA + 9, SA + 10]
    for a in ACC: e(f"v_mov_b32 v{a}, 0")
    for i in range(4): e(f"v_mov_b32 v{WF+i}, s{sONE}")

    D = [(('B', 0, 0), ('B', 0, 1)), (('8', 0), ('8', 1)), (('B', 0, 2), ('B', 0, 3)), (('B', 0, 4), ('B', 0, 5)), (('8', 2), None)]
    for tau in (1, 2, 3):
        for k in range(3): D.append((('B', tau, 2*k), ('B', tau, 2*k+1)))
    p2 = [('E', 0, 0), ('E', 0, 1), ('E', 1, 0), ('E', 1, 1), ('E', 0, 2), ('E', 1, 2)]
    for j in range(2, 9): p2 += [('E', j, k) for k in range(3)]
    for i in range(0, len(p2), 2): D.append((p2[i], p2[i+1] if i + 1 < len(p2) else None))
    uloc = {}
    for k, (a, b) in enumerate(D):
        uloc[a] = (k, 0)
        if b: uloc[b] = (k, 1)
    def uparams(u):
        if u[0] == 'B': return SW1, vOW1, 96 * u[2] * 9216 + 128 * u[1], sRP1, sRP1X, sRP1H
        if u[0] == '8': return SW1, vOW8, 192 * u[1] * 9216, sRP8, sRP8X, sRP8H
        return SW2, vOW2, 96 * u[2] * 1152 + 128 * u[1], (sRP2K0 if u[2] == 0 else sRP2), sRP2X, None
    def dma_double(k):
        ops = []
        lds0 = (k % 4) * 24576
        def one(m0r, m0i, sr_, base, srd, vo, maybe=False):
            e(f"s_add_u32 m0, s{m0r}, {m0i}")
            e(f"s_add_u32 s{sT}, s{sr_}, {base}")
            p.vmem(f"buffer_load_dwordx4 v{vo}, s[{srd}:{srd+3}], s{sT} offen lds", tag=('u', k), maybe=maybe)
        for half, u in enumerate(D[k]):
            if not u: continue
            srd, vo, base, r, rx, rh = uparams(u)
            ops.append(lambda srd=srd, vo=vo, base=base, r=r, half=half: one(sM0W, lds0 + half*12288, r, base, srd, vo))
        a, b = D[k]
        if b and a[0] != 'E':
            srd, vo, base, r, rx, rh = uparams(a)
            ops.append(lambda: one(sM0H, lds0, rh, base, srd, vo))
        else:
            for half, u in enumerate(D[k]):
                if not u: continue
                srd, vo, base, r, rx, rh = uparams(u)
                def extra(srd=srd, vo=vo, base=base, rx=rx, half=half):
                    L = p.newlabel("K1_X")
                    e(f"s_cmp_eq_u32 s{sH}, {half}")
                    e(f"s_cbranch_scc0 {L}")
                    one(sM0X, lds0 + half*12288, rx, base, srd, vo, maybe=True)
                    p.label(L)
                ops.append(extra)
        return ops

    if PRO: stamp("setup")
    for R in range(3):
        p.wait(vm=[('x', 3*R+2)], lg_all=True)
        e("s_barrier")
        stamp(f"xround{R}")
        for j in range(6):
            p.ds(f"ds_read_b128 {vr(Q(12*R+j), 4)}, v{XA(j)}", tag=('raw', R, j))
        if R >= 1:
            for k in (2*(R-1), 2*(R-1)+1):
                for op in dma_double(k): op()
        if R < 2:
            for j in range(6): e(f"v_add_u32 v{XA(j)}, 49152, v{XA(j)}")
        L = p.newlabel("K1_XT")
        e(f"s_sub_u32 s{sT}, s{sFJ}, {3*R}")
        e(f"s_cmp_lt_u32 s{sT}, 3")
        e(f"s_cbranch_scc0 {L}")
        for job in range(2):
            e(f"ds_read_b64_tr_b16 {vr(vXT+4*job, 2)}, v{vXTA} offset:{4096*job}")
            e(f"ds_read_b64_tr_b16 {vr(vXT+4*job+2, 2)}, v{vXTB} offset:{4096*job+256}")
        e("s_waitcnt lgkmcnt(0)")
        p.label(L)
        L = p.newlabel("K1_X4")
        e(f"s_sub_u32 s{sT}, s51, {3*R}")
        e(f"s_cmp_lt_u32 s{sT}, 3")
        e(f"s_cbranch_scc0 {L}")
        e(f"ds_read2st64_b64 {vr(SC,4)}, v{T[12]} offset0:0 offset1:4")
        e(f"ds_read2st64_b64 {vr(SC+4,4)}, v{T[13]} offset0:0 offset1:4")
        e("s_waitcnt lgkmcnt(0)")
        p.vmem(f"buffer_store_dwordx4 {vr(SC,4)}, v{T[14]}, s[{SWS}:{SWS+3}], s52 offen", maybe=True)
        p.vmem(f"buffer_store_dwordx4 {vr(SC+4,4)}, v{T[14]}, s[{SWS}:{SWS+3}], s53 offen", maybe=True)
        p.label(L)
        for j in range(6):
            p.wait(lg=[('raw', R, j)])
            first = (R == 0 and j == 0)
            e(f"v_mfma_f32_32x32x16_bf16 {vr(SB,16)}, {vr(WF,4)}, {vr(Q(12*R+j),4)}, " + ("0" if first else vr(SB,16)))
            for d in range(4):
                x = Q(12*R+j) + d
                e(f"v_dot2_f32_bf16 v{ACC[1+(d&1)]}, v{x}, v{x}, v{ACC[1+(d&1)]}")
        if R == 1 and W2T == 0: w2_prefetch()
    p.wait(vm=['bias'])
    e(f"v_lshlrev_b32 v{T[7]}, 16, v{T[7]}")
    e(f"v_mov_b32 v{T[5]}, {fhex(ALPHA)}")
    e(f"v_mov_b32 v{T[4]}, {fhex(ALPHA*0.5)}")
    e(f"v_cmp_gt_u32 vcc, 32, v0")
    e(f"v_min_u32 v{T[6]}, 287, v0")
    e(f"v_lshlrev_b32 v{T[6]}, 2, v{T[6]}")
    e(f"v_cndmask_b32 v{T[5]}, v{T[5]}, v{T[4]}, vcc")
    e(f"v_add_u32 v{T[6]}, {BIAS}, v{T[6]}")
    e(f"v_mul_f32 v{T[7]}, v{T[7]}, v{T[5]}")
    e(f"v_cmp_gt_u32 vcc, 288, v0")
    e(f"s_and_saveexec_b64 s[54:55], vcc")
    p.ds(f"ds_write_b32 v{T[6]}, v{T[7]}")
    e(f"s_mov_b64 exec, s[54:55]")
    e(f"v_add_f32 v{ACC[1]}, v{ACC[1]}, v{ACC[2]}")
    e(f"v_mov_b32 v{T[0]}, v{ACC[1]}")
    e(f"s_lshl_b32 s{sT}, s{sH}, 3"); e(f"s_add_u32 s{sT}, s{sT}, {STAT}")
    e(f"v_lshlrev_b32 v{T[4]}, 4, v{vROW}")
    e(f"v_permlane32_swap_b32 v{ACC[1]}, v{T[0]}")
    e(f"v_add_u32 v{T[5]}, s{sT}, v{T[4]}")
    e(f"v_mov_b32 v{ACC[0]}, v{SB}")
    e(f"v_add_f32 v{ACC[1]}, v{ACC[1]}, v{T[0]}")
    p.ds(f"ds_write_b64 v{T[5]}, v[{ACC[0]}:{ACC[1]}]")
    e(f"v_add_u32 v{T[4]}, {STAT}, v{T[4]}")
    p.wait(lg_all=True)
    e("s_barrier")
    stamp("statbar")
    p.ds(f"ds_read_b128 {vr(T[8], 4)}, v{T[4]}", tag='st')
    def bias_init(S, tau):
        if tau == 8: return [lambda gg=gg: p.ds(f"ds_read_b128 {vr(S + gg*4, 4)}, v{vBI8} offset:{gg*32}", tag=('bias', tau)) for gg in range(4)]
        return [lambda gg=gg: p.ds(f"ds_read_b128 {vr(S + gg*4, 4)}, v{vBI} offset:{(32+64*tau+8*gg)*4}", tag=('bias', tau)) for gg in range(4)]
    for op in bias_init(SA, 0) + bias_init(SB, 8): op()
    p.wait(lg=['st'])
    inv = 1.0 / 576.0
    b = T[8]
    for s_ in [f"v_add_f32 v{b}, v{b}, v{b+2}", f"v_add_f32 v{b+1}, v{b+1}, v{b+3}",
            f"v_mul_f32 v{b}, {fhex(inv)}, v{b}", f"v_mul_f32 v{b+1}, {fhex(inv)}, v{b+1}",
            f"v_fma_f32 v{b+1}, -v{b}, v{b}, v{b+1}", f"v_max_f32 v{b+1}, 0, v{b+1}",
            f"v_cvt_pk_bf16_f32 v{b+2}, v{b}, v{b+1}", f"v_lshlrev_b32 v{b}, 16, v{b+2}",
            f"v_and_b32 v{b+1}, s{sMASK}, v{b+2}", f"v_add_f32 v{b+1}, {fhex(1e-5)}, v{b+1}",
            f"v_cvt_pk_bf16_f32 v{b+1}, v{b+1}, v{b+1}", f"v_and_b32 v{b+1}, s{sMASK}, v{b+1}",
            f"v_sqrt_f32 v{b+1}, v{b+1}", "s_nop 0", f"v_cvt_pk_bf16_f32 v{b+1}, v{b+1}, v{b+1}",
            f"v_and_b32 v{b+1}, s{sMASK}, v{b+1}", f"v_rcp_f32 v{b+2}, v{b+1}",
            f"v_lshlrev_b32 v{T[4]}, 3, v{vROW}",
            f"v_mul_f32 v{b+3}, -v{b}, v{b+2}", f"v_add_u32 v{T[4]}, {RCT}, v{T[4]}",
            f"v_mul_f32 v{vR}, s{sAL}, v{b+2}", f"v_mul_f32 v{vC}, s{sAL}, v{b+3}"]: e(s_)
    p.ds(f"ds_write_b64 v{T[4]}, v[{b+2}:{b+3}]", tag='w')

    seq = []
    def G(k, areg, imm, d2, mfs, need=()):
        seq.append(dict(kind='G', unit=k, areg=areg, imm=imm, d2=d2, mf=mfs, need=list(need)))
    def BAR(bg=(), pre=()):
        seq.append(dict(kind='BAR', bg=list(bg), first=list(pre)))
    def p1_group(tau, S, Dk, own, j, need=()):
        k = uloc[('B', tau, 2*Dk)][0]; slot = k % 4
        q = Q(12*Dk + 6*own + j)
        G(k, vA[('n', own, slot >> 1)], (slot & 1) * 24576 + j * 2048, 512,
          [lambda wf: f"v_mfma_f32_32x32x16_bf16 {vr(S,16)}, {vr(wf,4)}, {vr(q,4)}, {vr(S,16)}"], need)
    def b8_group(Dk, j, need=()):
        k, half = uloc[('8', Dk)]; slot = k % 4
        assert slot < 2
        q = Q(12*Dk + j)
        G(k, vA['8'], slot * 24576 + half * 12288 + j * 2048, 512,
          [lambda wf: f"v_mfma_f32_32x32x16_bf16 {vr(SB,16)}, {vr(wf,4)}, {vr(q,4)}, {vr(SB,16)}"], need)
    def norm_ops(slot0, buf):
        ops = []
        for sg in range(2):
            q = Q(slot0 + sg)
            tt = [TMP + 8*sg + i for i in range(8)]
            for d in range(4):
                ops.append(lambda d=d, q=q, tt=tt: e(f"v_lshlrev_b32 v{tt[2*d]}, 16, v{q+d}"))
                ops.append(lambda d=d, q=q, tt=tt: e(f"v_and_b32 v{tt[2*d+1]}, s{sMASK}, v{q+d}"))
            for d in range(8):
                ops.append(lambda d=d, tt=tt: e(f"v_fma_f32 v{tt[d]}, v{tt[d]}, v{vR}, v{vC}"))
            for d in range(4):
                ops.append(lambda d=d, q=q, tt=tt: e(f"v_cvt_pk_bf16_f32 v{q+d}, v{tt[2*d]}, v{tt[2*d+1]}"))
            ops.append(lambda q=q, sg=sg: p.ds(f"ds_write_b128 v{vPW}, {vr(q,4)} offset:{buf*16384+sg*1024}", tag='w'))
        return ops
    def gelu_ops(regs4, dst2, tbase):
        ops = []
        tt = [tbase + i for i in range(4)]
        for i in range(4): ops.append(lambda i=i: e(f"v_fmaak_f32 v{tt[i]}, v{regs4+i}, v{regs4+i}, {fhex(CA)}"))
        for i in range(4): ops.append(lambda i=i: e(f"v_mul_f32 v{tt[i]}, v{regs4+i}, v{tt[i]}"))
        for i in range(4): ops.append(lambda i=i: e(f"v_exp_f32 v{tt[i]}, -v{tt[i]}"))
        for i in range(4): ops.append(lambda i=i: e(f"v_fma_f32 v{tt[i]}, v{tt[i]}, s{sAL}, s{sAL}"))
        for i in range(4): ops.append(lambda i=i: e(f"v_rcp_f32 v{tt[i]}, v{tt[i]}"))
        for i in range(4): ops.append(lambda i=i: e(f"v_mul_f32 v{tt[i]}, v{regs4+i}, v{tt[i]}"))
        for i in range(2): ops.append(lambda i=i: e(f"v_cvt_pk_bf16_f32 v{dst2+i}, v{tt[2*i]}, v{tt[2*i+1]}"))
        return ops
    def gelu_block(S, tau):
        ops = []
        slot = (1 + 2*tau) if tau < 3 else 0
        for kap in range(2):
            pw = TMP + 8 + 4*kap
            for t in range(2):
                ops += gelu_ops(S + (kap*2+t)*4, pw + 2*t, TMP + 4*t)
            ops.append(lambda pw=pw, kap=kap: p.ds(f"ds_write_b128 v{vPW}, {vr(pw,4)} offset:{slot*8192+kap*1024}", tag='w'))
        return ops
    def s8_write():
        return [lambda gg=gg: p.ds(f"ds_write_b128 v{vPW}, {vr(SB+4*gg,4)} offset:{24576 + (gg>>1)*16384 + (gg&1)*1024}", tag='w') for gg in range(4)]
    def s8_read():
        ops = []
        for hh in range(2):
            for c in range(2):
                dst = (SC if hh == 0 else vXT) + 4*c
                ops.append(lambda hh=hh, c=c, dst=dst: p.ds(f"ds_read_b128 {vr(dst,4)}, v{v8R} offset:{24576 + hh*8192 + c*1024}", tag='s8'))
        return ops
    def gelu_b8():
        ops = [lambda: p.wait(lg=['s8'])]
        for i in range(8): ops.append(lambda i=i: e(f"v_add_f32 v{SC+i}, v{SC+i}, v{vXT+i}"))
        pw = TMP + 8
        for t in range(2): ops += gelu_ops(SC + 4*t, pw + 2*t, TMP + 4*t)
        ops.append(lambda: p.ds(f"ds_write_b128 v{vP8}, {vr(pw,4)}", tag='w'))
        return ops
    def pread(kk):
        slot = kk if kk < 7 else kk - 7
        return [lambda sg=sg: p.ds(f"ds_read_b128 {vr(Q(2*kk+sg),4)}, v{vPR} offset:{slot*8192+sg*256}", tag=('P', kk)) for sg in range(2)]
    def xt_job():
        L = p.newlabel("K1_XJ")
        e(f"s_cmp_lt_u32 s{sFJ}, 9")
        e(f"s_cbranch_scc0 {L}")
        e(f"s_lshl_b32 s{sT}, s{sFJ}, 6"); e(f"s_and_b32 s{sT4}, s{sW}, 6"); e(f"s_lshl_b32 s{sT4}, s{sT4}, 3")
        e(f"s_add_u32 s{sT}, s{sT}, s{sT4}"); e(f"s_lshl_b32 s{sT}, s{sT}, 12")
        e(f"s_lshl_b32 s{sT4}, s{sMI}, 8"); e(f"s_add_u32 s{sT}, s{sT}, s{sT4}")
        e(f"s_and_b32 s{sT4}, s{sW}, 1"); e(f"s_lshl_b32 s{sT5}, s{sT4}, 7"); e(f"s_add_u32 s{sT}, s{sT}, s{sT5}")
        e(f"s_add_u32 s{sT}, s{sT}, {XNT_OFF}")
        e(f"s_lshl_b32 s{sT4}, s{sT4}, 9"); e(f"s_add_u32 s{sT4}, s{sT4}, {RCT}")
        va, vb, v1_, v2_ = SC, SC+1, SC+2, SC+3
        e(f"v_lshlrev_b32 v{vb}, 5, v{vG}")
        e(f"v_add_u32 v{vb}, s{sT4}, v{vb}")
        e(f"s_add_u32 s{sT5}, s{sXM}, {PREG+40960}")
        e(f"v_lshlrev_b32 v{va}, 4, v{vG}")
        e(f"v_lshl_add_u32 v{va}, v{vI}, 7, v{va}")
        e(f"v_add_u32 v{va}, s{sT5}, v{va}")
        for job in range(2):
            x = vXT + 4*job
            for q in range(4):
                e(f"ds_read_b128 {vr(TMP+4*q,4)}, v{vb} offset:{256*job+128*(q>>1)+16*(q&1)}")
            e("s_waitcnt lgkmcnt(0)")
            for d in range(4):
                e(f"v_lshlrev_b32 v{v1_}, 16, v{x+d}")
                e(f"v_and_b32 v{v2_}, s{sMASK}, v{x+d}")
                e(f"v_fma_f32 v{v1_}, v{v1_}, v{TMP+2*d}, v{TMP+2*d+1}")
                e(f"v_fma_f32 v{v2_}, v{v2_}, v{TMP+8+2*d}, v{TMP+8+2*d+1}")
                e(f"v_cvt_pk_bf16_f32 v{x+d}, v{v1_}, v{v2_}")
            e(f"ds_write_b128 v{va}, {vr(x,4)} offset:{64*job}")
        e(f"v_lshlrev_b32 v{va}, 4, v{vLANE}")
        e(f"v_add_u32 v{va}, s{sT5}, v{va}")
        e(f"v_lshrrev_b32 v{vb}, 3, v{vLANE}")
        e(f"v_lshlrev_b32 v{vb}, 12, v{vb}")
        e(f"v_and_b32 v{v1_}, 7, v{vLANE}")
        e(f"v_lshl_add_u32 v{vb}, v{v1_}, 4, v{vb}")
        e("s_waitcnt lgkmcnt(0)")
        e(f"ds_read_b128 {vr(TMP,4)}, v{va}")
        e(f"ds_read_b128 {vr(TMP+4,4)}, v{va} offset:1024")
        e(f"s_add_u32 s{sT4}, s{sT}, {8*4096}")
        e("s_waitcnt lgkmcnt(0)")
        p.vmem(f"buffer_store_dwordx4 {vr(TMP,4)}, v{vb}, s[{SWS}:{SWS+3}], s{sT} offen", maybe=True)
        p.vmem(f"buffer_store_dwordx4 {vr(TMP+4,4)}, v{vb}, s[{SWS}:{SWS+3}], s{sT4} offen", maybe=True)
        e("s_nop 1")
        p.label(L)

    for op in norm_ops(0, 0): op()
    for r in range(9):
        Dk, j = divmod(r, 3)
        pre = [lambda sg=sg, r=r, Dk=Dk, j=j: p.ds(f"ds_read_b128 {vr(Q(12*Dk+6+2*j+sg),4)}, v{vXR} offset:{(r%2)*16384+sg*1024}", tag=('oth', r)) for sg in range(2)]
        bg = []
        if r + 1 < 9:
            Dn, jn = divmod(r + 1, 3)
            bg = norm_ops(12*Dn + 2*jn, (r + 1) % 2)
            if W1T == 2 and r < 3: bg = [lambda wv=2*r: w1_touch(wv), lambda wv=2*r+1: w1_touch(wv)] + bg
            if W1T == 3 and r < 6: bg = [lambda wv=r: w1_touch(wv)] + bg
        else:
            bg = [xt_job]
        BAR(bg=bg, pre=pre)
        nd = [('bias', 0), ('bias', 8)] if r == 0 else []
        for sg in range(2):
            b8_group(Dk, 2*j+sg, nd); p1_group(0, SA, Dk, 0, 2*j+sg, nd)
        for sg in range(2): p1_group(0, SA, Dk, 1, 2*j+sg, [('oth', r)])
    Sbuf = {0: SA, 1: SB, 2: SA, 3: SB}
    for tau in (1, 2, 3):
        gl = gelu_block(Sbuf[tau-1], tau-1)
        n3 = (len(gl) + 2) // 3
        for Dk in range(3):
            pre = []
            if tau == 1 and Dk == 0: pre = s8_write() + bias_init(SB, 1)
            bg = gl[Dk*n3:(Dk+1)*n3]
            if W2T == 1 and tau < 3: bg = bg[:6] + [lambda wv=3*(tau-1)+Dk: w2_touch(wv)] + bg[6:]
            if tau == 1 and Dk == 1: bg = s8_read() + bg
            if tau == 3 and Dk == 0: bg = gelu_b8() + bg
            if Dk == 2 and tau < 3: bg = bg + bias_init(Sbuf[tau+1], tau+1)
            if tau == 3 and Dk == 1: bg = pread(1) + pread(2) + pread(0) + bg
            if tau == 3 and Dk == 2: bg = pread(3) + pread(4) + bg
            BAR(bg=bg, pre=pre)
            for own in range(2):
                for j in range(6):
                    p1_group(tau, Sbuf[tau], Dk, own, j, [('bias', tau)] if (Dk == 0 and own == 0 and j == 0) else [])
    OB = {0: Q(18), 1: Q(22)}
    ET = Q(26)
    def epi(j):
        O = OB[j % 2]
        ops = []
        for t in range(2):
            dst = ET + 4*t + 8*(j % 2)
            for sg in range(2):
                for i in range(2):
                    ops.append(lambda t=t, sg=sg, i=i, dst=dst: e(f"v_cvt_pk_bf16_f32 v{dst+2*sg+i}, v{O+(t*2+sg)*4+2*i}, v{O+(t*2+sg)*4+2*i+1}"))
            def st(t=t, dst=dst):
                e(f"s_mov_b32 s{sT}, {(16*j+4*t)*16384}")
                p.vmem(f"buffer_store_dwordx4 {vr(dst,4)}, v{vOO}, s[{SWS}:{SWS+3}], s{sT} offen")
            if not NOST: ops.append(st)
        return ops
    gl3 = gelu_block(SB, 3)
    for i, u in enumerate(p2):
        _, j, k = u
        kd, half = uloc[u]
        if half == 0:
            bg = []; pre = []
            if i == 0: pre = pread(5) + pread(6); bg = gl3[:len(gl3)//2]
            if i == 2: bg = gl3[len(gl3)//2:]
            if i == 4: pre = pread(7) + pread(8)
            BAR(bg=bg, pre=pre)
        slot = kd % 4
        O = OB[j % 2]
        for jj in range(3):
            kk = 3*k + jj
            for t in range(2):
                first = (kk == 0)
                mfs = [lambda wf, t=t, sg=sg, kk=kk, first=first, O=O: f"v_mfma_f32_16x16x32_bf16 {vr(O+(t*2+sg)*4,4)}, {vr(wf,4)}, {vr(Q(2*kk+sg),4)}, " + ("0" if first else vr(O+(t*2+sg)*4,4)) for sg in range(2)]
                G(kd, vA[('p', t, slot >> 1)], (slot & 1) * 24576 + half * 12288 + jj * 4096, 2048, mfs, [('P', kk)])
        if k == 2:
            seq.append(dict(kind='EPI', ops=epi(j)))
    gidx = [i for i, s in enumerate(seq) if s['kind'] == 'G']
    pos_of_g = {g: n for n, g in enumerate(gidx)}
    bars = [i for i, s in enumerate(seq) if s['kind'] == 'BAR']
    first_read_pos = {}; last_use = {}
    for n, g in enumerate(gidx):
        k = seq[g]['unit']
        rp = gidx[n - RA] if n - RA >= 0 else -1
        first_read_pos.setdefault(k, rp)
        last_use[k] = g
    land = {}; rel = {}
    for k in first_read_pos:
        prev = [b for b in bars if b < first_read_pos[k]]
        land.setdefault(prev[-1] if prev else bars[0], []).append(k)
        nxt = [b for b in bars if b > last_use[k]]
        if nxt and k + 4 < len(D): rel.setdefault(nxt[0], []).append(k + 4)
    wf_of = {}
    def issue_reads(n):
        if n >= len(gidx): return
        s = seq[gidx[n]]
        wf = WF + 4 * (n % NWF)
        wf_of[n] = wf
        if NOREAD: return
        p.ds(f"ds_read_b64_tr_b16 {vr(wf,2)}, v{s['areg']} offset:{s['imm']}", tag=('wf', n))
        p.ds(f"ds_read_b64_tr_b16 {vr(wf+2,2)}, v{s['areg']} offset:{s['imm']+s['d2']}", tag=('wf', n))
    bgq = []
    def groups_left(i):
        c = 0
        for s in seq[i:]:
            if s['kind'] == 'BAR': break
            if s['kind'] == 'G': c += 1
        return c
    delay = []
    for i, s in enumerate(seq):
        if s['kind'] == 'EPI':
            delay.append([3, s['ops']])
        elif s['kind'] == 'BAR':
            for op in bgq: op()
            p.wait(vm=[('u', k) for k in land.get(i, [])], lg=['w'])
            if not NOBAR: e("s_barrier")
            bi = bars.index(i)
            if bi in ((0, 3, 6, 9, 12, 15, 18, 21, 24, 27, 30) if PRO else (0, 1, 3, 6, 9, 10, 12, 15, 18, 19, 20, 21, 24, 27, 30)): stamp(f"bar{bi}")
            if i == bars[0]:
                for n in range(RA): issue_reads(n)
            if bi == 9: e("s_nop 7")
            for op in s['first']: op()
            dm = []
            for k in rel.get(i, []):
                if not NODMA: dm += dma_double(k)
            bgq = []
            b = [] if NOBG else list(s['bg'])
            step = max(1, len(b) // (len(dm) + 1)) if dm else 0
            while dm or b:
                if dm: bgq.append(dm.pop(0))
                take = b[:step] if dm else b
                bgq += take; b = b[len(take):]
        else:
            n = pos_of_g[i]
            left = groups_left(i)
            if seq[i-1]['kind'] == 'BAR': segn = left
            done = segn - left
            if PRIO and (done == 0 or (done * 4) // segn != ((done - 1) * 4) // segn):
                e(f"s_setprio {3 - (done * 4) // segn}")
            left = max(left - FRONT, 1)
            for dl in delay: dl[0] -= 1
            while delay and delay[0][0] <= 0: bgq += delay.pop(0)[1]
            k = -(-len(bgq) // left)
            p.wait(lg=[('wf', n)] + s['need'])
            nm = len(s['mf'])
            for mi_, mf in enumerate(s['mf']):
                e(mf(wf_of[n]))
                if mi_ == 0: issue_reads(n + RA)
                lo = (k * mi_) // nm; hi = (k * (mi_ + 1)) // nm
                for op in bgq[lo:hi]: op()
            bgq = bgq[k:]
    e("s_nop 7")
    for op in bgq: op()
    for dl in delay:
        for op in dl[1]: op()
    if DIAG:
        stamp("lastissue")
        e("s_waitcnt vmcnt(0)")
        stamp("end")
        e("s_memrealtime s[100:101]")
        e("s_waitcnt lgkmcnt(0)")
        e(f"v_writelane_b32 v{TMP}, s100, 40")
        for i in range(len(stamps)):
            e(f"s_sub_u32 s{sT}, s{56+2*i}, s56")
            e(f"v_writelane_b32 v{TMP}, s{sT}, {i}")
        e(f"s_lshl_b32 s{sT}, s2, 3"); e(f"s_add_u32 s{sT}, s{sT}, s{sW}"); e(f"s_lshl_b32 s{sT}, s{sT}, 8")
        e(f"s_add_u32 s{sT}, s{sT}, 0x4000000")
        e(f"v_lshlrev_b32 v{TMP+1}, 2, v{vLANE}")
        e(f"buffer_store_dword v{TMP}, v{TMP+1}, s[{SWS}:{SWS+3}], s{sT} offen")
        open("stamps.txt", "w").write(" ".join(stamps))
    p.label("K1_END")
    e("s_endpgm")
    return p.text()
```

```python
from asmlib import *
import math, os
DIAG = int(os.environ.get("DIAG", "0")); PRO = int(os.environ.get("PRO", "0"))
NODMA = int(os.environ.get("NODMA", "0")); NOREAD = int(os.environ.get("NOREAD", "0")); NOST = int(os.environ.get("NOST", "0"))
NOBAR = int(os.environ.get("NOBAR", "0")); NOBG = int(os.environ.get("NOBG", "0"))
PRIO = int(os.environ.get("PRIO", "0")); FRONT = int(os.environ.get("FRONT", "1")); MAP = 1
RA = int(os.environ.get("RA", "4"))

PART_OFF = 0
X4_OFF = 37748736
XNT_OFF = 40108032
TW = int(os.environ.get("TW", "0"))
T1S = int(os.environ.get("T1S", "0")); T2S = int(os.environ.get("T2S", "4")); T2N = int(os.environ.get("T2N", "12"))
STM = os.environ.get("STM", "sc1")
DL = int(os.environ.get("DL", "1")); XI = int(os.environ.get("XI", "0"))
W1T = int(os.environ.get("W1T", "2")); W2T = int(os.environ.get("W2T", "1"))
RING = 0; PREG = 98304; STAT = 155648; RCT = 157696; BIAS = 158720
SX, SW1, SW2, SWS, SB1 = 4, 8, 12, 16, 20
sW, sH, sQI, sFJ, sMI = 24, 25, 26, 27, 28
sRP1, sRP1X, sRP8, sRP8X, sRP2, sRP2K0, sRP2X, sM0W, sM0X, sT = 29, 30, 31, 32, 33, 34, 35, 36, 37, 38
sT2, sXS, sXM, sT3, sONE, sMASK, sT4, sT5, sAL = 39, 40, 41, 42, 43, 44, 45, 46, 47
sRP1H, sRP8H, sM0H = 48, 49, 50
vLANE, vG, vI = 1, 2, 3
vA = {}
n = 4
for own in (0, 1):
    for hi in (0, 1):
        vA[('n', own, hi)] = n; n += 1
vA['8'] = 8
for t in (0, 1):
    for hi in (0, 1):
        vA[('p', t, hi)] = 9 + 2*t + hi
vOW1, vOW8, vOW2 = 13, 14, 15
vPW, vPR, vBI, vBI8, vOO, vXR, vR, vC, v8R, vP8 = 16, 17, 18, 19, 20, 21, 22, 23, 24, 25
vXT = 26
TMP = 34
WF = 50
NWF = 5
vROW, vXTA = 70, 71
SB = 72; SC = 88; SA = 96
QB = 112
def Q(slot): return QB + slot * 4
C0 = -2.0 * 0.7978845608028654 * math.log2(math.e)
C1 = C0 * 0.044715
ALPHA = (-C1) ** (1.0 / 3.0)
CA = -C0 / ALPHA

def gen():
    p = Prog()
    e = p.emit
    stamps = []
    def stamp(name):
        if DIAG and len(stamps) < 22:
            e(f"s_memtime s[{56+2*len(stamps)}:{57+2*len(stamps)}]")
            stamps.append(name)
    T = [TMP + i for i in range(16)]
    e("s_cmp_ge_u32 s2, 256")
    e("s_cbranch_scc1 K1_END")
    stamp("start")
    e("s_load_dwordx2 s[4:5], s[0:1], 0")
    e("s_load_dwordx4 s[48:51], s[0:1], 80")
    e("s_load_dwordx2 s[12:13], s[0:1], 96")
    e("s_load_dwordx2 s[16:17], s[0:1], 128")
    e(f"v_lshrrev_b32 v{T[0]}, 6, v0")
    e(f"v_and_b32 v{vLANE}, 63, v0")
    e(f"v_readfirstlane_b32 s{sW}, v{T[0]}")
    e(f"v_lshrrev_b32 v{vG}, 4, v{vLANE}")
    e(f"v_and_b32 v{vI}, 15, v{vLANE}")
    nb = 1 + MAP
    e("s_and_b32 s3, s2, 7")
    e(f"s_lshr_b32 s{sMI}, s2, 3")
    e(f"s_and_b32 s{sFJ}, s{sMI}, {(1<<nb)-1}")
    e(f"s_lshr_b32 s{sT}, s3, {MAP}")
    e(f"s_lshl_b32 s{sT}, s{sT}, {nb}")
    e(f"s_add_u32 s{sFJ}, s{sFJ}, s{sT}")
    e(f"s_lshr_b32 s{sMI}, s{sMI}, {nb}")
    e(f"s_and_b32 s3, s3, {(1<<MAP)-1}")
    e(f"s_lshl_b32 s3, s3, {4-MAP}")
    e(f"s_add_u32 s{sMI}, s{sMI}, s3")
    e(f"s_lshr_b32 s{sH}, s{sW}, 2")
    e(f"s_and_b32 s{sQI}, s{sW}, 3")
    e(f"s_mov_b32 s{sONE}, 0x3f803f80")
    e(f"s_mov_b32 s{sMASK}, 0xffff0000")
    e(f"s_mov_b32 s{sAL}, {fhex(ALPHA)}")
    e(f"v_lshrrev_b32 v{T[2]}, 3, v{vLANE}")
    e(f"v_and_b32 v{T[3]}, 7, v{vLANE}")
    e(f"v_xor_b32 v{T[4]}, v{vG}, v{T[3]}")
    e(f"v_mul_u32_u24 v{T[5]}, 2304, v{T[2]}")
    e(f"v_lshl_add_u32 v{T[0]}, v{T[4]}, 4, v{T[5]}")
    e(f"v_xor_b32 v{T[1]}, 64, v{T[0]}")
    e(f"s_lshl_b32 s{sXS}, s{sMI}, 7")
    e(f"s_lshr_b32 s{sT}, s{sW}, 1"); e(f"s_lshl_b32 s{sT}, s{sT}, 5"); e(f"s_add_u32 s{sXS}, s{sXS}, s{sT}")
    e(f"s_and_b32 s{sT}, s{sW}, 1"); e(f"s_add_u32 s{sXS}, s{sXS}, s{sT}")
    e(f"s_mul_i32 s{sXS}, s{sXS}, 1152")
    e(f"s_lshl_b32 s{sXM}, s{sW}, 11")
    e(f"v_min_u32 v{T[9]}, 287, v0")
    e(f"v_lshlrev_b32 v{T[9]}, 7, v{T[9]}")
    e(f"s_and_b32 s{sT4}, s{sFJ}, 3"); e(f"s_mul_i32 s{sT4}, s{sT4}, {288*128}")
    e(f"s_mul_i32 s{sT5}, s{sMI}, {128*1152}"); e(f"s_add_u32 s{sT4}, s{sT4}, s{sT5}")
    e(f"s_getpc_b64 s[52:53]")
    e(f"v_subrev_u32 v{T[10]}, 320, v0")
    e(f"v_min_u32 v{T[10]}, K1_CODE_LINES, v{T[10]}")
    e(f"v_lshlrev_b32 v{T[10]}, 7, v{T[10]}")
    e("s_waitcnt lgkmcnt(0)")
    if PRO: stamp("karg")
    e("s_mov_b32 s6, 2359296"); e("s_mov_b32 s7, 0x00020000")
    e("s_mov_b32 s8, s48"); e("s_mov_b32 s9, s49"); e("s_mov_b32 s10, 5308416"); e("s_mov_b32 s11, 0x00020000")
    e("s_mov_b32 s14, 5308416"); e("s_mov_b32 s15, 0x00020000")
    e("s_mov_b32 s18, 268435456"); e("s_mov_b32 s19, 0x00020000")
    e("s_mov_b32 s20, s50"); e("s_mov_b32 s21, s51"); e("s_mov_b32 s22, 9216"); e("s_mov_b32 s23, 0x00020000")
    Lc = p.newlabel("K1_PF"); Ld = p.newlabel("K1_PF")
    e(f"s_cmp_ge_u32 s{sW}, 5"); e(f"s_cbranch_scc1 {Lc}")
    p.vmem(f"buffer_load_dword v{T[8]}, v{T[9]}, s[{SX}:{SX+3}], s{sT4} offen", tag='pf')
    e(f"s_branch {Ld}")
    p.label(Lc)
    e(f"global_load_dword v{T[8]}, v{T[10]}, s[52:53]")
    if TW:
        e(f"s_cmp_lg_u32 s{sW}, 7"); e(f"s_cbranch_scc1 {Ld}")
        e(f"v_min_u32 v{T[11]}, 3, v{vLANE}")
        e(f"v_mul_u32_u24 v{T[12]}, {191*9216}, v{T[11]}")
        e(f"s_mul_i32 s{sT3}, s{sFJ}, 576")
        e(f"buffer_load_dword v{T[8]}, v{T[12]}, s[{SW1}:{SW1+3}], s{sT3} offen")
        e(f"v_mul_u32_u24 v{T[13]}, 110548, v{T[11]}")
        e(f"s_mul_i32 s{sT3}, s{sFJ}, 331776")
        e(f"buffer_load_dword v{T[8]}, v{T[13]}, s[{SW2}:{SW2+3}], s{sT3} offen")
        e(f"v_mul_u32_u24 v{T[14]}, 786400, v{T[11]}")
        e(f"s_mul_i32 s{sT3}, s{sFJ}, 2359296")
        e(f"buffer_load_dword v{T[8]}, v{T[14]}, s[{SWS}:{SWS+3}], s{sT3} offen")
        e(f"v_mul_u32_u24 v{T[15]}, 1572800, v{T[11]}")
        e(f"s_mov_b32 s{sT3}, {X4_OFF}")
        e(f"buffer_load_dword v{T[8]}, v{T[15]}, s[{SWS}:{SWS+3}], s{sT3} offen")
    p.label(Ld)
    def xdma(c):
        for nn in range(2):
            e(f"s_add_u32 m0, s{sXM}, {16384*c + 1024*nn}")
            e(f"s_add_u32 s{sT}, s{sXS}, {128*c + nn*16*1152}")
            p.vmem(f"buffer_load_dwordx4 v{T[nn]}, s[{SX}:{SX+3}], s{sT} offen lds", tag=('x', c))
    e("s_setprio 3")
    for c in range(3): xdma(c)
    e("s_setprio 0")
    e(f"s_and_b32 s{sT2}, s{sFJ}, 1")
    e(f"s_mul_i32 s{sT3}, s{sFJ}, 576")
    e(f"s_add_u32 s{sT5}, s{sQI}, 8")
    e(f"s_mul_i32 s{sRP1}, s{sW}, {8*9216}"); e(f"s_mul_i32 s{sRP1X}, s{sT5}, {8*9216}")
    e(f"s_lshl_b32 s{sT4}, s{sT2}, 6"); e(f"s_add_u32 s{sT4}, s{sT4}, s{sT3}")
    e(f"s_lshl_b32 s{sT}, s{sT2}, 9"); e(f"s_sub_u32 s{sT}, 512, s{sT}"); e(f"s_add_u32 s{sT}, s{sT}, s{sT3}")
    e(f"s_add_u32 s{sRP8}, s{sRP1}, s{sT}"); e(f"s_add_u32 s{sRP8X}, s{sRP1X}, s{sT}")
    e(f"s_add_u32 s{sRP1}, s{sRP1}, s{sT4}"); e(f"s_add_u32 s{sRP1X}, s{sRP1X}, s{sT4}")
    e(f"s_mul_i32 s{sT}, s{sH}, {96*9216}"); e(f"s_add_u32 s{sRP1H}, s{sRP1X}, s{sT}")
    e(f"s_mul_i32 s{sT}, s{sH}, {192*9216}"); e(f"s_add_u32 s{sRP8H}, s{sRP8X}, s{sT}")
    def rowperm(dst, nreg, tmp):
        e(f"s_lshr_b32 s{dst}, s{nreg}, 2"); e(f"s_lshl_b32 s{dst}, s{dst}, 5")
        e(f"s_and_b32 s{tmp}, s{nreg}, 1"); e(f"s_lshl_b32 s{tmp}, s{tmp}, 4"); e(f"s_add_u32 s{dst}, s{dst}, s{tmp}")
        e(f"s_and_b32 s{tmp}, s{nreg}, 2"); e(f"s_lshl_b32 s{tmp}, s{tmp}, 2"); e(f"s_add_u32 s{dst}, s{dst}, s{tmp}")
    rowperm(sRP2, sW, sT4); rowperm(sRP2X, sT5, sT4)
    e(f"s_mul_i32 s{sT}, s{sFJ}, 288"); e(f"s_lshl_b32 s{sT4}, s{sT2}, 5"); e(f"s_add_u32 s{sT}, s{sT}, s{sT4}"); e(f"s_sub_u32 s{sT}, s{sT}, 32")
    e(f"s_add_u32 s{sRP2}, s{sRP2}, s{sT}"); e(f"s_add_u32 s{sRP2X}, s{sRP2X}, s{sT}")
    e(f"s_or_b32 s{sT4}, s{sT2}, s{sH}"); e(f"s_cmp_eq_u32 s{sT4}, 0"); e(f"s_cselect_b32 s{sT4}, 288, 0")
    e(f"s_add_u32 s{sRP2K0}, s{sRP2}, s{sT4}")
    e(f"s_mul_i32 s{sRP2}, s{sRP2}, 1152"); e(f"s_mul_i32 s{sRP2X}, s{sRP2X}, 1152"); e(f"s_mul_i32 s{sRP2K0}, s{sRP2K0}, 1152")
    e(f"s_lshl_b32 s{sM0W}, s{sW}, 10"); e(f"s_lshl_b32 s{sM0X}, s{sT5}, 10")
    e(f"s_mul_i32 s{sT}, s{sH}, 12288"); e(f"s_add_u32 s{sM0H}, s{sM0X}, s{sT}")
    e("s_setprio 2")
    for c in range(3, 6): xdma(c)
    e("s_setprio 0")
    e(f"v_and_b32 v{T[4]}, 1, v{vG}")
    e(f"v_lshlrev_b32 v{T[4]}, 2, v{T[4]}")
    e(f"v_xor_b32 v{T[4]}, v{T[4]}, v{T[3]}")
    e(f"v_mul_u32_u24 v{T[10]}, 9216, v{T[2]}")
    e(f"v_lshl_add_u32 v{vOW1}, v{T[4]}, 4, v{T[10]}")
    e(f"v_lshrrev_b32 v{T[11]}, 2, v{T[4]}")
    e(f"v_mul_u32_u24 v{T[11]}, {96*9216}, v{T[11]}")
    e(f"v_and_b32 v{T[4]}, 3, v{T[4]}")
    e(f"v_lshlrev_b32 v{T[4]}, 4, v{T[4]}")
    e(f"v_add3_u32 v{vOW8}, v{T[4]}, v{T[10]}, v{T[11]}")
    e(f"v_lshlrev_b32 v{T[4]}, 1, v{vG}")
    e(f"v_xor_b32 v{T[4]}, v{T[4]}, v{T[3]}")
    e(f"v_mul_u32_u24 v{T[10]}, 1152, v{T[2]}")
    e(f"v_lshl_add_u32 v{vOW2}, v{T[4]}, 4, v{T[10]}")
    e(f"v_lshrrev_b32 v{T[4]}, 2, v{vI}")
    e(f"v_and_b32 v{T[10]}, 3, v{vLANE}")
    e(f"v_lshlrev_b32 v{T[10]}, 3, v{T[10]}")
    e(f"v_lshrrev_b32 v{T[5]}, 1, v{vG}")
    e(f"v_lshl_add_u32 v{T[9]}, v{T[5]}, 3, v{T[4]}")
    e(f"v_lshl_add_u32 v{T[9]}, v{T[9]}, 7, v{T[10]}")
    e(f"v_lshrrev_b32 v{T[11]}, 1, v{T[4]}")
    e(f"v_xor_b32 v{T[11]}, s{sH}, v{T[11]}")
    e(f"v_lshl_add_u32 v{T[9]}, v{T[11]}, 6, v{T[9]}")
    e(f"v_and_b32 v{T[11]}, 1, v{vG}")
    e(f"v_lshl_add_u32 v{vA['8']}, v{T[11]}, 5, v{T[9]}")
    e(f"s_mul_i32 s{sT4}, s{sH}, 12288"); e(f"s_sub_u32 s{sT5}, 12288, s{sT4}")
    e(f"v_add_u32 v{vA[('n',0,0)]}, s{sT4}, v{vA['8']}"); e(f"v_add_u32 v{vA[('n',1,0)]}, s{sT5}, v{vA['8']}")
    e(f"v_add_u32 v{vA[('n',0,1)]}, 49152, v{vA[('n',0,0)]}"); e(f"v_add_u32 v{vA[('n',1,1)]}, 49152, v{vA[('n',1,0)]}")
    e(f"v_lshl_add_u32 v{T[9]}, v{vG}, 2, v{T[4]}")
    e(f"v_lshl_add_u32 v{T[10]}, v{T[9]}, 7, v{T[10]}")
    e(f"v_bfe_u32 v{T[9]}, v{T[9]}, 1, 2")
    e(f"s_lshl_b32 s{sT}, s{sH}, 1")
    e(f"v_xor_b32 v{T[9]}, s{sT}, v{T[9]}")
    e(f"v_lshl_add_u32 v{vA[('p',0,0)]}, v{T[9]}, 5, v{T[10]}")
    e(f"v_xor_b32 v{vA[('p',1,0)]}, 32, v{vA[('p',0,0)]}")
    for t in (0, 1): e(f"v_add_u32 v{vA[('p',t,1)]}, 49152, v{vA[('p',t,0)]}")
    e(f"s_lshl_b32 s{sT}, s{sQI}, 11"); e(f"s_add_u32 s{sT}, s{sT}, {PREG}")
    e(f"v_lshlrev_b32 v{T[11]}, 4, v{vLANE}")
    e(f"v_add_u32 v{T[11]}, s{sT}, v{T[11]}")
    e(f"s_lshl_b32 s{sT4}, s{sH}, 13"); e(f"v_add_u32 v{vPW}, s{sT4}, v{T[11]}")
    e(f"v_xor_b32 v{vXR}, 8192, v{vPW}")
    e(f"s_lshl_b32 s{sT4}, s{sH}, 10"); e(f"v_add_u32 v{vP8}, s{sT4}, v{T[11]}")
    e(f"s_lshl_b32 s{sT4}, s{sH}, 14"); e(f"v_add_u32 v{v8R}, s{sT4}, v{T[11]}")
    e(f"v_lshlrev_b32 v{T[9]}, 9, v{vG}")
    e(f"v_lshl_add_u32 v{T[9]}, v{vI}, 4, v{T[9]}")
    e(f"v_add_u32 v{vPR}, s{sT}, v{T[9]}")
    e(f"v_lshlrev_b32 v{T[9]}, 4, v{T[5]}")
    e(f"v_add_u32 v{vBI8}, {BIAS}, v{T[9]}")
    e(f"s_lshl_b32 s{sT4}, s{sH}, 7"); e(f"v_add_u32 v{vBI}, s{sT4}, v{vBI8}")
    e(f"s_mul_i32 s{sT}, s{sFJ}, 144"); e(f"s_lshl_b32 s{sT4}, s{sH}, 3"); e(f"s_add_u32 s{sT}, s{sT}, s{sT4}")
    e(f"s_lshl_b32 s{sT}, s{sT}, 14")
    e(f"s_lshl_b32 s{sT4}, s{sMI}, 10"); e(f"s_add_u32 s{sT}, s{sT}, s{sT4}")
    e(f"s_lshl_b32 s{sT4}, s{sQI}, 8"); e(f"s_add_u32 s{sT}, s{sT}, s{sT4}")
    e(f"v_lshlrev_b32 v{vOO}, 14, v{vG}")
    e(f"v_lshl_add_u32 v{vOO}, v{vI}, 4, v{vOO}")
    e(f"v_add_u32 v{vOO}, s{sT}, v{vOO}")
    e("s_setprio 1")
    for c in range(6, 9): xdma(c)
    e("s_setprio 0")
    if PRO: stamp("xissued")
    e(f"v_cmp_gt_u32 vcc, 32, v0")
    e(f"v_mov_b32 v{T[6]}, -32")
    e(f"v_mov_b32 v{T[7]}, 256")
    e(f"v_cndmask_b32 v{T[6]}, v{T[6]}, v{T[7]}, vcc")
    e(f"s_sub_u32 s{sT4}, s{sT2}, 1")
    e(f"v_and_b32 v{T[6]}, s{sT4}, v{T[6]}")
    e(f"v_add_u32 v{T[6]}, v{T[6]}, v0")
    e(f"v_min_u32 v{T[6]}, 287, v{T[6]}")
    e(f"v_lshlrev_b32 v{T[6]}, 1, v{T[6]}")
    p.vmem(f"buffer_load_ushort v{T[7]}, v{T[6]}, s[{SB1}:{SB1+3}], s{sT3} offen", tag='bias')
    e(f"v_min_u32 v{T[9]}, 359, v0")
    e(f"v_mul_u32_u24 v{T[10]}, 205, v{T[9]}")
    e(f"v_lshrrev_b32 v{T[10]}, 10, v{T[10]}")
    e(f"v_mul_u32_u24 v{T[11]}, 5, v{T[10]}")
    e(f"v_sub_u32 v{T[9]}, v{T[9]}, v{T[11]}")
    e(f"v_mul_u32_u24 v{T[10]}, 9216, v{T[10]}")
    e(f"v_lshl_add_u32 v{T[9]}, v{T[9]}, 7, v{T[10]}")
    e(f"s_and_b32 s{sT5}, s{sMI}, 7")
    e(f"s_mul_i32 s{sT}, s{sT5}, {72*9216}")
    e(f"s_and_b32 s{sT4}, s{sT3}, 0xffffff80")
    e(f"s_add_u32 s{sT}, s{sT}, s{sT4}")
    if W1T == 1: p.vmem(f"buffer_load_dword v{T[8]}, v{T[9]}, s[{SW1}:{SW1+3}], s{sT} offen", tag='pf')
    def w2_touch(wv):
        L = p.newlabel("K1_T")
        e(f"s_cmp_eq_u32 s{sW}, {wv}")
        e(f"s_cbranch_scc0 {L}")
        e(f"v_min_u32 v{vXTA}, 323, v0")
        e(f"v_lshlrev_b32 v{vXTA}, 7, v{vXTA}")
        e(f"s_and_b32 s{sT5}, s{sMI}, 7")
        e(f"s_mul_i32 s{sT}, s{sFJ}, {288*1152}")
        e(f"s_mul_i32 s{sT4}, s{sT5}, {324*128}")
        e(f"s_add_u32 s{sT}, s{sT}, s{sT4}")
        p.vmem(f"buffer_load_dword v{vROW}, v{vXTA}, s[{SW2}:{SW2+3}], s{sT} offen", maybe=True)
        p.label(L)
    def w1_touch(wv):
        L = p.newlabel("K1_T")
        e(f"s_cmp_eq_u32 s{sW}, {wv}")
        e(f"s_cbranch_scc0 {L}")
        e(f"v_min_u32 v{vXTA}, 359, v0")
        e(f"v_mul_u32_u24 v{vROW}, 205, v{vXTA}")
        e(f"v_lshrrev_b32 v{vROW}, 10, v{vROW}")
        e(f"v_lshlrev_b32 v{vXTA}, 7, v{vXTA}")
        e(f"v_mul_u32_u24 v{vROW}, {9216-640}, v{vROW}")
        e(f"v_add_u32 v{vXTA}, v{vXTA}, v{vROW}")
        e(f"s_and_b32 s{sT5}, s{sMI}, 7")
        e(f"s_mul_i32 s{sT}, s{sT5}, {72*9216}")
        e(f"s_and_b32 s{sT4}, s{sT3}, 0xffffff80")
        e(f"s_add_u32 s{sT}, s{sT}, s{sT4}")
        p.vmem(f"buffer_load_dword v{vROW}, v{vXTA}, s[{SW1}:{SW1+3}], s{sT} offen", maybe=True)
        p.label(L)
    def touch(wv, which, tau, start, count):
        L = p.newlabel("K1_T")
        e(f"s_cmp_eq_u32 s{sW}, {wv}")
        e(f"s_cbranch_scc0 {L}")
        e(f"v_min_u32 v{vXTA}, {count-1}, v{vLANE}")
        e(f"s_and_b32 s{sT5}, s{sMI}, 7")
        if which == 1:
            e(f"v_mul_u32_u24 v{vXTA}, 9216, v{vXTA}")
            e(f"s_mul_i32 s{sT}, s{sT5}, {72*9216}")
            e(f"s_lshl_b32 s{sT4}, s{sT2}, 6"); e(f"s_add_u32 s{sT4}, s{sT4}, s{sT3}")
            e(f"s_add_u32 s{sT}, s{sT}, s{sT4}"); e(f"s_add_u32 s{sT}, s{sT}, {128*tau + start*9216}")
        else:
            e(f"v_lshlrev_b32 v{vXTA}, 7, v{vXTA}")
            e(f"s_mul_i32 s{sT}, s{sFJ}, {288*1152}")
            e(f"s_mul_i32 s{sT4}, s{sT5}, {324*128}")
            e(f"s_add_u32 s{sT}, s{sT}, s{sT4}"); e(f"s_add_u32 s{sT}, s{sT}, {128*start}")
        srd = SW1 if which == 1 else SW2
        p.vmem(f"buffer_load_dword v{vROW}, v{vXTA}, s[{srd}:{srd+3}], s{sT} offen", maybe=True)
        p.label(L)
    def touches(seg):
        o = []
        if W1T == 4 and T1S <= seg < T1S + 12:
            q = seg - T1S
            o.append(lambda: touch(seg % 8, 1, 1 + q // 4, 18 * (q % 4), 18))
        if W2T == 4 and T2S <= seg < T2S + T2N:
            c = 324 // T2N
            o.append(lambda: touch((seg + 4) % 8, 2, 0, c * (seg - T2S), c))
        return o
    e(f"v_bfe_u32 v{T[12]}, v{vLANE}, 1, 3")
    e(f"v_xor_b32 v{T[12]}, s{sW}, v{T[12]}")
    e(f"v_lshlrev_b32 v{T[12]}, 4, v{T[12]}")
    e(f"v_lshl_add_u32 v{T[12]}, v{vI}, 7, v{T[12]}")
    e(f"v_lshl_add_u32 v{T[12]}, v{vG}, 12, v{T[12]}")
    e(f"s_sub_u32 s51, s{sFJ}, 7")
    e(f"s_lshl_b32 s{sT}, s51, 14")
    e(f"v_add_u32 v{T[12]}, s{sT}, v{T[12]}")
    e(f"v_add_u32 v{T[13]}, 8, v{T[12]}")
    e(f"v_lshlrev_b32 v{T[14]}, 4, v{vLANE}")
    e(f"s_lshl_b32 s52, s51, 18"); e(f"s_lshl_b32 s{sT}, s{sW}, 15"); e(f"s_add_u32 s52, s52, s{sT}")
    e(f"s_lshl_b32 s{sT}, s{sMI}, 10"); e(f"s_add_u32 s52, s52, s{sT}"); e(f"s_add_u32 s52, s52, {X4_OFF}")
    e(f"s_add_u32 s53, s52, 16384")
    def w2_prefetch():
        e(f"v_min_u32 v{T[9]}, 323, v0")
        e(f"v_lshlrev_b32 v{T[9]}, 7, v{T[9]}")
        e(f"s_and_b32 s{sT5}, s{sMI}, 7")
        e(f"s_mul_i32 s{sT}, s{sFJ}, {288*1152}")
        e(f"s_mul_i32 s{sT4}, s{sT5}, {324*128}")
        e(f"s_add_u32 s{sT}, s{sT}, s{sT4}")
        p.vmem(f"buffer_load_dword v{T[8]}, v{T[9]}, s[{SW2}:{SW2+3}], s{sT} offen", tag='pf')
    XA = lambda j: SA + j
    e(f"v_and_b32 v{T[10]}, 31, v{vLANE}")
    e(f"v_bfe_u32 v{T[9]}, v{vLANE}, 1, 3")
    e(f"v_xor_b32 v{T[9]}, v{T[9]}, v{T[5]}")
    e(f"s_lshl_b32 s{sT}, s{sQI}, 5")
    e(f"v_add_u32 v{vROW}, s{sT}, v{T[10]}")
    e(f"v_lshlrev_b32 v{T[10]}, 7, v{vROW}")
    for j in range(6):
        e(f"s_mul_i32 s{sT}, s{sH}, 6"); e(f"s_add_u32 s{sT}, s{sT}, {j}")
        e(f"s_and_b32 s{sT4}, s{sT}, 3"); e(f"s_lshl_b32 s{sT4}, s{sT4}, 1")
        e(f"s_lshr_b32 s{sT}, s{sT}, 2"); e(f"s_lshl_b32 s{sT}, s{sT}, 14")
        e(f"v_xor_b32 v{T[11]}, s{sT4}, v{T[9]}")
        e(f"v_lshl_add_u32 v{T[11]}, v{T[11]}, 4, v{T[10]}")
        e(f"v_add_u32 v{XA(j)}, s{sT}, v{T[11]}")
    e(f"v_lshrrev_b32 v{T[9]}, 1, v{T[4]}")
    e(f"v_lshl_add_u32 v{T[9]}, v{vG}, 2, v{T[9]}")
    e(f"v_and_b32 v{T[10]}, 1, v{T[4]}")
    e(f"v_lshl_add_u32 v{T[9]}, v{T[10]}, 4, v{T[9]}")
    e(f"v_bfe_u32 v{T[10]}, v{vLANE}, 1, 1")
    e(f"s_and_b32 s{sT}, s{sW}, 6")
    e(f"v_or_b32 v{T[10]}, s{sT}, v{T[10]}")
    e(f"v_lshlrev_b32 v{T[11]}, 1, v{vG}")
    e(f"v_xor_b32 v{T[10]}, v{T[10]}, v{T[11]}")
    e(f"v_lshlrev_b32 v{T[9]}, 7, v{T[9]}")
    e(f"v_and_b32 v{T[11]}, 1, v{vLANE}")
    e(f"v_lshl_add_u32 v{T[9]}, v{T[11]}, 3, v{T[9]}")
    e(f"s_and_b32 s{sT}, s{sW}, 1"); e(f"s_lshl_b32 s{sT}, s{sT}, 13")
    e(f"s_lshl_b32 s{sT4}, s{sFJ}, 14"); e(f"s_add_u32 s{sT}, s{sT}, s{sT4}")
    e(f"v_add_u32 v{T[9]}, s{sT}, v{T[9]}")
    e(f"v_lshl_add_u32 v{vXTA}, v{T[10]}, 4, v{T[9]}")
    vXTB = SA + 6
    e(f"v_xor_b32 v{vXTB}, 16, v{vXTA}")
    ACC = [SA + 8, SA + 9, SA + 10]
    for a in ACC: e(f"v_mov_b32 v{a}, 0")
    for i in range(4): e(f"v_mov_b32 v{WF+i}, s{sONE}")

    D = [(('B', 0, 0), ('B', 0, 1)), (('8', 0), ('8', 1)), (('B', 0, 2), ('B', 0, 3)), (('B', 0, 4), ('B', 0, 5)), (('8', 2), None)]
    for tau in (1, 2, 3):
        for k in range(3): D.append((('B', tau, 2*k), ('B', tau, 2*k+1)))
    p2 = [('E', 0, 0), ('E', 0, 1), ('E', 1, 0), ('E', 1, 1), ('E', 0, 2), ('E', 1, 2)]
    for j in range(2, 9): p2 += [('E', j, k) for k in range(3)]
    for i in range(0, len(p2), 2): D.append((p2[i], p2[i+1] if i + 1 < len(p2) else None))
    uloc = {}
    for k, (a, b) in enumerate(D):
        uloc[a] = (k, 0)
        if b: uloc[b] = (k, 1)
    def uparams(u):
        if u[0] == 'B': return SW1, vOW1, 96 * u[2] * 9216 + 128 * u[1], sRP1, sRP1X, sRP1H
        if u[0] == '8': return SW1, vOW8, 192 * u[1] * 9216, sRP8, sRP8X, sRP8H
        return SW2, vOW2, 96 * u[2] * 1152 + 128 * u[1], (sRP2K0 if u[2] == 0 else sRP2), sRP2X, None
    def dma_double(k):
        ops = []
        lds0 = (k % 4) * 24576
        def one(m0r, m0i, sr_, base, srd, vo, maybe=False):
            e(f"s_add_u32 m0, s{m0r}, {m0i}")
            e(f"s_add_u32 s{sT}, s{sr_}, {base}")
            p.vmem(f"buffer_load_dwordx4 v{vo}, s[{srd}:{srd+3}], s{sT} offen lds", tag=('u', k), maybe=maybe)
        for half, u in enumerate(D[k]):
            if not u: continue
            srd, vo, base, r, rx, rh = uparams(u)
            ops.append(lambda srd=srd, vo=vo, base=base, r=r, half=half: one(sM0W, lds0 + half*12288, r, base, srd, vo))
        a, b = D[k]
        if b and a[0] != 'E':
            srd, vo, base, r, rx, rh = uparams(a)
            ops.append(lambda: one(sM0H, lds0, rh, base, srd, vo))
        else:
            for half, u in enumerate(D[k]):
                if not u: continue
                srd, vo, base, r, rx, rh = uparams(u)
                def extra(srd=srd, vo=vo, base=base, rx=rx, half=half):
                    L = p.newlabel("K1_X")
                    e(f"s_cmp_eq_u32 s{sH}, {half}")
                    e(f"s_cbranch_scc0 {L}")
                    one(sM0X, lds0 + half*12288, rx, base, srd, vo, maybe=True)
                    p.label(L)
                ops.append(extra)
        return ops

    if PRO: stamp("setup")
    for R in range(3):
        p.wait(vm=[('x', 3*R+2)], lg_all=True)
        e("s_barrier")
        stamp(f"xround{R}")
        for j in range(6):
            p.ds(f"ds_read_b128 {vr(Q(12*R+j), 4)}, v{XA(j)}", tag=('raw', R, j))
        if R == 1 or (R == 2 and not DL):
            for k in (2*(R-1), 2*(R-1)+1):
                for op in dma_double(k): op()
        if R < 2:
            for j in range(6): e(f"v_add_u32 v{XA(j)}, 49152, v{XA(j)}")
        L = p.newlabel("K1_XT")
        e(f"s_sub_u32 s{sT}, s{sFJ}, {3*R}")
        e(f"s_cmp_lt_u32 s{sT}, 3")
        e(f"s_cbranch_scc0 {L}")
        for job in range(2):
            e(f"ds_read_b64_tr_b16 {vr(vXT+4*job, 2)}, v{vXTA} offset:{4096*job}")
            e(f"ds_read_b64_tr_b16 {vr(vXT+4*job+2, 2)}, v{vXTB} offset:{4096*job+256}")
        e("s_waitcnt lgkmcnt(0)")
        p.label(L)
        L = p.newlabel("K1_X4")
        e(f"s_sub_u32 s{sT}, s51, {3*R}")
        e(f"s_cmp_lt_u32 s{sT}, 3")
        e(f"s_cbranch_scc0 {L}")
        e(f"ds_read2st64_b64 {vr(SC,4)}, v{T[12]} offset0:0 offset1:4")
        e(f"ds_read2st64_b64 {vr(SC+4,4)}, v{T[13]} offset0:0 offset1:4")
        e("s_waitcnt lgkmcnt(0)")
        p.vmem(f"buffer_store_dwordx4 {vr(SC,4)}, v{T[14]}, s[{SWS}:{SWS+3}], s52 offen {STM}", maybe=True)
        p.vmem(f"buffer_store_dwordx4 {vr(SC+4,4)}, v{T[14]}, s[{SWS}:{SWS+3}], s53 offen {STM}", maybe=True)
        p.label(L)
        for j in range(6):
            p.wait(lg=[('raw', R, j)])
            first = (R == 0 and j == 0)
            e(f"v_mfma_f32_32x32x16_bf16 {vr(SB,16)}, {vr(WF,4)}, {vr(Q(12*R+j),4)}, " + ("0" if first else vr(SB,16)))
            for d in range(4):
                x = Q(12*R+j) + d
                e(f"v_dot2_f32_bf16 v{ACC[1+(d&1)]}, v{x}, v{x}, v{ACC[1+(d&1)]}")
        if R == 1 and W2T == 0: w2_prefetch()
    p.wait(vm=['bias'])
    e(f"v_lshlrev_b32 v{T[7]}, 16, v{T[7]}")
    e(f"v_mov_b32 v{T[5]}, {fhex(ALPHA)}")
    e(f"v_mov_b32 v{T[4]}, {fhex(ALPHA*0.5)}")
    e(f"v_cmp_gt_u32 vcc, 32, v0")
    e(f"v_min_u32 v{T[6]}, 287, v0")
    e(f"v_lshlrev_b32 v{T[6]}, 2, v{T[6]}")
    e(f"v_cndmask_b32 v{T[5]}, v{T[5]}, v{T[4]}, vcc")
    e(f"v_add_u32 v{T[6]}, {BIAS}, v{T[6]}")
    e(f"v_mul_f32 v{T[7]}, v{T[7]}, v{T[5]}")
    e(f"v_cmp_gt_u32 vcc, 288, v0")
    e(f"s_and_saveexec_b64 s[54:55], vcc")
    p.ds(f"ds_write_b32 v{T[6]}, v{T[7]}")
    e(f"s_mov_b64 exec, s[54:55]")
    e(f"v_add_f32 v{ACC[1]}, v{ACC[1]}, v{ACC[2]}")
    e(f"v_mov_b32 v{T[0]}, v{ACC[1]}")
    e(f"s_lshl_b32 s{sT}, s{sH}, 3"); e(f"s_add_u32 s{sT}, s{sT}, {STAT}")
    e(f"v_lshlrev_b32 v{T[4]}, 4, v{vROW}")
    e(f"v_permlane32_swap_b32 v{ACC[1]}, v{T[0]}")
    e(f"v_add_u32 v{T[5]}, s{sT}, v{T[4]}")
    e(f"v_mov_b32 v{ACC[0]}, v{SB}")
    e(f"v_add_f32 v{ACC[1]}, v{ACC[1]}, v{T[0]}")
    p.ds(f"ds_write_b64 v{T[5]}, v[{ACC[0]}:{ACC[1]}]")
    e(f"v_add_u32 v{T[4]}, {STAT}, v{T[4]}")
    p.wait(lg_all=True)
    e("s_barrier")
    stamp("statbar")
    p.ds(f"ds_read_b128 {vr(T[8], 4)}, v{T[4]}", tag='st')
    def bias_init(S, tau):
        if tau == 8: return [lambda gg=gg: p.ds(f"ds_read_b128 {vr(S + gg*4, 4)}, v{vBI8} offset:{gg*32}", tag=('bias', tau)) for gg in range(4)]
        return [lambda gg=gg: p.ds(f"ds_read_b128 {vr(S + gg*4, 4)}, v{vBI} offset:{(32+64*tau+8*gg)*4}", tag=('bias', tau)) for gg in range(4)]
    for op in bias_init(SA, 0) + bias_init(SB, 8): op()
    p.wait(lg=['st'])
    inv = 1.0 / 576.0
    b = T[8]
    for s_ in [f"v_add_f32 v{b}, v{b}, v{b+2}", f"v_add_f32 v{b+1}, v{b+1}, v{b+3}",
            f"v_mul_f32 v{b}, {fhex(inv)}, v{b}", f"v_mul_f32 v{b+1}, {fhex(inv)}, v{b+1}",
            f"v_fma_f32 v{b+1}, -v{b}, v{b}, v{b+1}", f"v_max_f32 v{b+1}, 0, v{b+1}",
            f"v_cvt_pk_bf16_f32 v{b+2}, v{b}, v{b+1}", f"v_lshlrev_b32 v{b}, 16, v{b+2}",
            f"v_and_b32 v{b+1}, s{sMASK}, v{b+2}", f"v_add_f32 v{b+1}, {fhex(1e-5)}, v{b+1}",
            f"v_cvt_pk_bf16_f32 v{b+1}, v{b+1}, v{b+1}", f"v_and_b32 v{b+1}, s{sMASK}, v{b+1}",
            f"v_sqrt_f32 v{b+1}, v{b+1}", "s_nop 0", f"v_cvt_pk_bf16_f32 v{b+1}, v{b+1}, v{b+1}",
            f"v_and_b32 v{b+1}, s{sMASK}, v{b+1}", f"v_rcp_f32 v{b+2}, v{b+1}",
            f"v_lshlrev_b32 v{T[4]}, 3, v{vROW}",
            f"v_mul_f32 v{b+3}, -v{b}, v{b+2}", f"v_add_u32 v{T[4]}, {RCT}, v{T[4]}",
            f"v_mul_f32 v{vR}, s{sAL}, v{b+2}", f"v_mul_f32 v{vC}, s{sAL}, v{b+3}"]: e(s_)
    p.ds(f"ds_write_b64 v{T[4]}, v[{b+2}:{b+3}]", tag='w')

    seq = []
    def G(k, areg, imm, d2, mfs, need=()):
        seq.append(dict(kind='G', unit=k, areg=areg, imm=imm, d2=d2, mf=mfs, need=list(need)))
    def BAR(bg=(), pre=()):
        seq.append(dict(kind='BAR', bg=list(bg), first=list(pre)))
    def p1_group(tau, S, Dk, own, j, need=()):
        k = uloc[('B', tau, 2*Dk)][0]; slot = k % 4
        q = Q(12*Dk + 6*own + j)
        G(k, vA[('n', own, slot >> 1)], (slot & 1) * 24576 + j * 2048, 512,
          [lambda wf: f"v_mfma_f32_32x32x16_bf16 {vr(S,16)}, {vr(wf,4)}, {vr(q,4)}, {vr(S,16)}"], need)
    def b8_group(Dk, j, need=()):
        k, half = uloc[('8', Dk)]; slot = k % 4
        assert slot < 2
        q = Q(12*Dk + j)
        G(k, vA['8'], slot * 24576 + half * 12288 + j * 2048, 512,
          [lambda wf: f"v_mfma_f32_32x32x16_bf16 {vr(SB,16)}, {vr(wf,4)}, {vr(q,4)}, {vr(SB,16)}"], need)
    def norm_ops(slot0, buf):
        ops = []
        for sg in range(2):
            q = Q(slot0 + sg)
            tt = [TMP + 8*sg + i for i in range(8)]
            for d in range(4):
                ops.append(lambda d=d, q=q, tt=tt: e(f"v_lshlrev_b32 v{tt[2*d]}, 16, v{q+d}"))
                ops.append(lambda d=d, q=q, tt=tt: e(f"v_and_b32 v{tt[2*d+1]}, s{sMASK}, v{q+d}"))
            for d in range(8):
                ops.append(lambda d=d, tt=tt: e(f"v_fma_f32 v{tt[d]}, v{tt[d]}, v{vR}, v{vC}"))
            for d in range(4):
                ops.append(lambda d=d, q=q, tt=tt: e(f"v_cvt_pk_bf16_f32 v{q+d}, v{tt[2*d]}, v{tt[2*d+1]}"))
            ops.append(lambda q=q, sg=sg: p.ds(f"ds_write_b128 v{vPW}, {vr(q,4)} offset:{buf*16384+sg*1024}", tag='w'))
        return ops
    def gelu_ops(regs4, dst2, tbase):
        ops = []
        tt = [tbase + i for i in range(4)]
        for i in range(4): ops.append(lambda i=i: e(f"v_fmaak_f32 v{tt[i]}, v{regs4+i}, v{regs4+i}, {fhex(CA)}"))
        for i in range(4): ops.append(lambda i=i: e(f"v_mul_f32 v{tt[i]}, v{regs4+i}, v{tt[i]}"))
        for i in range(4): ops.append(lambda i=i: e(f"v_exp_f32 v{tt[i]}, -v{tt[i]}"))
        for i in range(4): ops.append(lambda i=i: e(f"v_fma_f32 v{tt[i]}, v{tt[i]}, s{sAL}, s{sAL}"))
        for i in range(4): ops.append(lambda i=i: e(f"v_rcp_f32 v{tt[i]}, v{tt[i]}"))
        for i in range(4): ops.append(lambda i=i: e(f"v_mul_f32 v{tt[i]}, v{regs4+i}, v{tt[i]}"))
        for i in range(2): ops.append(lambda i=i: e(f"v_cvt_pk_bf16_f32 v{dst2+i}, v{tt[2*i]}, v{tt[2*i+1]}"))
        return ops
    def gelu_block(S, tau):
        ops = []
        slot = (1 + 2*tau) if tau < 3 else 0
        for kap in range(2):
            pw = TMP + 8 + 4*kap
            for t in range(2):
                ops += gelu_ops(S + (kap*2+t)*4, pw + 2*t, TMP + 4*t)
            ops.append(lambda pw=pw, kap=kap: p.ds(f"ds_write_b128 v{vPW}, {vr(pw,4)} offset:{slot*8192+kap*1024}", tag='w'))
        return ops
    def s8_write():
        return [lambda gg=gg: p.ds(f"ds_write_b128 v{vPW}, {vr(SB+4*gg,4)} offset:{24576 + (gg>>1)*16384 + (gg&1)*1024}", tag='w') for gg in range(4)]
    def s8_read():
        ops = []
        for hh in range(2):
            for c in range(2):
                dst = (SC if hh == 0 else vXT) + 4*c
                ops.append(lambda hh=hh, c=c, dst=dst: p.ds(f"ds_read_b128 {vr(dst,4)}, v{v8R} offset:{24576 + hh*8192 + c*1024}", tag='s8'))
        return ops
    def gelu_b8():
        ops = [lambda: p.wait(lg=['s8'])]
        for i in range(8): ops.append(lambda i=i: e(f"v_add_f32 v{SC+i}, v{SC+i}, v{vXT+i}"))
        pw = TMP + 8
        for t in range(2): ops += gelu_ops(SC + 4*t, pw + 2*t, TMP + 4*t)
        ops.append(lambda: p.ds(f"ds_write_b128 v{vP8}, {vr(pw,4)}", tag='w'))
        return ops
    def pread(kk):
        slot = kk if kk < 7 else kk - 7
        return [lambda sg=sg: p.ds(f"ds_read_b128 {vr(Q(2*kk+sg),4)}, v{vPR} offset:{slot*8192+sg*256}", tag=('P', kk)) for sg in range(2)]
    def xt_job():
        L = p.newlabel("K1_XJ")
        e(f"s_cmp_lt_u32 s{sFJ}, 9")
        e(f"s_cbranch_scc0 {L}")
        e(f"s_lshl_b32 s{sT}, s{sFJ}, 6"); e(f"s_and_b32 s{sT4}, s{sW}, 6"); e(f"s_lshl_b32 s{sT4}, s{sT4}, 3")
        e(f"s_add_u32 s{sT}, s{sT}, s{sT4}"); e(f"s_lshl_b32 s{sT}, s{sT}, 12")
        e(f"s_lshl_b32 s{sT4}, s{sMI}, 8"); e(f"s_add_u32 s{sT}, s{sT}, s{sT4}")
        e(f"s_and_b32 s{sT4}, s{sW}, 1"); e(f"s_lshl_b32 s{sT5}, s{sT4}, 7"); e(f"s_add_u32 s{sT}, s{sT}, s{sT5}")
        e(f"s_add_u32 s{sT}, s{sT}, {XNT_OFF}")
        e(f"s_lshl_b32 s{sT4}, s{sT4}, 9"); e(f"s_add_u32 s{sT4}, s{sT4}, {RCT}")
        va, vb, v1_, v2_ = SC, SC+1, SC+2, SC+3
        e(f"v_lshlrev_b32 v{vb}, 5, v{vG}")
        e(f"v_add_u32 v{vb}, s{sT4}, v{vb}")
        e(f"s_add_u32 s{sT5}, s{sXM}, {PREG+40960}")
        e(f"v_lshlrev_b32 v{va}, 4, v{vG}")
        e(f"v_lshl_add_u32 v{va}, v{vI}, 7, v{va}")
        e(f"v_add_u32 v{va}, s{sT5}, v{va}")
        for job in range(2):
            x = vXT + 4*job
            for q in range(4):
                e(f"ds_read_b128 {vr(TMP+4*q,4)}, v{vb} offset:{256*job+128*(q>>1)+16*(q&1)}")
            e("s_waitcnt lgkmcnt(0)")
            for d in range(4):
                e(f"v_lshlrev_b32 v{v1_}, 16, v{x+d}")
                e(f"v_and_b32 v{v2_}, s{sMASK}, v{x+d}")
                e(f"v_fma_f32 v{v1_}, v{v1_}, v{TMP+2*d}, v{TMP+2*d+1}")
                e(f"v_fma_f32 v{v2_}, v{v2_}, v{TMP+8+2*d}, v{TMP+8+2*d+1}")
                e(f"v_cvt_pk_bf16_f32 v{x+d}, v{v1_}, v{v2_}")
            e(f"ds_write_b128 v{va}, {vr(x,4)} offset:{64*job}")
        e(f"v_lshlrev_b32 v{va}, 4, v{vLANE}")
        e(f"v_add_u32 v{va}, s{sT5}, v{va}")
        e(f"v_lshrrev_b32 v{vb}, 3, v{vLANE}")
        e(f"v_lshlrev_b32 v{vb}, 12, v{vb}")
        e(f"v_and_b32 v{v1_}, 7, v{vLANE}")
        e(f"v_lshl_add_u32 v{vb}, v{v1_}, 4, v{vb}")
        e("s_waitcnt lgkmcnt(0)")
        e(f"ds_read_b128 {vr(TMP,4)}, v{va}")
        e(f"ds_read_b128 {vr(TMP+4,4)}, v{va} offset:1024")
        e(f"s_add_u32 s{sT4}, s{sT}, {8*4096}")
        e("s_waitcnt lgkmcnt(0)")
        p.vmem(f"buffer_store_dwordx4 {vr(TMP,4)}, v{vb}, s[{SWS}:{SWS+3}], s{sT} offen {STM}", maybe=True)
        p.vmem(f"buffer_store_dwordx4 {vr(TMP+4,4)}, v{vb}, s[{SWS}:{SWS+3}], s{sT4} offen {STM}", maybe=True)
        e("s_nop 1")
        p.label(L)

    def xt_ops():
        ops = []
        A = lambda s_: ops.append(lambda: e(s_))
        va, vb, v1_, v2_, vc, vd = SC, SC+1, SC+2, SC+3, SC+4, SC+5
        def setup():
            e(f"s_lshl_b32 s51, s{sFJ}, 6"); e(f"s_and_b32 s52, s{sW}, 6"); e(f"s_lshl_b32 s52, s52, 3")
            e(f"s_add_u32 s51, s51, s52"); e(f"s_lshl_b32 s51, s51, 12")
            e(f"s_lshl_b32 s52, s{sMI}, 8"); e(f"s_add_u32 s51, s51, s52")
            e(f"s_and_b32 s52, s{sW}, 1"); e(f"s_lshl_b32 s53, s52, 7"); e(f"s_add_u32 s51, s51, s53")
            e(f"s_add_u32 s51, s51, {XNT_OFF}")
            e(f"s_lshl_b32 s52, s52, 9"); e(f"s_add_u32 s52, s52, {RCT}")
            e(f"v_lshlrev_b32 v{vb}, 5, v{vG}")
            e(f"v_add_u32 v{vb}, s52, v{vb}")
            e(f"s_add_u32 s53, s{sXM}, {PREG+40960}")
            for q in range(4):
                p.ds(f"ds_read_b128 {vr(TMP+4*q,4)}, v{vb} offset:{128*(q>>1)+16*(q&1)}", tag='xr0')
        ops.append(setup)
        A(f"v_lshlrev_b32 v{va}, 4, v{vG}")
        A(f"v_lshl_add_u32 v{va}, v{vI}, 7, v{va}")
        A(f"v_add_u32 v{va}, s53, v{va}")
        A(f"v_lshlrev_b32 v{vc}, 4, v{vLANE}")
        A(f"v_add_u32 v{vc}, s53, v{vc}")
        A(f"v_lshrrev_b32 v{vd}, 3, v{vLANE}")
        A(f"v_lshlrev_b32 v{vd}, 12, v{vd}")
        A(f"v_and_b32 v{v1_}, 7, v{vLANE}")
        A(f"v_lshl_add_u32 v{vd}, v{v1_}, 4, v{vd}")
        A(f"s_cmp_lt_u32 s{sFJ}, 9\n    s_cselect_b32 s52, 0, 0x10000000\n    v_add_u32 v{vd}, s52, v{vd}\n    s_add_u32 s52, s51, {8*4096}")
        for job in range(2):
            x = vXT + 4*job
            ops.append(lambda job=job: p.wait(lg=[f'xr{job}']))
            for d in range(4):
                A(f"v_lshlrev_b32 v{v1_}, 16, v{x+d}")
                A(f"v_and_b32 v{v2_}, s{sMASK}, v{x+d}")
                A(f"v_fma_f32 v{v1_}, v{v1_}, v{TMP+2*d}, v{TMP+2*d+1}")
                A(f"v_fma_f32 v{v2_}, v{v2_}, v{TMP+8+2*d}, v{TMP+8+2*d+1}")
                A(f"v_cvt_pk_bf16_f32 v{x+d}, v{v1_}, v{v2_}")
            def wr(job=job, x=x):
                p.ds(f"ds_write_b128 v{va}, {vr(x,4)} offset:{64*job}")
                if job == 0:
                    for q in range(4):
                        p.ds(f"ds_read_b128 {vr(TMP+4*q,4)}, v{vb} offset:{256+128*(q>>1)+16*(q&1)}", tag='xr1')
                else:
                    p.ds(f"ds_read_b128 {vr(TMP,4)}, v{vc}", tag='xo')
                    p.ds(f"ds_read_b128 {vr(TMP+4,4)}, v{vc} offset:1024", tag='xo')
            ops.append(wr)
        def st():
            p.wait(lg=['xo'])
            p.vmem(f"buffer_store_dwordx4 {vr(TMP,4)}, v{vd}, s[{SWS}:{SWS+3}], s51 offen")
            p.vmem(f"buffer_store_dwordx4 {vr(TMP+4,4)}, v{vd}, s[{SWS}:{SWS+3}], s52 offen")
            e("s_nop 1")
        ops.append(st)
        return ops
    for op in norm_ops(0, 0): op()
    for r in range(9):
        Dk, j = divmod(r, 3)
        pre = [lambda sg=sg, r=r, Dk=Dk, j=j: p.ds(f"ds_read_b128 {vr(Q(12*Dk+6+2*j+sg),4)}, v{vXR} offset:{(r%2)*16384+sg*1024}", tag=('oth', r)) for sg in range(2)]
        bg = []
        if r + 1 < 9:
            Dn, jn = divmod(r + 1, 3)
            bg = norm_ops(12*Dn + 2*jn, (r + 1) % 2)
            if W1T == 2 and r < 3: bg = [lambda wv=2*r: w1_touch(wv), lambda wv=2*r+1: w1_touch(wv)] + bg
            if W1T == 3 and r < 6: bg = [lambda wv=r: w1_touch(wv)] + bg
        else:
            bg = xt_ops() if XI else [xt_job]
        if W2T == 2 and r >= 3: bg = bg[:6] + [lambda wv=r-3: w2_touch(wv)] + bg[6:]
        bg = bg[:8] + touches(r) + bg[8:]
        BAR(bg=bg, pre=pre)
        nd = [('bias', 0), ('bias', 8)] if r == 0 else []
        for sg in range(2):
            b8_group(Dk, 2*j+sg, nd); p1_group(0, SA, Dk, 0, 2*j+sg, nd)
        for sg in range(2): p1_group(0, SA, Dk, 1, 2*j+sg, [('oth', r)])
    Sbuf = {0: SA, 1: SB, 2: SA, 3: SB}
    for tau in (1, 2, 3):
        gl = gelu_block(Sbuf[tau-1], tau-1)
        n3 = (len(gl) + 2) // 3
        for Dk in range(3):
            pre = []
            if tau == 1 and Dk == 0: pre = s8_write() + bias_init(SB, 1)
            bg = gl[Dk*n3:(Dk+1)*n3]
            if W2T == 1 and tau < 3: bg = bg[:6] + [lambda wv=3*(tau-1)+Dk: w2_touch(wv)] + bg[6:]
            if tau == 1 and Dk == 1: bg = s8_read() + bg
            if tau == 3 and Dk == 0: bg = gelu_b8() + bg
            if Dk == 2 and tau < 3: bg = bg + bias_init(Sbuf[tau+1], tau+1)
            if tau == 3 and Dk == 1: bg = pread(1) + pread(2) + pread(0) + bg
            if tau == 3 and Dk == 2: bg = pread(3) + pread(4) + bg
            bg = bg[:8] + touches(6 + 3*tau + Dk) + bg[8:]
            BAR(bg=bg, pre=pre)
            for own in range(2):
                for j in range(6):
                    p1_group(tau, Sbuf[tau], Dk, own, j, [('bias', tau)] if (Dk == 0 and own == 0 and j == 0) else [])
    OB = {0: Q(18), 1: Q(22)}
    ET = Q(26)
    def epi(j):
        O = OB[j % 2]
        ops = []
        for t in range(2):
            dst = ET + 4*t + 8*(j % 2)
            for sg in range(2):
                for i in range(2):
                    ops.append(lambda t=t, sg=sg, i=i, dst=dst: e(f"v_cvt_pk_bf16_f32 v{dst+2*sg+i}, v{O+(t*2+sg)*4+2*i}, v{O+(t*2+sg)*4+2*i+1}"))
            def st(t=t, dst=dst):
                e(f"s_mov_b32 s{sT}, {(16*j+4*t)*16384}")
                p.vmem(f"buffer_store_dwordx4 {vr(dst,4)}, v{vOO}, s[{SWS}:{SWS+3}], s{sT} offen {STM}")
            if not NOST: ops.append(st)
        return ops
    gl3 = gelu_block(SB, 3)
    for i, u in enumerate(p2):
        _, j, k = u
        kd, half = uloc[u]
        if half == 0:
            bg = []; pre = []
            if i == 0: pre = pread(5) + pread(6); bg = gl3[:len(gl3)//2]
            if i == 2: bg = gl3[len(gl3)//2:]
            if i == 4: pre = pread(7) + pread(8)
            BAR(bg=bg, pre=pre)
        slot = kd % 4
        O = OB[j % 2]
        for jj in range(3):
            kk = 3*k + jj
            for t in range(2):
                first = (kk == 0)
                mfs = [lambda wf, t=t, sg=sg, kk=kk, first=first, O=O: f"v_mfma_f32_16x16x32_bf16 {vr(O+(t*2+sg)*4,4)}, {vr(wf,4)}, {vr(Q(2*kk+sg),4)}, " + ("0" if first else vr(O+(t*2+sg)*4,4)) for sg in range(2)]
                G(kd, vA[('p', t, slot >> 1)], (slot & 1) * 24576 + half * 12288 + jj * 4096, 2048, mfs, [('P', kk)])
        if k == 2:
            seq.append(dict(kind='EPI', ops=epi(j)))
    gidx = [i for i, s in enumerate(seq) if s['kind'] == 'G']
    pos_of_g = {g: n for n, g in enumerate(gidx)}
    bars = [i for i, s in enumerate(seq) if s['kind'] == 'BAR']
    first_read_pos = {}; last_use = {}
    for n, g in enumerate(gidx):
        k = seq[g]['unit']
        rp = gidx[n - RA] if n - RA >= 0 else -1
        first_read_pos.setdefault(k, rp)
        last_use[k] = g
    land = {}; rel = {}
    for k in first_read_pos:
        prev = [b for b in bars if b < first_read_pos[k]]
        land.setdefault(prev[-1] if prev else bars[0], []).append(k)
        nxt = [b for b in bars if b > last_use[k]]
        if nxt and k + 4 < len(D): rel.setdefault(nxt[0], []).append(k + 4)
    if DL:
        rel.setdefault(bars[0], []).append(2)
        rel.setdefault(bars[DL-1], []).append(3)
    wf_of = {}
    def issue_reads(n):
        if n >= len(gidx): return
        s = seq[gidx[n]]
        wf = WF + 4 * (n % NWF)
        wf_of[n] = wf
        if NOREAD: return
        p.ds(f"ds_read_b64_tr_b16 {vr(wf,2)}, v{s['areg']} offset:{s['imm']}", tag=('wf', n))
        p.ds(f"ds_read_b64_tr_b16 {vr(wf+2,2)}, v{s['areg']} offset:{s['imm']+s['d2']}", tag=('wf', n))
    bgq = []
    def groups_left(i):
        c = 0
        for s in seq[i:]:
            if s['kind'] == 'BAR': break
            if s['kind'] == 'G': c += 1
        return c
    delay = []
    for i, s in enumerate(seq):
        if s['kind'] == 'EPI':
            delay.append([3, s['ops']])
        elif s['kind'] == 'BAR':
            for op in bgq: op()
            p.wait(vm=[('u', k) for k in land.get(i, [])], lg=['w'])
            if not NOBAR: e("s_barrier")
            bi = bars.index(i)
            if bi in ((0, 3, 6, 9, 12, 15, 18, 21, 24, 27, 30) if PRO else (0, 1, 3, 6, 9, 10, 12, 15, 18, 19, 20, 21, 24, 27, 30)): stamp(f"bar{bi}")
            if i == bars[0]:
                for n in range(RA): issue_reads(n)
            if bi == 9: e("s_nop 7")
            for op in s['first']: op()
            dm = []
            for k in rel.get(i, []):
                if not NODMA: dm += dma_double(k)
            bgq = []
            b = [] if NOBG else list(s['bg'])
            step = max(1, len(b) // (len(dm) + 1)) if dm else 0
            while dm or b:
                if dm: bgq.append(dm.pop(0))
                take = b[:step] if dm else b
                bgq += take; b = b[len(take):]
        else:
            n = pos_of_g[i]
            left = groups_left(i)
            if seq[i-1]['kind'] == 'BAR': segn = left
            done = segn - left
            if PRIO and (done == 0 or (done * 4) // segn != ((done - 1) * 4) // segn):
                e(f"s_setprio {3 - (done * 4) // segn}")
            left = max(left - FRONT, 1)
            for dl in delay: dl[0] -= 1
            while delay and delay[0][0] <= 0: bgq += delay.pop(0)[1]
            k = -(-len(bgq) // left)
            p.wait(lg=[('wf', n)] + s['need'])
            nm = len(s['mf'])
            for mi_, mf in enumerate(s['mf']):
                e(mf(wf_of[n]))
                if mi_ == 0: issue_reads(n + RA)
                lo = (k * mi_) // nm; hi = (k * (mi_ + 1)) // nm
                for op in bgq[lo:hi]: op()
            bgq = bgq[k:]
    e("s_nop 7")
    for op in bgq: op()
    for dl in delay:
        for op in dl[1]: op()
    if DIAG:
        stamp("lastissue")
        e("s_waitcnt vmcnt(0)")
        stamp("end")
        e("s_memrealtime s[100:101]")
        e("s_waitcnt lgkmcnt(0)")
        e(f"v_writelane_b32 v{TMP}, s100, 40")
        for i in range(len(stamps)):
            e(f"s_sub_u32 s{sT}, s{56+2*i}, s56")
            e(f"v_writelane_b32 v{TMP}, s{sT}, {i}")
        e(f"s_lshl_b32 s{sT}, s2, 3"); e(f"s_add_u32 s{sT}, s{sT}, s{sW}"); e(f"s_lshl_b32 s{sT}, s{sT}, 8")
        e(f"s_add_u32 s{sT}, s{sT}, 0x4000000")
        e(f"v_lshlrev_b32 v{TMP+1}, 2, v{vLANE}")
        e(f"buffer_store_dword v{TMP}, v{TMP+1}, s[{SWS}:{SWS+3}], s{sT} offen")
        open("stamps.txt", "w").write(" ".join(stamps))
    p.label("K1_END")
    e("s_endpgm")
    return p.text()
```

```python
from asmlib import *
import math, os
DIAG = int(os.environ.get("DIAG", "0")); PRO = int(os.environ.get("PRO", "0"))
NODMA = int(os.environ.get("NODMA", "0")); NOREAD = int(os.environ.get("NOREAD", "0")); NOST = int(os.environ.get("NOST", "0"))
NOBAR = int(os.environ.get("NOBAR", "0")); NOBG = int(os.environ.get("NOBG", "0"))
PRIO = int(os.environ.get("PRIO", "0")); FRONT = int(os.environ.get("FRONT", "1")); MAP = 1
RA = int(os.environ.get("RA", "4"))

PART_OFF = 0
X4_OFF = 37748736
XNT_OFF = 40108032
KT_OFF = 42467328
KSPL = [int(c) for c in os.environ.get('KSPL', '7010')]
LOG2E = math.log2(math.e)
TW = int(os.environ.get("TW", "0"))
T1S = int(os.environ.get("T1S", "0")); T2S = int(os.environ.get("T2S", "4")); T2N = int(os.environ.get("T2N", "12"))
STM = os.environ.get("STM", "sc1")
KB = int(os.environ.get("KB", "1"))
DL = int(os.environ.get("DL", "1")); XI = int(os.environ.get("XI", "0"))
W1T = int(os.environ.get("W1T", "2")); W2T = int(os.environ.get("W2T", "1"))
RING = 0; PREG = 98304; STAT = 155648; RCT = 157696; BIAS = 158720
SX, SW1, SW2, SWS, SB1 = 4, 8, 12, 16, 20
sW, sH, sQI, sFJ, sMI = 24, 25, 26, 27, 28
sRP1, sRP1X, sRP8, sRP8X, sRP2, sRP2K0, sRP2X, sM0W, sM0X, sT = 29, 30, 31, 32, 33, 34, 35, 36, 37, 38
sT2, sXS, sXM, sT3, sONE, sMASK, sT4, sT5, sAL = 39, 40, 41, 42, 43, 44, 45, 46, 47
sRP1H, sRP8H, sM0H = 48, 49, 50
vLANE, vG, vI = 1, 2, 3
vA = {}
n = 4
for own in (0, 1):
    for hi in (0, 1):
        vA[('n', own, hi)] = n; n += 1
vA['8'] = 8
for t in (0, 1):
    for hi in (0, 1):
        vA[('p', t, hi)] = 9 + 2*t + hi
vOW1, vOW8, vOW2 = 13, 14, 15
vPW, vPR, vBI, vBI8, vOO, vXR, vR, vC, v8R, vP8 = 16, 17, 18, 19, 20, 21, 22, 23, 24, 25
vXT = 26
TMP = 34
WF = 50
NWF = 5
vROW, vXTA = 70, 71
SB = 72; SC = 88; SA = 96
QB = 112
def Q(slot): return QB + slot * 4
C0 = -2.0 * 0.7978845608028654 * math.log2(math.e)
C1 = C0 * 0.044715
ALPHA = (-C1) ** (1.0 / 3.0)
CA = -C0 / ALPHA

def gen():
    p = Prog()
    e = p.emit
    stamps = []
    def stamp(name):
        if DIAG and len(stamps) < 13:
            e(f"s_memtime s[{56+2*len(stamps)}:{57+2*len(stamps)}]")
            stamps.append(name)
    T = [TMP + i for i in range(16)]
    e("s_cmp_ge_u32 s2, 256")
    e("s_cbranch_scc1 K1_END")
    stamp("start")
    e("s_load_dwordx2 s[4:5], s[0:1], 0")
    e("s_load_dwordx4 s[48:51], s[0:1], 80")
    e("s_load_dwordx2 s[12:13], s[0:1], 96")
    e("s_load_dwordx2 s[16:17], s[0:1], 128")
    e("s_load_dwordx16 s[84:99], s[0:1], 8")
    e(f"v_lshrrev_b32 v{T[0]}, 6, v0")
    e(f"v_and_b32 v{vLANE}, 63, v0")
    e(f"v_readfirstlane_b32 s{sW}, v{T[0]}")
    e(f"v_lshrrev_b32 v{vG}, 4, v{vLANE}")
    e(f"v_and_b32 v{vI}, 15, v{vLANE}")
    nb = 1 + MAP
    e("s_and_b32 s3, s2, 7")
    e(f"s_lshr_b32 s{sMI}, s2, 3")
    e(f"s_and_b32 s{sFJ}, s{sMI}, {(1<<nb)-1}")
    e(f"s_lshr_b32 s{sT}, s3, {MAP}")
    e(f"s_lshl_b32 s{sT}, s{sT}, {nb}")
    e(f"s_add_u32 s{sFJ}, s{sFJ}, s{sT}")
    e(f"s_lshr_b32 s{sMI}, s{sMI}, {nb}")
    e(f"s_and_b32 s3, s3, {(1<<MAP)-1}")
    e(f"s_lshl_b32 s3, s3, {4-MAP}")
    e(f"s_add_u32 s{sMI}, s{sMI}, s3")
    e(f"s_lshr_b32 s{sH}, s{sW}, 2")
    e(f"s_and_b32 s{sQI}, s{sW}, 3")
    e(f"s_mov_b32 s{sONE}, 0x3f803f80")
    e(f"s_mov_b32 s{sMASK}, 0xffff0000")
    e(f"s_mov_b32 s{sAL}, {fhex(ALPHA)}")
    e(f"v_lshrrev_b32 v{T[2]}, 3, v{vLANE}")
    e(f"v_and_b32 v{T[3]}, 7, v{vLANE}")
    e(f"v_xor_b32 v{T[4]}, v{vG}, v{T[3]}")
    e(f"v_mul_u32_u24 v{T[5]}, 2304, v{T[2]}")
    e(f"v_lshl_add_u32 v{T[0]}, v{T[4]}, 4, v{T[5]}")
    e(f"v_xor_b32 v{T[1]}, 64, v{T[0]}")
    e(f"s_lshl_b32 s{sXS}, s{sMI}, 7")
    e(f"s_lshr_b32 s{sT}, s{sW}, 1"); e(f"s_lshl_b32 s{sT}, s{sT}, 5"); e(f"s_add_u32 s{sXS}, s{sXS}, s{sT}")
    e(f"s_and_b32 s{sT}, s{sW}, 1"); e(f"s_add_u32 s{sXS}, s{sXS}, s{sT}")
    e(f"s_mul_i32 s{sXS}, s{sXS}, 1152")
    e(f"s_lshl_b32 s{sXM}, s{sW}, 11")
    e(f"v_subrev_u32 v{T[9]}, 192, v0")
    e(f"v_min_u32 v{T[9]}, 287, v{T[9]}")
    e(f"v_lshlrev_b32 v{T[9]}, 7, v{T[9]}")
    e(f"s_and_b32 s{sT4}, s{sFJ}, 3"); e(f"s_mul_i32 s{sT4}, s{sT4}, {288*128}")
    e(f"s_mul_i32 s{sT5}, s{sMI}, {128*1152}"); e(f"s_add_u32 s{sT4}, s{sT4}, s{sT5}")
    e(f"s_getpc_b64 s[52:53]")
    e(f"s_lshl_b32 s{sT5}, s{sH}, 6")
    e(f"v_add_u32 v{T[10]}, s{sT5}, v{vLANE}")
    e("s_waitcnt lgkmcnt(0)")
    if PRO: stamp("karg")
    e("s_mov_b32 s6, 2359296"); e("s_mov_b32 s7, 0x00020000")
    e("s_mov_b32 s8, s48"); e("s_mov_b32 s9, s49"); e("s_mov_b32 s10, 5308416"); e("s_mov_b32 s11, 0x00020000")
    e("s_mov_b32 s14, 5308416"); e("s_mov_b32 s15, 0x00020000")
    e("s_mov_b32 s18, 268435456"); e("s_mov_b32 s19, 0x00020000")
    e("s_mov_b32 s20, s50"); e("s_mov_b32 s21, s51"); e("s_mov_b32 s22, 9216"); e("s_mov_b32 s23, 0x00020000")
    KACC = Q(6); KP = Q(6)+16; KFR = Q(18); HR = KFR+16; HC = KFR+17; KRAW = KFR+18; KT = Q(30)
    e(f"s_lshl_b32 s83, s{sMI}, 4"); e(f"s_add_u32 s83, s83, s{sFJ}"); e("s_mul_i32 s83, s83, 3"); e(f"s_add_u32 s83, s83, s{sW}")
    e(f"s_cmp_lt_u32 s{sMI}, 12"); e("s_cselect_b32 s82, 1, 0")
    e(f"s_sub_u32 s3, s{sW}, 4"); e("s_cmp_lt_u32 s3, 3"); e("s_cselect_b32 s55, s82, 0")
    e(f"s_cmp_lt_u32 s{sW}, 3"); e("s_cselect_b32 s82, s82, 0")
    e("s_cmp_eq_u32 s82, 0"); e("s_cbranch_scc1 K1_KG0")
    e("s_lshl_b32 s3, s83, 8")
    e(f"v_lshlrev_b32 v{KT}, 2, v{vLANE}"); e(f"v_add_u32 v{KT}, s3, v{KT}")
    for a in range(6):
        p.vmem(f"global_load_dword v{KRAW+a}, v{KT}, s[{84+2*a}:{85+2*a}]", tag='kp', maybe=True)
    e("s_lshr_b32 s3, s83, 1"); e("s_lshl_b32 s3, s3, 2")
    e("s_load_dword s100, s[96:97], s3"); e("s_load_dword s101, s[98:99], s3")
    p.label("K1_KG0")
    if KB: e("s_barrier")
    kgst = [0]
    def kgen_piece(pi):
        n = KSPL[pi]
        if n == 0: return
        L = p.newlabel("K1_KG")
        e("s_cmp_eq_u32 s82, 0"); e(f"s_cbranch_scc1 {L}")
        wr, wi, t0, t1, t2, t3, t4, t5, t6, t7, t8, t9 = range(KT, KT+12)
        DP = "row_mask:0xf bank_mask:0xf"
        RA1, RA2, CB1, CB2 = KFR, KFR+4, KFR+8, KFR+12
        if kgst[0] == 0:
            e(f"v_lshlrev_b32 v{t0}, 1, v{vI}"); e(f"v_add_u32 v{t0}, 240, v{t0}")
            e(f"v_cmp_gt_u32 vcc, 8, v{vI}")
            e(f"s_mov_b32 s84, {hex(512 | 128 << 16)}"); e(f"s_mov_b32 s85, {hex(1280 | 1536 << 16)}")
            e(f"v_lshlrev_b32 v{t1}, 4, v{vI}")
            e(f"v_cndmask_b32 v{t0}, v{t0}, v{vI}, vcc")
            e(f"v_lshrrev_b64 {vr(t2,2)}, v{t1}, s[84:85]")
            e(f"v_cmp_le_u32 vcc, 12, v{vI}")
            e(f"v_and_b32 v{t2}, 0xffff, v{t2}")
            e(f"v_lshlrev_b32 v{t1}, 3, v{vI}")
            e(f"v_cndmask_b32 v{t0}, v{t0}, v{t2}, vcc")
            e(f"v_cvt_f32_u32 v{HC}, v{t1}"); e(f"v_cvt_f32_u32 v{HR}, v{t0}")
            e("s_waitcnt lgkmcnt(0)")
            e("s_and_b32 s3, s83, 1"); e("s_lshl_b32 s3, s3, 4")
            e("s_lshr_b32 s100, s100, s3"); e("s_lshl_b32 s100, s100, 16")
            e("s_lshr_b32 s101, s101, s3"); e("s_lshl_b32 s101, s101, 16")
            e(f"v_mov_b32 v{t0}, {fhex(LOG2E)}"); e(f"v_mul_f32 v{t0}, s100, v{t0}"); e(f"v_exp_f32 v{t0}, v{t0}"); e("s_nop 0")
            e(f"v_cvt_pk_bf16_f32 v{t0}, v{t0}, v{t0}"); e(f"v_and_b32 v{t0}, s{sMASK}, v{t0}")
            e(f"v_mul_f32 v{t1}, {fhex(LOG2E)}, v{t0}"); e(f"v_mul_f32 v{t2}, {fhex(1/(2*math.pi))}, v{t0}")
            stamp("kpre")
            e("s_waitcnt vmcnt(0)")
            stamp("kp")
            for hs in range(2):
                for a in range(6):
                    if hs: e(f"v_and_b32 v{t3+a}, s{sMASK}, v{KRAW+a}")
                    else: e(f"v_lshlrev_b32 v{t3+a}, 16, v{KRAW+a}")
                A2, B2, WR, WI = [KP + 4*hs + i for i in range(4)]
                e(f"v_mul_f32 v{A2}, v{t1}, v{t3}"); e(f"v_mul_f32 v{B2}, v{t2}, v{t4}")
                e(f"v_mul_f32 v{t5}, v{t0}, v{t5}"); e(f"v_mul_f32 v{t6}, v{t0}, v{t6}")
                e(f"v_rndne_f32 v{t9}, v{B2}")
                e(f"v_mul_f32 v{WR}, v{t7}, v{t5}"); e(f"v_mul_f32 v{WI}, v{t7}, v{t6}")
                e(f"v_sub_f32 v{B2}, v{B2}, v{t9}")
                e(f"v_fma_f32 v{WR}, -v{t8}, v{t6}, v{WR}"); e(f"v_fmac_f32 v{WI}, v{t8}, v{t5}")
            e("s_nop 1")
        for ks in range(kgst[0], kgst[0] + n):
            A2, B2, WR, WI = [KP + 4*(ks >> 2) + i for i in range(4)]
            s_ = ks & 3
            for nn in range(4):
                BC = f"row_newbcast:{4*s_+nn} {DP}"
                e(f"v_mul_f32_dpp v{t1}, v{B2}, v{HR} {BC}"); e(f"v_mul_f32_dpp v{t0}, v{A2}, v{HR} {BC}")
                e(f"v_mul_f32_dpp v{t4}, v{B2}, v{HC} {BC}"); e(f"v_mul_f32_dpp v{t3}, v{A2}, v{HC} {BC}")
                e(f"v_fract_f32 v{t1}, v{t1}"); e(f"v_exp_f32 v{t0}, v{t0}")
                e(f"v_cos_f32 v{t2}, v{t1}"); e(f"v_sin_f32 v{t1}, v{t1}")
                e(f"v_exp_f32 v{t3}, v{t3}")
                e(f"v_mul_f32 v{t2}, v{t0}, v{t2}")
                e(f"v_cos_f32 v{t5}, v{t4}")
                e(f"v_mul_f32 v{t1}, v{t0}, v{t1}")
                e(f"v_sin_f32 v{t4}, v{t4}")
                e(f"v_mul_f32_dpp v{wr}, v{WR}, v{t3} {BC}"); e(f"v_mul_f32_dpp v{wi}, v{WI}, v{t3} {BC}")
                e(f"v_cvt_pk_bf16_f32 v{RA1+nn}, v{t2}, v{t1}")
                e(f"v_mul_f32_dpp v{t6}, v{t2}, v{t2} row_newbcast:12 {DP}")
                e(f"v_mul_f32_dpp v{t7}, v{t1}, v{t2} row_newbcast:12 {DP}")
                e(f"v_mul_f32 v{t8}, v{wr}, v{t5}"); e(f"v_mul_f32 v{t9}, v{wr}, v{t4}")
                e(f"v_fmac_f32_dpp v{t6}, -v{t1}, v{t1} row_newbcast:12 {DP}")
                e(f"v_fmac_f32_dpp v{t7}, v{t2}, v{t1} row_newbcast:12 {DP}")
                e(f"v_fma_f32 v{t8}, -v{wi}, v{t4}, v{t8}"); e(f"v_fmac_f32 v{t9}, v{wi}, v{t5}")
                e(f"v_cvt_pk_bf16_f32 v{RA2+nn}, v{t6}, v{t7}")
                e(f"v_mul_f32_dpp v{t0}, v{t2}, v{t8} row_newbcast:13 {DP}")
                e(f"v_mul_f32_dpp v{t3}, v{t1}, v{t8} row_newbcast:13 {DP}")
                e(f"v_cvt_pk_bf16_f32 v{CB1+nn}, v{t8}, -v{t9}")
                e(f"v_fmac_f32_dpp v{t0}, -v{t1}, v{t9} row_newbcast:13 {DP}")
                e(f"v_fmac_f32_dpp v{t3}, v{t2}, v{t9} row_newbcast:13 {DP}")
                e(f"v_cvt_pk_bf16_f32 v{CB2+nn}, v{t0}, -v{t3}")
            e("s_nop 1")
            for a in range(2):
                for b in range(2):
                    d = KACC + 4*(2*a+b)
                    c = "0" if ks == 0 else vr(d, 4)
                    e(f"v_mfma_f32_16x16x32_bf16 {vr(d,4)}, {vr((RA1,RA2)[a],4)}, {vr((CB1,CB2)[b],4)}, {c}")
        kgst[0] += n
        if kgst[0] == 8:
            e(f"v_cmp_eq_u32 vcc, 0, v{vLANE}")
            e(f"v_mov_b32 v{t8}, s101"); e(f"v_lshlrev_b32 v{t9}, 4, v{vLANE}")
            e(f"v_cndmask_b32 v{t8}, 0, v{t8}, vcc")
            e("s_lshl_b32 s3, s83, 11"); e(f"s_add_u32 s3, s3, {KT_OFF}")
            e("s_nop 7"); e("s_nop 3")
            e(f"v_add_f32 v{KACC}, v{KACC}, v{t8}")
            for q in range(8): e(f"v_cvt_pk_bf16_f32 v{KT+q}, v{KACC+2*q}, v{KACC+2*q+1}")
            for a in range(2):
                p.vmem(f"buffer_store_dwordx4 {vr(KT+4*a,4)}, v{t9}, s[{SWS}:{SWS+3}], s3 offen offset:{1024*a} {STM}", maybe=True)
        p.label(L)
    Lc = p.newlabel("K1_PF"); Ld = p.newlabel("K1_PF")
    e(f"s_cmp_lt_u32 s{sW}, 3"); e(f"s_cbranch_scc1 {Ld}")
    e(f"s_cmp_eq_u32 s{sQI}, 3"); e(f"s_cbranch_scc0 {Lc}")
    for q in range(3):
        e(f"v_add_u32 v{T[11]}, {128*q}, v{T[10]}")
        e(f"v_min_u32 v{T[11]}, K1_CODE_LINES, v{T[11]}")
        e(f"v_lshlrev_b32 v{T[12+q]}, 7, v{T[11]}")
        e(f"global_load_dword v{T[8]}, v{T[12+q]}, s[52:53]")
    p.label(Lc)
    p.vmem(f"buffer_load_dword v{T[8]}, v{T[9]}, s[{SX}:{SX+3}], s{sT4} offen", tag='pf')
    if TW:
        e(f"s_cmp_lg_u32 s{sW}, 7"); e(f"s_cbranch_scc1 {Ld}")
        e(f"v_min_u32 v{T[11]}, 3, v{vLANE}")
        e(f"v_mul_u32_u24 v{T[12]}, {191*9216}, v{T[11]}")
        e(f"s_mul_i32 s{sT3}, s{sFJ}, 576")
        e(f"buffer_load_dword v{T[8]}, v{T[12]}, s[{SW1}:{SW1+3}], s{sT3} offen")
        e(f"v_mul_u32_u24 v{T[13]}, 110548, v{T[11]}")
        e(f"s_mul_i32 s{sT3}, s{sFJ}, 331776")
        e(f"buffer_load_dword v{T[8]}, v{T[13]}, s[{SW2}:{SW2+3}], s{sT3} offen")
        e(f"v_mul_u32_u24 v{T[14]}, 786400, v{T[11]}")
        e(f"s_mul_i32 s{sT3}, s{sFJ}, 2359296")
        e(f"buffer_load_dword v{T[8]}, v{T[14]}, s[{SWS}:{SWS+3}], s{sT3} offen")
        e(f"v_mul_u32_u24 v{T[15]}, 1572800, v{T[11]}")
        e(f"s_mov_b32 s{sT3}, {X4_OFF}")
        e(f"buffer_load_dword v{T[8]}, v{T[15]}, s[{SWS}:{SWS+3}], s{sT3} offen")
    p.label(Ld)
    def xdma1(c, extra):
        for nn in range(2):
            e(f"s_add_u32 m0, s{sXM}, {16384*c + 1024*nn + (-8192 if extra else 0)}")
            e(f"s_add_u32 s{sT}, s{sXS}, {128*c + nn*16*1152 + (-64*1152 if extra else 0)}")
            p.vmem(f"buffer_load_dwordx4 v{T[nn]}, s[{SX}:{SX+3}], s{sT} offen lds", tag=('x', c), maybe=extra)
    def xdma3(c0):
        L1 = p.newlabel("K1_XD"); L2 = p.newlabel("K1_XD")
        e("s_cmp_eq_u32 s55, 0"); e(f"s_cbranch_scc1 {L1}")
        for c in range(c0, c0+3): xdma1(c, True)
        p.label(L1)
        e("s_cmp_eq_u32 s82, 1"); e(f"s_cbranch_scc1 {L2}")
        for c in range(c0, c0+3): xdma1(c, False)
        p.label(L2)
    e("s_setprio 3")
    xdma3(0)
    e("s_setprio 0")
    e(f"s_and_b32 s{sT2}, s{sFJ}, 1")
    e(f"s_mul_i32 s{sT3}, s{sFJ}, 576")
    e(f"s_add_u32 s{sT5}, s{sQI}, 8")
    e(f"s_mul_i32 s{sRP1}, s{sW}, {8*9216}"); e(f"s_mul_i32 s{sRP1X}, s{sT5}, {8*9216}")
    e(f"s_lshl_b32 s{sT4}, s{sT2}, 6"); e(f"s_add_u32 s{sT4}, s{sT4}, s{sT3}")
    e(f"s_lshl_b32 s{sT}, s{sT2}, 9"); e(f"s_sub_u32 s{sT}, 512, s{sT}"); e(f"s_add_u32 s{sT}, s{sT}, s{sT3}")
    e(f"s_add_u32 s{sRP8}, s{sRP1}, s{sT}"); e(f"s_add_u32 s{sRP8X}, s{sRP1X}, s{sT}")
    e(f"s_add_u32 s{sRP1}, s{sRP1}, s{sT4}"); e(f"s_add_u32 s{sRP1X}, s{sRP1X}, s{sT4}")
    e(f"s_mul_i32 s{sT}, s{sH}, {96*9216}"); e(f"s_add_u32 s{sRP1H}, s{sRP1X}, s{sT}")
    e(f"s_mul_i32 s{sT}, s{sH}, {192*9216}"); e(f"s_add_u32 s{sRP8H}, s{sRP8X}, s{sT}")
    def rowperm(dst, nreg, tmp):
        e(f"s_lshr_b32 s{dst}, s{nreg}, 2"); e(f"s_lshl_b32 s{dst}, s{dst}, 5")
        e(f"s_and_b32 s{tmp}, s{nreg}, 1"); e(f"s_lshl_b32 s{tmp}, s{tmp}, 4"); e(f"s_add_u32 s{dst}, s{dst}, s{tmp}")
        e(f"s_and_b32 s{tmp}, s{nreg}, 2"); e(f"s_lshl_b32 s{tmp}, s{tmp}, 2"); e(f"s_add_u32 s{dst}, s{dst}, s{tmp}")
    rowperm(sRP2, sW, sT4); rowperm(sRP2X, sT5, sT4)
    e(f"s_mul_i32 s{sT}, s{sFJ}, 288"); e(f"s_lshl_b32 s{sT4}, s{sT2}, 5"); e(f"s_add_u32 s{sT}, s{sT}, s{sT4}"); e(f"s_sub_u32 s{sT}, s{sT}, 32")
    e(f"s_add_u32 s{sRP2}, s{sRP2}, s{sT}"); e(f"s_add_u32 s{sRP2X}, s{sRP2X}, s{sT}")
    e(f"s_or_b32 s{sT4}, s{sT2}, s{sH}"); e(f"s_cmp_eq_u32 s{sT4}, 0"); e(f"s_cselect_b32 s{sT4}, 288, 0")
    e(f"s_add_u32 s{sRP2K0}, s{sRP2}, s{sT4}")
    e(f"s_mul_i32 s{sRP2}, s{sRP2}, 1152"); e(f"s_mul_i32 s{sRP2X}, s{sRP2X}, 1152"); e(f"s_mul_i32 s{sRP2K0}, s{sRP2K0}, 1152")
    e(f"s_lshl_b32 s{sM0W}, s{sW}, 10"); e(f"s_lshl_b32 s{sM0X}, s{sT5}, 10")
    e(f"s_mul_i32 s{sT}, s{sH}, 12288"); e(f"s_add_u32 s{sM0H}, s{sM0X}, s{sT}")
    e("s_setprio 2")
    xdma3(3)
    e("s_setprio 0")
    e(f"v_and_b32 v{T[4]}, 1, v{vG}")
    e(f"v_lshlrev_b32 v{T[4]}, 2, v{T[4]}")
    e(f"v_xor_b32 v{T[4]}, v{T[4]}, v{T[3]}")
    e(f"v_mul_u32_u24 v{T[10]}, 9216, v{T[2]}")
    e(f"v_lshl_add_u32 v{vOW1}, v{T[4]}, 4, v{T[10]}")
    e(f"v_lshrrev_b32 v{T[11]}, 2, v{T[4]}")
    e(f"v_mul_u32_u24 v{T[11]}, {96*9216}, v{T[11]}")
    e(f"v_and_b32 v{T[4]}, 3, v{T[4]}")
    e(f"v_lshlrev_b32 v{T[4]}, 4, v{T[4]}")
    e(f"v_add3_u32 v{vOW8}, v{T[4]}, v{T[10]}, v{T[11]}")
    e(f"v_lshlrev_b32 v{T[4]}, 1, v{vG}")
    e(f"v_xor_b32 v{T[4]}, v{T[4]}, v{T[3]}")
    e(f"v_mul_u32_u24 v{T[10]}, 1152, v{T[2]}")
    e(f"v_lshl_add_u32 v{vOW2}, v{T[4]}, 4, v{T[10]}")
    e(f"v_lshrrev_b32 v{T[4]}, 2, v{vI}")
    e(f"v_and_b32 v{T[10]}, 3, v{vLANE}")
    e(f"v_lshlrev_b32 v{T[10]}, 3, v{T[10]}")
    e(f"v_lshrrev_b32 v{T[5]}, 1, v{vG}")
    e(f"v_lshl_add_u32 v{T[9]}, v{T[5]}, 3, v{T[4]}")
    e(f"v_lshl_add_u32 v{T[9]}, v{T[9]}, 7, v{T[10]}")
    e(f"v_lshrrev_b32 v{T[11]}, 1, v{T[4]}")
    e(f"v_xor_b32 v{T[11]}, s{sH}, v{T[11]}")
    e(f"v_lshl_add_u32 v{T[9]}, v{T[11]}, 6, v{T[9]}")
    e(f"v_and_b32 v{T[11]}, 1, v{vG}")
    e(f"v_lshl_add_u32 v{vA['8']}, v{T[11]}, 5, v{T[9]}")
    e(f"s_mul_i32 s{sT4}, s{sH}, 12288"); e(f"s_sub_u32 s{sT5}, 12288, s{sT4}")
    e(f"v_add_u32 v{vA[('n',0,0)]}, s{sT4}, v{vA['8']}"); e(f"v_add_u32 v{vA[('n',1,0)]}, s{sT5}, v{vA['8']}")
    e(f"v_add_u32 v{vA[('n',0,1)]}, 49152, v{vA[('n',0,0)]}"); e(f"v_add_u32 v{vA[('n',1,1)]}, 49152, v{vA[('n',1,0)]}")
    e(f"v_lshl_add_u32 v{T[9]}, v{vG}, 2, v{T[4]}")
    e(f"v_lshl_add_u32 v{T[10]}, v{T[9]}, 7, v{T[10]}")
    e(f"v_bfe_u32 v{T[9]}, v{T[9]}, 1, 2")
    e(f"s_lshl_b32 s{sT}, s{sH}, 1")
    e(f"v_xor_b32 v{T[9]}, s{sT}, v{T[9]}")
    e(f"v_lshl_add_u32 v{vA[('p',0,0)]}, v{T[9]}, 5, v{T[10]}")
    e(f"v_xor_b32 v{vA[('p',1,0)]}, 32, v{vA[('p',0,0)]}")
    for t in (0, 1): e(f"v_add_u32 v{vA[('p',t,1)]}, 49152, v{vA[('p',t,0)]}")
    e(f"s_lshl_b32 s{sT}, s{sQI}, 11"); e(f"s_add_u32 s{sT}, s{sT}, {PREG}")
    e(f"v_lshlrev_b32 v{T[11]}, 4, v{vLANE}")
    e(f"v_add_u32 v{T[11]}, s{sT}, v{T[11]}")
    e(f"s_lshl_b32 s{sT4}, s{sH}, 13"); e(f"v_add_u32 v{vPW}, s{sT4}, v{T[11]}")
    e(f"v_xor_b32 v{vXR}, 8192, v{vPW}")
    e(f"s_lshl_b32 s{sT4}, s{sH}, 10"); e(f"v_add_u32 v{vP8}, s{sT4}, v{T[11]}")
    e(f"s_lshl_b32 s{sT4}, s{sH}, 14"); e(f"v_add_u32 v{v8R}, s{sT4}, v{T[11]}")
    e(f"v_lshlrev_b32 v{T[9]}, 9, v{vG}")
    e(f"v_lshl_add_u32 v{T[9]}, v{vI}, 4, v{T[9]}")
    e(f"v_add_u32 v{vPR}, s{sT}, v{T[9]}")
    e(f"v_lshlrev_b32 v{T[9]}, 4, v{T[5]}")
    e(f"v_add_u32 v{vBI8}, {BIAS}, v{T[9]}")
    e(f"s_lshl_b32 s{sT4}, s{sH}, 7"); e(f"v_add_u32 v{vBI}, s{sT4}, v{vBI8}")
    e(f"s_mul_i32 s{sT}, s{sFJ}, 144"); e(f"s_lshl_b32 s{sT4}, s{sH}, 3"); e(f"s_add_u32 s{sT}, s{sT}, s{sT4}")
    e(f"s_lshl_b32 s{sT}, s{sT}, 14")
    e(f"s_lshl_b32 s{sT4}, s{sMI}, 10"); e(f"s_add_u32 s{sT}, s{sT}, s{sT4}")
    e(f"s_lshl_b32 s{sT4}, s{sQI}, 8"); e(f"s_add_u32 s{sT}, s{sT}, s{sT4}")
    e(f"v_lshlrev_b32 v{vOO}, 14, v{vG}")
    e(f"v_lshl_add_u32 v{vOO}, v{vI}, 4, v{vOO}")
    e(f"v_add_u32 v{vOO}, s{sT}, v{vOO}")
    e("s_setprio 1")
    xdma3(6)
    e("s_setprio 0")
    if PRO: stamp("xissued")
    kgen_piece(0)
    stamp("kpost")
    e(f"v_cmp_gt_u32 vcc, 32, v0")
    e(f"v_mov_b32 v{T[6]}, -32")
    e(f"v_mov_b32 v{T[7]}, 256")
    e(f"v_cndmask_b32 v{T[6]}, v{T[6]}, v{T[7]}, vcc")
    e(f"s_sub_u32 s{sT4}, s{sT2}, 1")
    e(f"v_and_b32 v{T[6]}, s{sT4}, v{T[6]}")
    e(f"v_add_u32 v{T[6]}, v{T[6]}, v0")
    e(f"v_min_u32 v{T[6]}, 287, v{T[6]}")
    e(f"v_lshlrev_b32 v{T[6]}, 1, v{T[6]}")
    p.vmem(f"buffer_load_ushort v{T[7]}, v{T[6]}, s[{SB1}:{SB1+3}], s{sT3} offen", tag='bias')
    e(f"v_min_u32 v{T[9]}, 359, v0")
    e(f"v_mul_u32_u24 v{T[10]}, 205, v{T[9]}")
    e(f"v_lshrrev_b32 v{T[10]}, 10, v{T[10]}")
    e(f"v_mul_u32_u24 v{T[11]}, 5, v{T[10]}")
    e(f"v_sub_u32 v{T[9]}, v{T[9]}, v{T[11]}")
    e(f"v_mul_u32_u24 v{T[10]}, 9216, v{T[10]}")
    e(f"v_lshl_add_u32 v{T[9]}, v{T[9]}, 7, v{T[10]}")
    e(f"s_and_b32 s{sT5}, s{sMI}, 7")
    e(f"s_mul_i32 s{sT}, s{sT5}, {72*9216}")
    e(f"s_and_b32 s{sT4}, s{sT3}, 0xffffff80")
    e(f"s_add_u32 s{sT}, s{sT}, s{sT4}")
    if W1T == 1: p.vmem(f"buffer_load_dword v{T[8]}, v{T[9]}, s[{SW1}:{SW1+3}], s{sT} offen", tag='pf')
    def w2_touch(wv):
        L = p.newlabel("K1_T")
        e(f"s_cmp_eq_u32 s{sW}, {wv}")
        e(f"s_cbranch_scc0 {L}")
        e(f"v_min_u32 v{vXTA}, 323, v0")
        e(f"v_lshlrev_b32 v{vXTA}, 7, v{vXTA}")
        e(f"s_and_b32 s{sT5}, s{sMI}, 7")
        e(f"s_mul_i32 s{sT}, s{sFJ}, {288*1152}")
        e(f"s_mul_i32 s{sT4}, s{sT5}, {324*128}")
        e(f"s_add_u32 s{sT}, s{sT}, s{sT4}")
        p.vmem(f"buffer_load_dword v{vROW}, v{vXTA}, s[{SW2}:{SW2+3}], s{sT} offen", maybe=True)
        p.label(L)
    def w1_touch(wv):
        L = p.newlabel("K1_T")
        e(f"s_cmp_eq_u32 s{sW}, {wv}")
        e(f"s_cbranch_scc0 {L}")
        e(f"v_min_u32 v{vXTA}, 359, v0")
        e(f"v_mul_u32_u24 v{vROW}, 205, v{vXTA}")
        e(f"v_lshrrev_b32 v{vROW}, 10, v{vROW}")
        e(f"v_lshlrev_b32 v{vXTA}, 7, v{vXTA}")
        e(f"v_mul_u32_u24 v{vROW}, {9216-640}, v{vROW}")
        e(f"v_add_u32 v{vXTA}, v{vXTA}, v{vROW}")
        e(f"s_and_b32 s{sT5}, s{sMI}, 7")
        e(f"s_mul_i32 s{sT}, s{sT5}, {72*9216}")
        e(f"s_and_b32 s{sT4}, s{sT3}, 0xffffff80")
        e(f"s_add_u32 s{sT}, s{sT}, s{sT4}")
        p.vmem(f"buffer_load_dword v{vROW}, v{vXTA}, s[{SW1}:{SW1+3}], s{sT} offen", maybe=True)
        p.label(L)
    def touch(wv, which, tau, start, count):
        L = p.newlabel("K1_T")
        e(f"s_cmp_eq_u32 s{sW}, {wv}")
        e(f"s_cbranch_scc0 {L}")
        e(f"v_min_u32 v{vXTA}, {count-1}, v{vLANE}")
        e(f"s_and_b32 s{sT5}, s{sMI}, 7")
        if which == 1:
            e(f"v_mul_u32_u24 v{vXTA}, 9216, v{vXTA}")
            e(f"s_mul_i32 s{sT}, s{sT5}, {72*9216}")
            e(f"s_lshl_b32 s{sT4}, s{sT2}, 6"); e(f"s_add_u32 s{sT4}, s{sT4}, s{sT3}")
            e(f"s_add_u32 s{sT}, s{sT}, s{sT4}"); e(f"s_add_u32 s{sT}, s{sT}, {128*tau + start*9216}")
        else:
            e(f"v_lshlrev_b32 v{vXTA}, 7, v{vXTA}")
            e(f"s_mul_i32 s{sT}, s{sFJ}, {288*1152}")
            e(f"s_mul_i32 s{sT4}, s{sT5}, {324*128}")
            e(f"s_add_u32 s{sT}, s{sT}, s{sT4}"); e(f"s_add_u32 s{sT}, s{sT}, {128*start}")
        srd = SW1 if which == 1 else SW2
        p.vmem(f"buffer_load_dword v{vROW}, v{vXTA}, s[{srd}:{srd+3}], s{sT} offen", maybe=True)
        p.label(L)
    def touches(seg):
        o = []
        if W1T == 4 and T1S <= seg < T1S + 12:
            q = seg - T1S
            o.append(lambda: touch(seg % 8, 1, 1 + q // 4, 18 * (q % 4), 18))
        if W2T == 4 and T2S <= seg < T2S + T2N:
            c = 324 // T2N
            o.append(lambda: touch((seg + 4) % 8, 2, 0, c * (seg - T2S), c))
        return o
    e(f"v_bfe_u32 v{T[12]}, v{vLANE}, 1, 3")
    e(f"v_xor_b32 v{T[12]}, s{sW}, v{T[12]}")
    e(f"v_lshlrev_b32 v{T[12]}, 4, v{T[12]}")
    e(f"v_lshl_add_u32 v{T[12]}, v{vI}, 7, v{T[12]}")
    e(f"v_lshl_add_u32 v{T[12]}, v{vG}, 12, v{T[12]}")
    e(f"s_sub_u32 s51, s{sFJ}, 7")
    e(f"s_lshl_b32 s{sT}, s51, 14")
    e(f"v_add_u32 v{T[12]}, s{sT}, v{T[12]}")
    e(f"v_add_u32 v{T[13]}, 8, v{T[12]}")
    e(f"v_lshlrev_b32 v{T[14]}, 4, v{vLANE}")
    e(f"s_lshl_b32 s52, s51, 18"); e(f"s_lshl_b32 s{sT}, s{sW}, 15"); e(f"s_add_u32 s52, s52, s{sT}")
    e(f"s_lshl_b32 s{sT}, s{sMI}, 10"); e(f"s_add_u32 s52, s52, s{sT}"); e(f"s_add_u32 s52, s52, {X4_OFF}")
    e(f"s_add_u32 s53, s52, 16384")
    def w2_prefetch():
        e(f"v_min_u32 v{T[9]}, 323, v0")
        e(f"v_lshlrev_b32 v{T[9]}, 7, v{T[9]}")
        e(f"s_and_b32 s{sT5}, s{sMI}, 7")
        e(f"s_mul_i32 s{sT}, s{sFJ}, {288*1152}")
        e(f"s_mul_i32 s{sT4}, s{sT5}, {324*128}")
        e(f"s_add_u32 s{sT}, s{sT}, s{sT4}")
        p.vmem(f"buffer_load_dword v{T[8]}, v{T[9]}, s[{SW2}:{SW2+3}], s{sT} offen", tag='pf')
    XA = lambda j: SA + j
    e(f"v_and_b32 v{T[10]}, 31, v{vLANE}")
    e(f"v_bfe_u32 v{T[9]}, v{vLANE}, 1, 3")
    e(f"v_xor_b32 v{T[9]}, v{T[9]}, v{T[5]}")
    e(f"s_lshl_b32 s{sT}, s{sQI}, 5")
    e(f"v_add_u32 v{vROW}, s{sT}, v{T[10]}")
    e(f"v_lshlrev_b32 v{T[10]}, 7, v{vROW}")
    for j in range(6):
        e(f"s_mul_i32 s{sT}, s{sH}, 6"); e(f"s_add_u32 s{sT}, s{sT}, {j}")
        e(f"s_and_b32 s{sT4}, s{sT}, 3"); e(f"s_lshl_b32 s{sT4}, s{sT4}, 1")
        e(f"s_lshr_b32 s{sT}, s{sT}, 2"); e(f"s_lshl_b32 s{sT}, s{sT}, 14")
        e(f"v_xor_b32 v{T[11]}, s{sT4}, v{T[9]}")
        e(f"v_lshl_add_u32 v{T[11]}, v{T[11]}, 4, v{T[10]}")
        e(f"v_add_u32 v{XA(j)}, s{sT}, v{T[11]}")
    e(f"v_lshrrev_b32 v{T[9]}, 1, v{T[4]}")
    e(f"v_lshl_add_u32 v{T[9]}, v{vG}, 2, v{T[9]}")
    e(f"v_and_b32 v{T[10]}, 1, v{T[4]}")
    e(f"v_lshl_add_u32 v{T[9]}, v{T[10]}, 4, v{T[9]}")
    e(f"v_bfe_u32 v{T[10]}, v{vLANE}, 1, 1")
    e(f"s_and_b32 s{sT}, s{sW}, 6")
    e(f"v_or_b32 v{T[10]}, s{sT}, v{T[10]}")
    e(f"v_lshlrev_b32 v{T[11]}, 1, v{vG}")
    e(f"v_xor_b32 v{T[10]}, v{T[10]}, v{T[11]}")
    e(f"v_lshlrev_b32 v{T[9]}, 7, v{T[9]}")
    e(f"v_and_b32 v{T[11]}, 1, v{vLANE}")
    e(f"v_lshl_add_u32 v{T[9]}, v{T[11]}, 3, v{T[9]}")
    e(f"s_and_b32 s{sT}, s{sW}, 1"); e(f"s_lshl_b32 s{sT}, s{sT}, 13")
    e(f"s_lshl_b32 s{sT4}, s{sFJ}, 14"); e(f"s_add_u32 s{sT}, s{sT}, s{sT4}")
    e(f"v_add_u32 v{T[9]}, s{sT}, v{T[9]}")
    e(f"v_lshl_add_u32 v{vXTA}, v{T[10]}, 4, v{T[9]}")
    vXTB = SA + 6
    e(f"v_xor_b32 v{vXTB}, 16, v{vXTA}")
    ACC = [SA + 8, SA + 9, SA + 10]
    for a in ACC: e(f"v_mov_b32 v{a}, 0")
    for i in range(4): e(f"v_mov_b32 v{WF+i}, s{sONE}")

    D = [(('B', 0, 0), ('B', 0, 1)), (('8', 0), ('8', 1)), (('B', 0, 2), ('B', 0, 3)), (('B', 0, 4), ('B', 0, 5)), (('8', 2), None)]
    for tau in (1, 2, 3):
        for k in range(3): D.append((('B', tau, 2*k), ('B', tau, 2*k+1)))
    p2 = [('E', 0, 0), ('E', 0, 1), ('E', 1, 0), ('E', 1, 1), ('E', 0, 2), ('E', 1, 2)]
    for j in range(2, 9): p2 += [('E', j, k) for k in range(3)]
    for i in range(0, len(p2), 2): D.append((p2[i], p2[i+1] if i + 1 < len(p2) else None))
    uloc = {}
    for k, (a, b) in enumerate(D):
        uloc[a] = (k, 0)
        if b: uloc[b] = (k, 1)
    def uparams(u):
        if u[0] == 'B': return SW1, vOW1, 96 * u[2] * 9216 + 128 * u[1], sRP1, sRP1X, sRP1H
        if u[0] == '8': return SW1, vOW8, 192 * u[1] * 9216, sRP8, sRP8X, sRP8H
        return SW2, vOW2, 96 * u[2] * 1152 + 128 * u[1], (sRP2K0 if u[2] == 0 else sRP2), sRP2X, None
    def dma_double(k):
        ops = []
        lds0 = (k % 4) * 24576
        def one(m0r, m0i, sr_, base, srd, vo, maybe=False):
            e(f"s_add_u32 m0, s{m0r}, {m0i}")
            e(f"s_add_u32 s{sT}, s{sr_}, {base}")
            p.vmem(f"buffer_load_dwordx4 v{vo}, s[{srd}:{srd+3}], s{sT} offen lds", tag=('u', k), maybe=maybe)
        for half, u in enumerate(D[k]):
            if not u: continue
            srd, vo, base, r, rx, rh = uparams(u)
            ops.append(lambda srd=srd, vo=vo, base=base, r=r, half=half: one(sM0W, lds0 + half*12288, r, base, srd, vo))
        a, b = D[k]
        if b and a[0] != 'E':
            srd, vo, base, r, rx, rh = uparams(a)
            ops.append(lambda: one(sM0H, lds0, rh, base, srd, vo))
        else:
            for half, u in enumerate(D[k]):
                if not u: continue
                srd, vo, base, r, rx, rh = uparams(u)
                def extra(srd=srd, vo=vo, base=base, rx=rx, half=half):
                    L = p.newlabel("K1_X")
                    e(f"s_cmp_eq_u32 s{sH}, {half}")
                    e(f"s_cbranch_scc0 {L}")
                    one(sM0X, lds0 + half*12288, rx, base, srd, vo, maybe=True)
                    p.label(L)
                ops.append(extra)
        return ops

    if PRO: stamp("setup")
    for R in range(3):
        if R: kgen_piece(R)
        p.wait(vm=[('x', 3*R+2)], lg_all=True)
        e("s_barrier")
        stamp(f"xround{R}")
        for j in range(6):
            p.ds(f"ds_read_b128 {vr(Q(12*R+j), 4)}, v{XA(j)}", tag=('raw', R, j))
        if R == 1 or (R == 2 and not DL):
            for k in (2*(R-1), 2*(R-1)+1):
                for op in dma_double(k): op()
        if R < 2:
            for j in range(6): e(f"v_add_u32 v{XA(j)}, 49152, v{XA(j)}")
        L = p.newlabel("K1_XT")
        e(f"s_sub_u32 s{sT}, s{sFJ}, {3*R}")
        e(f"s_cmp_lt_u32 s{sT}, 3")
        e(f"s_cbranch_scc0 {L}")
        for job in range(2):
            e(f"ds_read_b64_tr_b16 {vr(vXT+4*job, 2)}, v{vXTA} offset:{4096*job}")
            e(f"ds_read_b64_tr_b16 {vr(vXT+4*job+2, 2)}, v{vXTB} offset:{4096*job+256}")
        e("s_waitcnt lgkmcnt(0)")
        p.label(L)
        L = p.newlabel("K1_X4")
        e(f"s_sub_u32 s{sT}, s51, {3*R}")
        e(f"s_cmp_lt_u32 s{sT}, 3")
        e(f"s_cbranch_scc0 {L}")
        e(f"ds_read2st64_b64 {vr(SC,4)}, v{T[12]} offset0:0 offset1:4")
        e(f"ds_read2st64_b64 {vr(SC+4,4)}, v{T[13]} offset0:0 offset1:4")
        e("s_waitcnt lgkmcnt(0)")
        p.vmem(f"buffer_store_dwordx4 {vr(SC,4)}, v{T[14]}, s[{SWS}:{SWS+3}], s52 offen {STM}", maybe=True)
        p.vmem(f"buffer_store_dwordx4 {vr(SC+4,4)}, v{T[14]}, s[{SWS}:{SWS+3}], s53 offen {STM}", maybe=True)
        p.label(L)
        for j in range(6):
            p.wait(lg=[('raw', R, j)])
            first = (R == 0 and j == 0)
            e(f"v_mfma_f32_32x32x16_bf16 {vr(SB,16)}, {vr(WF,4)}, {vr(Q(12*R+j),4)}, " + ("0" if first else vr(SB,16)))
            for d in range(4):
                x = Q(12*R+j) + d
                e(f"v_dot2_f32_bf16 v{ACC[1+(d&1)]}, v{x}, v{x}, v{ACC[1+(d&1)]}")
        if R == 1 and W2T == 0: w2_prefetch()
    p.wait(vm=['bias'])
    e(f"v_lshlrev_b32 v{T[7]}, 16, v{T[7]}")
    e(f"v_mov_b32 v{T[5]}, {fhex(ALPHA)}")
    e(f"v_mov_b32 v{T[4]}, {fhex(ALPHA*0.5)}")
    e(f"v_cmp_gt_u32 vcc, 32, v0")
    e(f"v_min_u32 v{T[6]}, 287, v0")
    e(f"v_lshlrev_b32 v{T[6]}, 2, v{T[6]}")
    e(f"v_cndmask_b32 v{T[5]}, v{T[5]}, v{T[4]}, vcc")
    e(f"v_add_u32 v{T[6]}, {BIAS}, v{T[6]}")
    e(f"v_mul_f32 v{T[7]}, v{T[7]}, v{T[5]}")
    e(f"v_cmp_gt_u32 vcc, 288, v0")
    e(f"s_and_saveexec_b64 s[54:55], vcc")
    p.ds(f"ds_write_b32 v{T[6]}, v{T[7]}")
    e(f"s_mov_b64 exec, s[54:55]")
    e(f"v_add_f32 v{ACC[1]}, v{ACC[1]}, v{ACC[2]}")
    e(f"v_mov_b32 v{T[0]}, v{ACC[1]}")
    e(f"s_lshl_b32 s{sT}, s{sH}, 3"); e(f"s_add_u32 s{sT}, s{sT}, {STAT}")
    e(f"v_lshlrev_b32 v{T[4]}, 4, v{vROW}")
    e(f"v_permlane32_swap_b32 v{ACC[1]}, v{T[0]}")
    e(f"v_add_u32 v{T[5]}, s{sT}, v{T[4]}")
    e(f"v_mov_b32 v{ACC[0]}, v{SB}")
    e(f"v_add_f32 v{ACC[1]}, v{ACC[1]}, v{T[0]}")
    p.ds(f"ds_write_b64 v{T[5]}, v[{ACC[0]}:{ACC[1]}]")
    e(f"v_add_u32 v{T[4]}, {STAT}, v{T[4]}")
    kgen_piece(3)
    assert kgst[0] == 8
    p.wait(lg_all=True)
    e("s_barrier")
    stamp("statbar")
    p.ds(f"ds_read_b128 {vr(T[8], 4)}, v{T[4]}", tag='st')
    def bias_init(S, tau):
        if tau == 8: return [lambda gg=gg: p.ds(f"ds_read_b128 {vr(S + gg*4, 4)}, v{vBI8} offset:{gg*32}", tag=('bias', tau)) for gg in range(4)]
        return [lambda gg=gg: p.ds(f"ds_read_b128 {vr(S + gg*4, 4)}, v{vBI} offset:{(32+64*tau+8*gg)*4}", tag=('bias', tau)) for gg in range(4)]
    for op in bias_init(SA, 0) + bias_init(SB, 8): op()
    p.wait(lg=['st'])
    inv = 1.0 / 576.0
    b = T[8]
    for s_ in [f"v_add_f32 v{b}, v{b}, v{b+2}", f"v_add_f32 v{b+1}, v{b+1}, v{b+3}",
            f"v_mul_f32 v{b}, {fhex(inv)}, v{b}", f"v_mul_f32 v{b+1}, {fhex(inv)}, v{b+1}",
            f"v_fma_f32 v{b+1}, -v{b}, v{b}, v{b+1}", f"v_max_f32 v{b+1}, 0, v{b+1}",
            f"v_cvt_pk_bf16_f32 v{b+2}, v{b}, v{b+1}", f"v_lshlrev_b32 v{b}, 16, v{b+2}",
            f"v_and_b32 v{b+1}, s{sMASK}, v{b+2}", f"v_add_f32 v{b+1}, {fhex(1e-5)}, v{b+1}",
            f"v_cvt_pk_bf16_f32 v{b+1}, v{b+1}, v{b+1}", f"v_and_b32 v{b+1}, s{sMASK}, v{b+1}",
            f"v_sqrt_f32 v{b+1}, v{b+1}", "s_nop 0", f"v_cvt_pk_bf16_f32 v{b+1}, v{b+1}, v{b+1}",
            f"v_and_b32 v{b+1}, s{sMASK}, v{b+1}", f"v_rcp_f32 v{b+2}, v{b+1}",
            f"v_lshlrev_b32 v{T[4]}, 3, v{vROW}",
            f"v_mul_f32 v{b+3}, -v{b}, v{b+2}", f"v_add_u32 v{T[4]}, {RCT}, v{T[4]}",
            f"v_mul_f32 v{vR}, s{sAL}, v{b+2}", f"v_mul_f32 v{vC}, s{sAL}, v{b+3}"]: e(s_)
    p.ds(f"ds_write_b64 v{T[4]}, v[{b+2}:{b+3}]", tag='w')

    seq = []
    def G(k, areg, imm, d2, mfs, need=()):
        seq.append(dict(kind='G', unit=k, areg=areg, imm=imm, d2=d2, mf=mfs, need=list(need)))
    def BAR(bg=(), pre=()):
        seq.append(dict(kind='BAR', bg=list(bg), first=list(pre)))
    def p1_group(tau, S, Dk, own, j, need=()):
        k = uloc[('B', tau, 2*Dk)][0]; slot = k % 4
        q = Q(12*Dk + 6*own + j)
        G(k, vA[('n', own, slot >> 1)], (slot & 1) * 24576 + j * 2048, 512,
          [lambda wf: f"v_mfma_f32_32x32x16_bf16 {vr(S,16)}, {vr(wf,4)}, {vr(q,4)}, {vr(S,16)}"], need)
    def b8_group(Dk, j, need=()):
        k, half = uloc[('8', Dk)]; slot = k % 4
        assert slot < 2
        q = Q(12*Dk + j)
        G(k, vA['8'], slot * 24576 + half * 12288 + j * 2048, 512,
          [lambda wf: f"v_mfma_f32_32x32x16_bf16 {vr(SB,16)}, {vr(wf,4)}, {vr(q,4)}, {vr(SB,16)}"], need)
    def norm_ops(slot0, buf):
        ops = []
        for sg in range(2):
            q = Q(slot0 + sg)
            tt = [TMP + 8*sg + i for i in range(8)]
            for d in range(4):
                ops.append(lambda d=d, q=q, tt=tt: e(f"v_lshlrev_b32 v{tt[2*d]}, 16, v{q+d}"))
                ops.append(lambda d=d, q=q, tt=tt: e(f"v_and_b32 v{tt[2*d+1]}, s{sMASK}, v{q+d}"))
            for d in range(8):
                ops.append(lambda d=d, tt=tt: e(f"v_fma_f32 v{tt[d]}, v{tt[d]}, v{vR}, v{vC}"))
            for d in range(4):
                ops.append(lambda d=d, q=q, tt=tt: e(f"v_cvt_pk_bf16_f32 v{q+d}, v{tt[2*d]}, v{tt[2*d+1]}"))
            ops.append(lambda q=q, sg=sg: p.ds(f"ds_write_b128 v{vPW}, {vr(q,4)} offset:{buf*16384+sg*1024}", tag='w'))
        return ops
    def gelu_ops(regs4, dst2, tbase):
        ops = []
        tt = [tbase + i for i in range(4)]
        for i in range(4): ops.append(lambda i=i: e(f"v_fmaak_f32 v{tt[i]}, v{regs4+i}, v{regs4+i}, {fhex(CA)}"))
        for i in range(4): ops.append(lambda i=i: e(f"v_mul_f32 v{tt[i]}, v{regs4+i}, v{tt[i]}"))
        for i in range(4): ops.append(lambda i=i: e(f"v_exp_f32 v{tt[i]}, -v{tt[i]}"))
        for i in range(4): ops.append(lambda i=i: e(f"v_fma_f32 v{tt[i]}, v{tt[i]}, s{sAL}, s{sAL}"))
        for i in range(4): ops.append(lambda i=i: e(f"v_rcp_f32 v{tt[i]}, v{tt[i]}"))
        for i in range(4): ops.append(lambda i=i: e(f"v_mul_f32 v{tt[i]}, v{regs4+i}, v{tt[i]}"))
        for i in range(2): ops.append(lambda i=i: e(f"v_cvt_pk_bf16_f32 v{dst2+i}, v{tt[2*i]}, v{tt[2*i+1]}"))
        return ops
    def gelu_block(S, tau):
        ops = []
        slot = (1 + 2*tau) if tau < 3 else 0
        for kap in range(2):
            pw = TMP + 8 + 4*kap
            for t in range(2):
                ops += gelu_ops(S + (kap*2+t)*4, pw + 2*t, TMP + 4*t)
            ops.append(lambda pw=pw, kap=kap: p.ds(f"ds_write_b128 v{vPW}, {vr(pw,4)} offset:{slot*8192+kap*1024}", tag='w'))
        return ops
    def s8_write():
        return [lambda gg=gg: p.ds(f"ds_write_b128 v{vPW}, {vr(SB+4*gg,4)} offset:{24576 + (gg>>1)*16384 + (gg&1)*1024}", tag='w') for gg in range(4)]
    def s8_read():
        ops = []
        for hh in range(2):
            for c in range(2):
                dst = (SC if hh == 0 else vXT) + 4*c
                ops.append(lambda hh=hh, c=c, dst=dst: p.ds(f"ds_read_b128 {vr(dst,4)}, v{v8R} offset:{24576 + hh*8192 + c*1024}", tag='s8'))
        return ops
    def gelu_b8():
        ops = [lambda: p.wait(lg=['s8'])]
        for i in range(8): ops.append(lambda i=i: e(f"v_add_f32 v{SC+i}, v{SC+i}, v{vXT+i}"))
        pw = TMP + 8
        for t in range(2): ops += gelu_ops(SC + 4*t, pw + 2*t, TMP + 4*t)
        ops.append(lambda: p.ds(f"ds_write_b128 v{vP8}, {vr(pw,4)}", tag='w'))
        return ops
    def pread(kk):
        slot = kk if kk < 7 else kk - 7
        return [lambda sg=sg: p.ds(f"ds_read_b128 {vr(Q(2*kk+sg),4)}, v{vPR} offset:{slot*8192+sg*256}", tag=('P', kk)) for sg in range(2)]
    def xt_job():
        L = p.newlabel("K1_XJ")
        e(f"s_cmp_lt_u32 s{sFJ}, 9")
        e(f"s_cbranch_scc0 {L}")
        e(f"s_lshl_b32 s{sT}, s{sFJ}, 6"); e(f"s_and_b32 s{sT4}, s{sW}, 6"); e(f"s_lshl_b32 s{sT4}, s{sT4}, 3")
        e(f"s_add_u32 s{sT}, s{sT}, s{sT4}"); e(f"s_lshl_b32 s{sT}, s{sT}, 12")
        e(f"s_lshl_b32 s{sT4}, s{sMI}, 8"); e(f"s_add_u32 s{sT}, s{sT}, s{sT4}")
        e(f"s_and_b32 s{sT4}, s{sW}, 1"); e(f"s_lshl_b32 s{sT5}, s{sT4}, 7"); e(f"s_add_u32 s{sT}, s{sT}, s{sT5}")
        e(f"s_add_u32 s{sT}, s{sT}, {XNT_OFF}")
        e(f"s_lshl_b32 s{sT4}, s{sT4}, 9"); e(f"s_add_u32 s{sT4}, s{sT4}, {RCT}")
        va, vb, v1_, v2_ = SC, SC+1, SC+2, SC+3
        e(f"v_lshlrev_b32 v{vb}, 5, v{vG}")
        e(f"v_add_u32 v{vb}, s{sT4}, v{vb}")
        e(f"s_add_u32 s{sT5}, s{sXM}, {PREG+40960}")
        e(f"v_lshlrev_b32 v{va}, 4, v{vG}")
        e(f"v_lshl_add_u32 v{va}, v{vI}, 7, v{va}")
        e(f"v_add_u32 v{va}, s{sT5}, v{va}")
        for job in range(2):
            x = vXT + 4*job
            for q in range(4):
                e(f"ds_read_b128 {vr(TMP+4*q,4)}, v{vb} offset:{256*job+128*(q>>1)+16*(q&1)}")
            e("s_waitcnt lgkmcnt(0)")
            for d in range(4):
                e(f"v_lshlrev_b32 v{v1_}, 16, v{x+d}")
                e(f"v_and_b32 v{v2_}, s{sMASK}, v{x+d}")
                e(f"v_fma_f32 v{v1_}, v{v1_}, v{TMP+2*d}, v{TMP+2*d+1}")
                e(f"v_fma_f32 v{v2_}, v{v2_}, v{TMP+8+2*d}, v{TMP+8+2*d+1}")
                e(f"v_cvt_pk_bf16_f32 v{x+d}, v{v1_}, v{v2_}")
            e(f"ds_write_b128 v{va}, {vr(x,4)} offset:{64*job}")
        e(f"v_lshlrev_b32 v{va}, 4, v{vLANE}")
        e(f"v_add_u32 v{va}, s{sT5}, v{va}")
        e(f"v_lshrrev_b32 v{vb}, 3, v{vLANE}")
        e(f"v_lshlrev_b32 v{vb}, 12, v{vb}")
        e(f"v_and_b32 v{v1_}, 7, v{vLANE}")
        e(f"v_lshl_add_u32 v{vb}, v{v1_}, 4, v{vb}")
        e("s_waitcnt lgkmcnt(0)")
        e(f"ds_read_b128 {vr(TMP,4)}, v{va}")
        e(f"ds_read_b128 {vr(TMP+4,4)}, v{va} offset:1024")
        e(f"s_add_u32 s{sT4}, s{sT}, {8*4096}")
        e("s_waitcnt lgkmcnt(0)")
        p.vmem(f"buffer_store_dwordx4 {vr(TMP,4)}, v{vb}, s[{SWS}:{SWS+3}], s{sT} offen {STM}", maybe=True)
        p.vmem(f"buffer_store_dwordx4 {vr(TMP+4,4)}, v{vb}, s[{SWS}:{SWS+3}], s{sT4} offen {STM}", maybe=True)
        e("s_nop 1")
        p.label(L)

    def xt_ops():
        ops = []
        A = lambda s_: ops.append(lambda: e(s_))
        va, vb, v1_, v2_, vc, vd = SC, SC+1, SC+2, SC+3, SC+4, SC+5
        def setup():
            e(f"s_lshl_b32 s51, s{sFJ}, 6"); e(f"s_and_b32 s52, s{sW}, 6"); e(f"s_lshl_b32 s52, s52, 3")
            e(f"s_add_u32 s51, s51, s52"); e(f"s_lshl_b32 s51, s51, 12")
            e(f"s_lshl_b32 s52, s{sMI}, 8"); e(f"s_add_u32 s51, s51, s52")
            e(f"s_and_b32 s52, s{sW}, 1"); e(f"s_lshl_b32 s53, s52, 7"); e(f"s_add_u32 s51, s51, s53")
            e(f"s_add_u32 s51, s51, {XNT_OFF}")
            e(f"s_lshl_b32 s52, s52, 9"); e(f"s_add_u32 s52, s52, {RCT}")
            e(f"v_lshlrev_b32 v{vb}, 5, v{vG}")
            e(f"v_add_u32 v{vb}, s52, v{vb}")
            e(f"s_add_u32 s53, s{sXM}, {PREG+40960}")
            for q in range(4):
                p.ds(f"ds_read_b128 {vr(TMP+4*q,4)}, v{vb} offset:{128*(q>>1)+16*(q&1)}", tag='xr0')
        ops.append(setup)
        A(f"v_lshlrev_b32 v{va}, 4, v{vG}")
        A(f"v_lshl_add_u32 v{va}, v{vI}, 7, v{va}")
        A(f"v_add_u32 v{va}, s53, v{va}")
        A(f"v_lshlrev_b32 v{vc}, 4, v{vLANE}")
        A(f"v_add_u32 v{vc}, s53, v{vc}")
        A(f"v_lshrrev_b32 v{vd}, 3, v{vLANE}")
        A(f"v_lshlrev_b32 v{vd}, 12, v{vd}")
        A(f"v_and_b32 v{v1_}, 7, v{vLANE}")
        A(f"v_lshl_add_u32 v{vd}, v{v1_}, 4, v{vd}")
        A(f"s_cmp_lt_u32 s{sFJ}, 9\n    s_cselect_b32 s52, 0, 0x10000000\n    v_add_u32 v{vd}, s52, v{vd}\n    s_add_u32 s52, s51, {8*4096}")
        for job in range(2):
            x = vXT + 4*job
            ops.append(lambda job=job: p.wait(lg=[f'xr{job}']))
            for d in range(4):
                A(f"v_lshlrev_b32 v{v1_}, 16, v{x+d}")
                A(f"v_and_b32 v{v2_}, s{sMASK}, v{x+d}")
                A(f"v_fma_f32 v{v1_}, v{v1_}, v{TMP+2*d}, v{TMP+2*d+1}")
                A(f"v_fma_f32 v{v2_}, v{v2_}, v{TMP+8+2*d}, v{TMP+8+2*d+1}")
                A(f"v_cvt_pk_bf16_f32 v{x+d}, v{v1_}, v{v2_}")
            def wr(job=job, x=x):
                p.ds(f"ds_write_b128 v{va}, {vr(x,4)} offset:{64*job}")
                if job == 0:
                    for q in range(4):
                        p.ds(f"ds_read_b128 {vr(TMP+4*q,4)}, v{vb} offset:{256+128*(q>>1)+16*(q&1)}", tag='xr1')
                else:
                    p.ds(f"ds_read_b128 {vr(TMP,4)}, v{vc}", tag='xo')
                    p.ds(f"ds_read_b128 {vr(TMP+4,4)}, v{vc} offset:1024", tag='xo')
            ops.append(wr)
        def st():
            p.wait(lg=['xo'])
            p.vmem(f"buffer_store_dwordx4 {vr(TMP,4)}, v{vd}, s[{SWS}:{SWS+3}], s51 offen")
            p.vmem(f"buffer_store_dwordx4 {vr(TMP+4,4)}, v{vd}, s[{SWS}:{SWS+3}], s52 offen")
            e("s_nop 1")
        ops.append(st)
        return ops
    for op in norm_ops(0, 0): op()
    for r in range(9):
        Dk, j = divmod(r, 3)
        pre = [lambda sg=sg, r=r, Dk=Dk, j=j: p.ds(f"ds_read_b128 {vr(Q(12*Dk+6+2*j+sg),4)}, v{vXR} offset:{(r%2)*16384+sg*1024}", tag=('oth', r)) for sg in range(2)]
        bg = []
        if r + 1 < 9:
            Dn, jn = divmod(r + 1, 3)
            bg = norm_ops(12*Dn + 2*jn, (r + 1) % 2)
            if W1T == 2 and r < 3: bg = [lambda wv=2*r: w1_touch(wv), lambda wv=2*r+1: w1_touch(wv)] + bg
            if W1T == 3 and r < 6: bg = [lambda wv=r: w1_touch(wv)] + bg
        else:
            bg = xt_ops() if XI else [xt_job]
        if W2T == 2 and r >= 3: bg = bg[:6] + [lambda wv=r-3: w2_touch(wv)] + bg[6:]
        bg = bg[:8] + touches(r) + bg[8:]
        BAR(bg=bg, pre=pre)
        nd = [('bias', 0), ('bias', 8)] if r == 0 else []
        for sg in range(2):
            b8_group(Dk, 2*j+sg, nd); p1_group(0, SA, Dk, 0, 2*j+sg, nd)
        for sg in range(2): p1_group(0, SA, Dk, 1, 2*j+sg, [('oth', r)])
    Sbuf = {0: SA, 1: SB, 2: SA, 3: SB}
    for tau in (1, 2, 3):
        gl = gelu_block(Sbuf[tau-1], tau-1)
        n3 = (len(gl) + 2) // 3
        for Dk in range(3):
            pre = []
            if tau == 1 and Dk == 0: pre = s8_write() + bias_init(SB, 1)
            bg = gl[Dk*n3:(Dk+1)*n3]
            if W2T == 1 and tau < 3: bg = bg[:6] + [lambda wv=3*(tau-1)+Dk: w2_touch(wv)] + bg[6:]
            if tau == 1 and Dk == 1: bg = s8_read() + bg
            if tau == 3 and Dk == 0: bg = gelu_b8() + bg
            if Dk == 2 and tau < 3: bg = bg + bias_init(Sbuf[tau+1], tau+1)
            if tau == 3 and Dk == 1: bg = pread(1) + pread(2) + pread(0) + bg
            if tau == 3 and Dk == 2: bg = pread(3) + pread(4) + bg
            bg = bg[:8] + touches(6 + 3*tau + Dk) + bg[8:]
            BAR(bg=bg, pre=pre)
            for own in range(2):
                for j in range(6):
                    p1_group(tau, Sbuf[tau], Dk, own, j, [('bias', tau)] if (Dk == 0 and own == 0 and j == 0) else [])
    OB = {0: Q(18), 1: Q(22)}
    ET = Q(26)
    def epi(j):
        O = OB[j % 2]
        ops = []
        for t in range(2):
            dst = ET + 4*t + 8*(j % 2)
            for sg in range(2):
                for i in range(2):
                    ops.append(lambda t=t, sg=sg, i=i, dst=dst: e(f"v_cvt_pk_bf16_f32 v{dst+2*sg+i}, v{O+(t*2+sg)*4+2*i}, v{O+(t*2+sg)*4+2*i+1}"))
            def st(t=t, dst=dst):
                e(f"s_mov_b32 s{sT}, {(16*j+4*t)*16384}")
                p.vmem(f"buffer_store_dwordx4 {vr(dst,4)}, v{vOO}, s[{SWS}:{SWS+3}], s{sT} offen {STM}")
            if not NOST: ops.append(st)
        return ops
    gl3 = gelu_block(SB, 3)
    for i, u in enumerate(p2):
        _, j, k = u
        kd, half = uloc[u]
        if half == 0:
            bg = []; pre = []
            if i == 0: pre = pread(5) + pread(6); bg = gl3[:len(gl3)//2]
            if i == 2: bg = gl3[len(gl3)//2:]
            if i == 4: pre = pread(7) + pread(8)
            BAR(bg=bg, pre=pre)
        slot = kd % 4
        O = OB[j % 2]
        for jj in range(3):
            kk = 3*k + jj
            for t in range(2):
                first = (kk == 0)
                mfs = [lambda wf, t=t, sg=sg, kk=kk, first=first, O=O: f"v_mfma_f32_16x16x32_bf16 {vr(O+(t*2+sg)*4,4)}, {vr(wf,4)}, {vr(Q(2*kk+sg),4)}, " + ("0" if first else vr(O+(t*2+sg)*4,4)) for sg in range(2)]
                G(kd, vA[('p', t, slot >> 1)], (slot & 1) * 24576 + half * 12288 + jj * 4096, 2048, mfs, [('P', kk)])
        if k == 2:
            seq.append(dict(kind='EPI', ops=epi(j)))
    gidx = [i for i, s in enumerate(seq) if s['kind'] == 'G']
    pos_of_g = {g: n for n, g in enumerate(gidx)}
    bars = [i for i, s in enumerate(seq) if s['kind'] == 'BAR']
    first_read_pos = {}; last_use = {}
    for n, g in enumerate(gidx):
        k = seq[g]['unit']
        rp = gidx[n - RA] if n - RA >= 0 else -1
        first_read_pos.setdefault(k, rp)
        last_use[k] = g
    land = {}; rel = {}
    for k in first_read_pos:
        prev = [b for b in bars if b < first_read_pos[k]]
        land.setdefault(prev[-1] if prev else bars[0], []).append(k)
        nxt = [b for b in bars if b > last_use[k]]
        if nxt and k + 4 < len(D): rel.setdefault(nxt[0], []).append(k + 4)
    if DL:
        rel.setdefault(bars[0], []).append(2)
        rel.setdefault(bars[DL-1], []).append(3)
    wf_of = {}
    def issue_reads(n):
        if n >= len(gidx): return
        s = seq[gidx[n]]
        wf = WF + 4 * (n % NWF)
        wf_of[n] = wf
        if NOREAD: return
        p.ds(f"ds_read_b64_tr_b16 {vr(wf,2)}, v{s['areg']} offset:{s['imm']}", tag=('wf', n))
        p.ds(f"ds_read_b64_tr_b16 {vr(wf+2,2)}, v{s['areg']} offset:{s['imm']+s['d2']}", tag=('wf', n))
    bgq = []
    def groups_left(i):
        c = 0
        for s in seq[i:]:
            if s['kind'] == 'BAR': break
            if s['kind'] == 'G': c += 1
        return c
    delay = []
    for i, s in enumerate(seq):
        if s['kind'] == 'EPI':
            delay.append([3, s['ops']])
        elif s['kind'] == 'BAR':
            for op in bgq: op()
            p.wait(vm=[('u', k) for k in land.get(i, [])], lg=['w'])
            if not NOBAR: e("s_barrier")
            bi = bars.index(i)
            if bi in ((0, 3, 6, 9, 12, 15, 18, 21, 24, 27, 30) if PRO else (0, 9, 18)): stamp(f"bar{bi}")
            if i == bars[0]:
                for n in range(RA): issue_reads(n)
            if bi == 9: e("s_nop 7")
            for op in s['first']: op()
            dm = []
            for k in rel.get(i, []):
                if not NODMA: dm += dma_double(k)
            bgq = []
            b = [] if NOBG else list(s['bg'])
            step = max(1, len(b) // (len(dm) + 1)) if dm else 0
            while dm or b:
                if dm: bgq.append(dm.pop(0))
                take = b[:step] if dm else b
                bgq += take; b = b[len(take):]
        else:
            n = pos_of_g[i]
            left = groups_left(i)
            if seq[i-1]['kind'] == 'BAR': segn = left
            done = segn - left
            if PRIO and (done == 0 or (done * 4) // segn != ((done - 1) * 4) // segn):
                e(f"s_setprio {3 - (done * 4) // segn}")
            left = max(left - FRONT, 1)
            for dl in delay: dl[0] -= 1
            while delay and delay[0][0] <= 0: bgq += delay.pop(0)[1]
            k = -(-len(bgq) // left)
            p.wait(lg=[('wf', n)] + s['need'])
            nm = len(s['mf'])
            for mi_, mf in enumerate(s['mf']):
                e(mf(wf_of[n]))
                if mi_ == 0: issue_reads(n + RA)
                lo = (k * mi_) // nm; hi = (k * (mi_ + 1)) // nm
                for op in bgq[lo:hi]: op()
            bgq = bgq[k:]
    e("s_nop 7")
    for op in bgq: op()
    for dl in delay:
        for op in dl[1]: op()
    if DIAG:
        stamp("lastissue")
        e("s_waitcnt vmcnt(0)")
        stamp("end")
        e("s_memrealtime s[100:101]")
        e("s_waitcnt lgkmcnt(0)")
        e(f"v_writelane_b32 v{TMP}, s100, 40")
        for i in range(len(stamps)):
            e(f"s_sub_u32 s{sT}, s{56+2*i}, s56")
            e(f"v_writelane_b32 v{TMP}, s{sT}, {i}")
        e(f"s_lshl_b32 s{sT}, s2, 3"); e(f"s_add_u32 s{sT}, s{sT}, s{sW}"); e(f"s_lshl_b32 s{sT}, s{sT}, 8")
        e(f"s_add_u32 s{sT}, s{sT}, 0x4000000")
        e(f"v_lshlrev_b32 v{TMP+1}, 2, v{vLANE}")
        e(f"buffer_store_dword v{TMP}, v{TMP+1}, s[{SWS}:{SWS+3}], s{sT} offen")
        open("stamps.txt", "w").write(" ".join(stamps))
    p.label("K1_END")
    e("s_endpgm")
    return p.text()
```

```python
from asmlib import *
import math, os
DIAG = int(os.environ.get("DIAG", "0")); PRO = int(os.environ.get("PRO", "0"))
NODMA = int(os.environ.get("NODMA", "0")); NOREAD = int(os.environ.get("NOREAD", "0")); NOST = int(os.environ.get("NOST", "0"))
NOBAR = int(os.environ.get("NOBAR", "0")); NOBG = int(os.environ.get("NOBG", "0"))
PRIO = int(os.environ.get("PRIO", "0")); FRONT = int(os.environ.get("FRONT", "1")); MAP = 1
RA = int(os.environ.get("RA", "4"))

PART_OFF = 0
X4_OFF = 37748736
XNT_OFF = 40108032
KT_OFF = 42467328
KSPL = [int(c) for c in os.environ.get('KSPL', '8000')]
LOG2E = math.log2(math.e)
TW = int(os.environ.get("TW", "0"))
T1S = int(os.environ.get("T1S", "0")); T2S = int(os.environ.get("T2S", "4")); T2N = int(os.environ.get("T2N", "12"))
STM = os.environ.get("STM", "sc1")
KB = int(os.environ.get("KB", "1"))
R6 = int(os.environ.get("R6", "0"))
SLOT6 = {21: 4, 22: 1, 23: 5, 24: 2, 25: 3, 26: 0, 27: 4}
ISS6 = {21: 21, 22: 22, 23: 22, 24: 23, 25: 24, 26: 25, 27: 26}
def slot_of(k): return SLOT6[k] if (R6 and k in SLOT6) else k % 4
STJ = os.environ.get("STJ", "111111111")
DL = int(os.environ.get("DL", "1")); XI = int(os.environ.get("XI", "0"))
W1T = int(os.environ.get("W1T", "2")); W2T = int(os.environ.get("W2T", "1"))
RING = 0; PREG = 98304; STAT = 155648; RCT = 157696; BIAS = 158720
SX, SW1, SW2, SWS, SB1 = 4, 8, 12, 16, 20
sW, sH, sQI, sFJ, sMI = 24, 25, 26, 27, 28
sRP1, sRP1X, sRP8, sRP8X, sRP2, sRP2K0, sRP2X, sM0W, sM0X, sT = 29, 30, 31, 32, 33, 34, 35, 36, 37, 38
sT2, sXS, sXM, sT3, sONE, sMASK, sT4, sT5, sAL = 39, 40, 41, 42, 43, 44, 45, 46, 47
sRP1H, sRP8H, sM0H = 48, 49, 50
vLANE, vG, vI = 1, 2, 3
vA = {}
n = 4
for own in (0, 1):
    for hi in (0, 1):
        vA[('n', own, hi)] = n; n += 1
vA['8'] = 8
for t in (0, 1):
    for hi in (0, 1):
        vA[('p', t, hi)] = 9 + 2*t + hi
vA[('p', 0, 2)] = 4; vA[('p', 1, 2)] = 5
vOW1, vOW8, vOW2 = 13, 14, 15
vPW, vPR, vBI, vBI8, vOO, vXR, vR, vC, v8R, vP8 = 16, 17, 18, 19, 20, 21, 22, 23, 24, 25
vXT = 26
TMP = 34
WF = 50
NWF = 5
vROW, vXTA = 70, 71
SB = 72; SC = 88; SA = 96
QB = 112
def Q(slot): return QB + slot * 4
C0 = -2.0 * 0.7978845608028654 * math.log2(math.e)
C1 = C0 * 0.044715
ALPHA = (-C1) ** (1.0 / 3.0)
CA = -C0 / ALPHA

def gen():
    p = Prog()
    e = p.emit
    stamps = []
    def stamp(name):
        if DIAG and len(stamps) < 13:
            e(f"s_memtime s[{56+2*len(stamps)}:{57+2*len(stamps)}]")
            stamps.append(name)
    T = [TMP + i for i in range(16)]
    e("s_cmp_ge_u32 s2, 256")
    e("s_cbranch_scc1 K1_END")
    stamp("start")
    e("s_load_dwordx2 s[4:5], s[0:1], 0")
    e("s_load_dwordx4 s[48:51], s[0:1], 80")
    e("s_load_dwordx2 s[12:13], s[0:1], 96")
    e("s_load_dwordx2 s[16:17], s[0:1], 128")
    e("s_load_dwordx16 s[84:99], s[0:1], 8")
    e(f"v_lshrrev_b32 v{T[0]}, 6, v0")
    e(f"v_and_b32 v{vLANE}, 63, v0")
    e(f"v_readfirstlane_b32 s{sW}, v{T[0]}")
    e(f"v_lshrrev_b32 v{vG}, 4, v{vLANE}")
    e(f"v_and_b32 v{vI}, 15, v{vLANE}")
    nb = 1 + MAP
    e("s_and_b32 s3, s2, 7")
    e(f"s_lshr_b32 s{sMI}, s2, 3")
    e(f"s_and_b32 s{sFJ}, s{sMI}, {(1<<nb)-1}")
    e(f"s_lshr_b32 s{sT}, s3, {MAP}")
    e(f"s_lshl_b32 s{sT}, s{sT}, {nb}")
    e(f"s_add_u32 s{sFJ}, s{sFJ}, s{sT}")
    e(f"s_lshr_b32 s{sMI}, s{sMI}, {nb}")
    e(f"s_and_b32 s3, s3, {(1<<MAP)-1}")
    e(f"s_lshl_b32 s3, s3, {4-MAP}")
    e(f"s_add_u32 s{sMI}, s{sMI}, s3")
    e(f"s_lshr_b32 s{sH}, s{sW}, 2")
    e(f"s_and_b32 s{sQI}, s{sW}, 3")
    e(f"s_mov_b32 s{sONE}, 0x3f803f80")
    e(f"s_mov_b32 s{sMASK}, 0xffff0000")
    e(f"s_mov_b32 s{sAL}, {fhex(ALPHA)}")
    e(f"v_lshrrev_b32 v{T[2]}, 3, v{vLANE}")
    e(f"v_and_b32 v{T[3]}, 7, v{vLANE}")
    e(f"v_xor_b32 v{T[4]}, v{vG}, v{T[3]}")
    e(f"v_mul_u32_u24 v{T[5]}, 2304, v{T[2]}")
    e(f"v_lshl_add_u32 v{T[0]}, v{T[4]}, 4, v{T[5]}")
    e(f"v_xor_b32 v{T[1]}, 64, v{T[0]}")
    e(f"s_lshl_b32 s{sXS}, s{sMI}, 7")
    e(f"s_lshr_b32 s{sT}, s{sW}, 1"); e(f"s_lshl_b32 s{sT}, s{sT}, 5"); e(f"s_add_u32 s{sXS}, s{sXS}, s{sT}")
    e(f"s_and_b32 s{sT}, s{sW}, 1"); e(f"s_add_u32 s{sXS}, s{sXS}, s{sT}")
    e(f"s_mul_i32 s{sXS}, s{sXS}, 1152")
    e(f"s_lshl_b32 s{sXM}, s{sW}, 11")
    e(f"v_subrev_u32 v{T[9]}, 192, v0")
    e(f"v_min_u32 v{T[9]}, 287, v{T[9]}")
    e(f"v_lshlrev_b32 v{T[9]}, 7, v{T[9]}")
    e(f"s_and_b32 s{sT4}, s{sFJ}, 3"); e(f"s_mul_i32 s{sT4}, s{sT4}, {288*128}")
    e(f"s_mul_i32 s{sT5}, s{sMI}, {128*1152}"); e(f"s_add_u32 s{sT4}, s{sT4}, s{sT5}")
    e(f"s_getpc_b64 s[52:53]")
    e(f"s_lshl_b32 s{sT5}, s{sH}, 6")
    e(f"v_add_u32 v{T[10]}, s{sT5}, v{vLANE}")
    e("s_waitcnt lgkmcnt(0)")
    if PRO: stamp("karg")
    e("s_mov_b32 s6, 2359296"); e("s_mov_b32 s7, 0x00020000")
    e("s_mov_b32 s8, s48"); e("s_mov_b32 s9, s49"); e("s_mov_b32 s10, 5308416"); e("s_mov_b32 s11, 0x00020000")
    e("s_mov_b32 s14, 5308416"); e("s_mov_b32 s15, 0x00020000")
    e("s_mov_b32 s18, 268435456"); e("s_mov_b32 s19, 0x00020000")
    e("s_mov_b32 s20, s50"); e("s_mov_b32 s21, s51"); e("s_mov_b32 s22, 9216"); e("s_mov_b32 s23, 0x00020000")
    KACC = Q(6); KP = Q(6)+16; KFR = Q(18); HR = KFR+16; HC = KFR+17; KRAW = KFR+18; KT = Q(30)
    e(f"s_lshl_b32 s83, s{sMI}, 4"); e(f"s_add_u32 s83, s83, s{sFJ}"); e("s_mul_i32 s83, s83, 3"); e(f"s_add_u32 s83, s83, s{sW}")
    e(f"s_cmp_lt_u32 s{sMI}, 12"); e("s_cselect_b32 s82, 1, 0")
    e(f"s_sub_u32 s3, s{sW}, 4"); e("s_cmp_lt_u32 s3, 3"); e("s_cselect_b32 s55, s82, 0")
    e(f"s_cmp_lt_u32 s{sW}, 3"); e("s_cselect_b32 s82, s82, 0")
    e("s_cmp_eq_u32 s82, 0"); e("s_cbranch_scc1 K1_KG0")
    e("s_lshl_b32 s3, s83, 8")
    e(f"v_lshlrev_b32 v{KT}, 2, v{vLANE}"); e(f"v_add_u32 v{KT}, s3, v{KT}")
    for a in range(6):
        p.vmem(f"global_load_dword v{KRAW+a}, v{KT}, s[{84+2*a}:{85+2*a}]", tag='kp', maybe=True)
    e("s_lshr_b32 s3, s83, 1"); e("s_lshl_b32 s3, s3, 2")
    e("s_load_dword s100, s[96:97], s3"); e("s_load_dword s101, s[98:99], s3")
    p.label("K1_KG0")
    if KB: e("s_barrier")
    kgst = [0]
    def kgen_piece(pi):
        n = KSPL[pi]
        if n == 0: return
        L = p.newlabel("K1_KG")
        e("s_cmp_eq_u32 s82, 0"); e(f"s_cbranch_scc1 {L}")
        wr, wi, t0, t1, t2, t3, t4, t5, t6, t7, t8, t9 = range(KT, KT+12)
        DP = "row_mask:0xf bank_mask:0xf"
        RA1, RA2, CB1, CB2 = KFR, KFR+4, KFR+8, KFR+12
        if kgst[0] == 0:
            e(f"v_lshlrev_b32 v{t0}, 1, v{vI}"); e(f"v_add_u32 v{t0}, 240, v{t0}")
            e(f"v_cmp_gt_u32 vcc, 8, v{vI}")
            e(f"s_mov_b32 s84, {hex(512 | 128 << 16)}"); e(f"s_mov_b32 s85, {hex(1280 | 1536 << 16)}")
            e(f"v_lshlrev_b32 v{t1}, 4, v{vI}")
            e(f"v_cndmask_b32 v{t0}, v{t0}, v{vI}, vcc")
            e(f"v_lshrrev_b64 {vr(t2,2)}, v{t1}, s[84:85]")
            e(f"v_cmp_le_u32 vcc, 12, v{vI}")
            e(f"v_and_b32 v{t2}, 0xffff, v{t2}")
            e(f"v_lshlrev_b32 v{t1}, 3, v{vI}")
            e(f"v_cndmask_b32 v{t0}, v{t0}, v{t2}, vcc")
            e(f"v_cvt_f32_u32 v{HC}, v{t1}"); e(f"v_cvt_f32_u32 v{HR}, v{t0}")
            e("s_waitcnt lgkmcnt(0)")
            e("s_and_b32 s3, s83, 1"); e("s_lshl_b32 s3, s3, 4")
            e("s_lshr_b32 s100, s100, s3"); e("s_lshl_b32 s100, s100, 16")
            e("s_lshr_b32 s101, s101, s3"); e("s_lshl_b32 s101, s101, 16")
            e(f"v_mov_b32 v{t0}, {fhex(LOG2E)}"); e(f"v_mul_f32 v{t0}, s100, v{t0}"); e(f"v_exp_f32 v{t0}, v{t0}"); e("s_nop 0")
            e(f"v_cvt_pk_bf16_f32 v{t0}, v{t0}, v{t0}"); e(f"v_and_b32 v{t0}, s{sMASK}, v{t0}")
            e(f"v_mul_f32 v{t1}, {fhex(LOG2E)}, v{t0}"); e(f"v_mul_f32 v{t2}, {fhex(1/(2*math.pi))}, v{t0}")
            stamp("kpre")
            e("s_waitcnt vmcnt(0)")
            stamp("kp")
            for hs in range(2):
                for a in range(6):
                    if hs: e(f"v_and_b32 v{t3+a}, s{sMASK}, v{KRAW+a}")
                    else: e(f"v_lshlrev_b32 v{t3+a}, 16, v{KRAW+a}")
                A2, B2, WR, WI = [KP + 4*hs + i for i in range(4)]
                e(f"v_mul_f32 v{A2}, v{t1}, v{t3}"); e(f"v_mul_f32 v{B2}, v{t2}, v{t4}")
                e(f"v_mul_f32 v{t5}, v{t0}, v{t5}"); e(f"v_mul_f32 v{t6}, v{t0}, v{t6}")
                e(f"v_rndne_f32 v{t9}, v{B2}")
                e(f"v_mul_f32 v{WR}, v{t7}, v{t5}"); e(f"v_mul_f32 v{WI}, v{t7}, v{t6}")
                e(f"v_sub_f32 v{B2}, v{B2}, v{t9}")
                e(f"v_fma_f32 v{WR}, -v{t8}, v{t6}, v{WR}"); e(f"v_fmac_f32 v{WI}, v{t8}, v{t5}")
            e("s_nop 1")
        for ks in range(kgst[0], kgst[0] + n):
            A2, B2, WR, WI = [KP + 4*(ks >> 2) + i for i in range(4)]
            s_ = ks & 3
            for nn in range(4):
                BC = f"row_newbcast:{4*s_+nn} {DP}"
                e(f"v_mul_f32_dpp v{t1}, v{B2}, v{HR} {BC}"); e(f"v_mul_f32_dpp v{t0}, v{A2}, v{HR} {BC}")
                e(f"v_mul_f32_dpp v{t4}, v{B2}, v{HC} {BC}"); e(f"v_mul_f32_dpp v{t3}, v{A2}, v{HC} {BC}")
                e(f"v_fract_f32 v{t1}, v{t1}"); e(f"v_exp_f32 v{t0}, v{t0}")
                e(f"v_cos_f32 v{t2}, v{t1}"); e(f"v_sin_f32 v{t1}, v{t1}")
                e(f"v_exp_f32 v{t3}, v{t3}")
                e(f"v_mul_f32 v{t2}, v{t0}, v{t2}")
                e(f"v_cos_f32 v{t5}, v{t4}")
                e(f"v_mul_f32 v{t1}, v{t0}, v{t1}")
                e(f"v_sin_f32 v{t4}, v{t4}")
                e(f"v_mul_f32_dpp v{wr}, v{WR}, v{t3} {BC}"); e(f"v_mul_f32_dpp v{wi}, v{WI}, v{t3} {BC}")
                e(f"v_cvt_pk_bf16_f32 v{RA1+nn}, v{t2}, v{t1}")
                e(f"v_mul_f32_dpp v{t6}, v{t2}, v{t2} row_newbcast:12 {DP}")
                e(f"v_mul_f32_dpp v{t7}, v{t1}, v{t2} row_newbcast:12 {DP}")
                e(f"v_mul_f32 v{t8}, v{wr}, v{t5}"); e(f"v_mul_f32 v{t9}, v{wr}, v{t4}")
                e(f"v_fmac_f32_dpp v{t6}, -v{t1}, v{t1} row_newbcast:12 {DP}")
                e(f"v_fmac_f32_dpp v{t7}, v{t2}, v{t1} row_newbcast:12 {DP}")
                e(f"v_fma_f32 v{t8}, -v{wi}, v{t4}, v{t8}"); e(f"v_fmac_f32 v{t9}, v{wi}, v{t5}")
                e(f"v_cvt_pk_bf16_f32 v{RA2+nn}, v{t6}, v{t7}")
                e(f"v_mul_f32_dpp v{t0}, v{t2}, v{t8} row_newbcast:13 {DP}")
                e(f"v_mul_f32_dpp v{t3}, v{t1}, v{t8} row_newbcast:13 {DP}")
                e(f"v_cvt_pk_bf16_f32 v{CB1+nn}, v{t8}, -v{t9}")
                e(f"v_fmac_f32_dpp v{t0}, -v{t1}, v{t9} row_newbcast:13 {DP}")
                e(f"v_fmac_f32_dpp v{t3}, v{t2}, v{t9} row_newbcast:13 {DP}")
                e(f"v_cvt_pk_bf16_f32 v{CB2+nn}, v{t0}, -v{t3}")
            e("s_nop 1")
            for a in range(2):
                for b in range(2):
                    d = KACC + 4*(2*a+b)
                    c = "0" if ks == 0 else vr(d, 4)
                    e(f"v_mfma_f32_16x16x32_bf16 {vr(d,4)}, {vr((RA1,RA2)[a],4)}, {vr((CB1,CB2)[b],4)}, {c}")
        kgst[0] += n
        if kgst[0] == 8:
            e(f"v_cmp_eq_u32 vcc, 0, v{vLANE}")
            e(f"v_mov_b32 v{t8}, s101"); e(f"v_lshlrev_b32 v{t9}, 4, v{vLANE}")
            e(f"v_cndmask_b32 v{t8}, 0, v{t8}, vcc")
            e("s_lshl_b32 s3, s83, 11"); e(f"s_add_u32 s3, s3, {KT_OFF}")
            e("s_nop 7"); e("s_nop 3")
            e(f"v_add_f32 v{KACC}, v{KACC}, v{t8}")
            for q in range(8): e(f"v_cvt_pk_bf16_f32 v{KT+q}, v{KACC+2*q}, v{KACC+2*q+1}")
            for a in range(2):
                p.vmem(f"buffer_store_dwordx4 {vr(KT+4*a,4)}, v{t9}, s[{SWS}:{SWS+3}], s3 offen offset:{1024*a} {STM}", maybe=True)
        p.label(L)
    Lc = p.newlabel("K1_PF"); Ld = p.newlabel("K1_PF")
    e(f"s_cmp_lt_u32 s{sW}, 3"); e(f"s_cbranch_scc1 {Ld}")
    e(f"s_cmp_eq_u32 s{sQI}, 3"); e(f"s_cbranch_scc0 {Lc}")
    for q in range(3):
        e(f"v_add_u32 v{T[11]}, {128*q}, v{T[10]}")
        e(f"v_min_u32 v{T[11]}, K1_CODE_LINES, v{T[11]}")
        e(f"v_lshlrev_b32 v{T[12+q]}, 7, v{T[11]}")
        e(f"global_load_dword v{T[8]}, v{T[12+q]}, s[52:53]")
    p.label(Lc)
    p.vmem(f"buffer_load_dword v{T[8]}, v{T[9]}, s[{SX}:{SX+3}], s{sT4} offen", tag='pf')
    if TW:
        e(f"s_cmp_lg_u32 s{sW}, 7"); e(f"s_cbranch_scc1 {Ld}")
        e(f"v_min_u32 v{T[11]}, 3, v{vLANE}")
        e(f"v_mul_u32_u24 v{T[12]}, {191*9216}, v{T[11]}")
        e(f"s_mul_i32 s{sT3}, s{sFJ}, 576")
        e(f"buffer_load_dword v{T[8]}, v{T[12]}, s[{SW1}:{SW1+3}], s{sT3} offen")
        e(f"v_mul_u32_u24 v{T[13]}, 110548, v{T[11]}")
        e(f"s_mul_i32 s{sT3}, s{sFJ}, 331776")
        e(f"buffer_load_dword v{T[8]}, v{T[13]}, s[{SW2}:{SW2+3}], s{sT3} offen")
        e(f"v_mul_u32_u24 v{T[14]}, 786400, v{T[11]}")
        e(f"s_mul_i32 s{sT3}, s{sFJ}, 2359296")
        e(f"buffer_load_dword v{T[8]}, v{T[14]}, s[{SWS}:{SWS+3}], s{sT3} offen")
        e(f"v_mul_u32_u24 v{T[15]}, 1572800, v{T[11]}")
        e(f"s_mov_b32 s{sT3}, {X4_OFF}")
        e(f"buffer_load_dword v{T[8]}, v{T[15]}, s[{SWS}:{SWS+3}], s{sT3} offen")
    p.label(Ld)
    def xdma1(c, extra):
        for nn in range(2):
            e(f"s_add_u32 m0, s{sXM}, {16384*c + 1024*nn + (-8192 if extra else 0)}")
            e(f"s_add_u32 s{sT}, s{sXS}, {128*c + nn*16*1152 + (-64*1152 if extra else 0)}")
            p.vmem(f"buffer_load_dwordx4 v{T[nn]}, s[{SX}:{SX+3}], s{sT} offen lds", tag=('x', c), maybe=extra)
    def xdma3(c0):
        L1 = p.newlabel("K1_XD"); L2 = p.newlabel("K1_XD")
        e("s_cmp_eq_u32 s55, 0"); e(f"s_cbranch_scc1 {L1}")
        for c in range(c0, c0+3): xdma1(c, True)
        p.label(L1)
        e("s_cmp_eq_u32 s82, 1"); e(f"s_cbranch_scc1 {L2}")
        for c in range(c0, c0+3): xdma1(c, False)
        p.label(L2)
    e("s_setprio 3")
    xdma3(0)
    e("s_setprio 0")
    e(f"s_and_b32 s{sT2}, s{sFJ}, 1")
    e(f"s_mul_i32 s{sT3}, s{sFJ}, 576")
    e(f"s_add_u32 s{sT5}, s{sQI}, 8")
    e(f"s_mul_i32 s{sRP1}, s{sW}, {8*9216}"); e(f"s_mul_i32 s{sRP1X}, s{sT5}, {8*9216}")
    e(f"s_lshl_b32 s{sT4}, s{sT2}, 6"); e(f"s_add_u32 s{sT4}, s{sT4}, s{sT3}")
    e(f"s_lshl_b32 s{sT}, s{sT2}, 9"); e(f"s_sub_u32 s{sT}, 512, s{sT}"); e(f"s_add_u32 s{sT}, s{sT}, s{sT3}")
    e(f"s_add_u32 s{sRP8}, s{sRP1}, s{sT}"); e(f"s_add_u32 s{sRP8X}, s{sRP1X}, s{sT}")
    e(f"s_add_u32 s{sRP1}, s{sRP1}, s{sT4}"); e(f"s_add_u32 s{sRP1X}, s{sRP1X}, s{sT4}")
    e(f"s_mul_i32 s{sT}, s{sH}, {96*9216}"); e(f"s_add_u32 s{sRP1H}, s{sRP1X}, s{sT}")
    e(f"s_mul_i32 s{sT}, s{sH}, {192*9216}"); e(f"s_add_u32 s{sRP8H}, s{sRP8X}, s{sT}")
    def rowperm(dst, nreg, tmp):
        e(f"s_lshr_b32 s{dst}, s{nreg}, 2"); e(f"s_lshl_b32 s{dst}, s{dst}, 5")
        e(f"s_and_b32 s{tmp}, s{nreg}, 1"); e(f"s_lshl_b32 s{tmp}, s{tmp}, 4"); e(f"s_add_u32 s{dst}, s{dst}, s{tmp}")
        e(f"s_and_b32 s{tmp}, s{nreg}, 2"); e(f"s_lshl_b32 s{tmp}, s{tmp}, 2"); e(f"s_add_u32 s{dst}, s{dst}, s{tmp}")
    rowperm(sRP2, sW, sT4); rowperm(sRP2X, sT5, sT4)
    e(f"s_mul_i32 s{sT}, s{sFJ}, 288"); e(f"s_lshl_b32 s{sT4}, s{sT2}, 5"); e(f"s_add_u32 s{sT}, s{sT}, s{sT4}"); e(f"s_sub_u32 s{sT}, s{sT}, 32")
    e(f"s_add_u32 s{sRP2}, s{sRP2}, s{sT}"); e(f"s_add_u32 s{sRP2X}, s{sRP2X}, s{sT}")
    e(f"s_or_b32 s{sT4}, s{sT2}, s{sH}"); e(f"s_cmp_eq_u32 s{sT4}, 0"); e(f"s_cselect_b32 s{sT4}, 288, 0")
    e(f"s_add_u32 s{sRP2K0}, s{sRP2}, s{sT4}")
    e(f"s_mul_i32 s{sRP2}, s{sRP2}, 1152"); e(f"s_mul_i32 s{sRP2X}, s{sRP2X}, 1152"); e(f"s_mul_i32 s{sRP2K0}, s{sRP2K0}, 1152")
    e(f"s_lshl_b32 s{sM0W}, s{sW}, 10"); e(f"s_lshl_b32 s{sM0X}, s{sT5}, 10")
    e(f"s_mul_i32 s{sT}, s{sH}, 12288"); e(f"s_add_u32 s{sM0H}, s{sM0X}, s{sT}")
    e("s_setprio 2")
    xdma3(3)
    e("s_setprio 0")
    e(f"v_and_b32 v{T[4]}, 1, v{vG}")
    e(f"v_lshlrev_b32 v{T[4]}, 2, v{T[4]}")
    e(f"v_xor_b32 v{T[4]}, v{T[4]}, v{T[3]}")
    e(f"v_mul_u32_u24 v{T[10]}, 9216, v{T[2]}")
    e(f"v_lshl_add_u32 v{vOW1}, v{T[4]}, 4, v{T[10]}")
    e(f"v_lshrrev_b32 v{T[11]}, 2, v{T[4]}")
    e(f"v_mul_u32_u24 v{T[11]}, {96*9216}, v{T[11]}")
    e(f"v_and_b32 v{T[4]}, 3, v{T[4]}")
    e(f"v_lshlrev_b32 v{T[4]}, 4, v{T[4]}")
    e(f"v_add3_u32 v{vOW8}, v{T[4]}, v{T[10]}, v{T[11]}")
    e(f"v_lshlrev_b32 v{T[4]}, 1, v{vG}")
    e(f"v_xor_b32 v{T[4]}, v{T[4]}, v{T[3]}")
    e(f"v_mul_u32_u24 v{T[10]}, 1152, v{T[2]}")
    e(f"v_lshl_add_u32 v{vOW2}, v{T[4]}, 4, v{T[10]}")
    e(f"v_lshrrev_b32 v{T[4]}, 2, v{vI}")
    e(f"v_and_b32 v{T[10]}, 3, v{vLANE}")
    e(f"v_lshlrev_b32 v{T[10]}, 3, v{T[10]}")
    e(f"v_lshrrev_b32 v{T[5]}, 1, v{vG}")
    e(f"v_lshl_add_u32 v{T[9]}, v{T[5]}, 3, v{T[4]}")
    e(f"v_lshl_add_u32 v{T[9]}, v{T[9]}, 7, v{T[10]}")
    e(f"v_lshrrev_b32 v{T[11]}, 1, v{T[4]}")
    e(f"v_xor_b32 v{T[11]}, s{sH}, v{T[11]}")
    e(f"v_lshl_add_u32 v{T[9]}, v{T[11]}, 6, v{T[9]}")
    e(f"v_and_b32 v{T[11]}, 1, v{vG}")
    e(f"v_lshl_add_u32 v{vA['8']}, v{T[11]}, 5, v{T[9]}")
    e(f"s_mul_i32 s{sT4}, s{sH}, 12288"); e(f"s_sub_u32 s{sT5}, 12288, s{sT4}")
    e(f"v_add_u32 v{vA[('n',0,0)]}, s{sT4}, v{vA['8']}"); e(f"v_add_u32 v{vA[('n',1,0)]}, s{sT5}, v{vA['8']}")
    e(f"v_add_u32 v{vA[('n',0,1)]}, 49152, v{vA[('n',0,0)]}"); e(f"v_add_u32 v{vA[('n',1,1)]}, 49152, v{vA[('n',1,0)]}")
    e(f"v_lshl_add_u32 v{T[9]}, v{vG}, 2, v{T[4]}")
    e(f"v_lshl_add_u32 v{T[10]}, v{T[9]}, 7, v{T[10]}")
    e(f"v_bfe_u32 v{T[9]}, v{T[9]}, 1, 2")
    e(f"s_lshl_b32 s{sT}, s{sH}, 1")
    e(f"v_xor_b32 v{T[9]}, s{sT}, v{T[9]}")
    e(f"v_lshl_add_u32 v{vA[('p',0,0)]}, v{T[9]}, 5, v{T[10]}")
    e(f"v_xor_b32 v{vA[('p',1,0)]}, 32, v{vA[('p',0,0)]}")
    for t in (0, 1): e(f"v_add_u32 v{vA[('p',t,1)]}, 49152, v{vA[('p',t,0)]}")
    e(f"s_lshl_b32 s{sT}, s{sQI}, 11"); e(f"s_add_u32 s{sT}, s{sT}, {PREG}")
    e(f"v_lshlrev_b32 v{T[11]}, 4, v{vLANE}")
    e(f"v_add_u32 v{T[11]}, s{sT}, v{T[11]}")
    e(f"s_lshl_b32 s{sT4}, s{sH}, 13"); e(f"v_add_u32 v{vPW}, s{sT4}, v{T[11]}")
    e(f"v_xor_b32 v{vXR}, 8192, v{vPW}")
    e(f"s_lshl_b32 s{sT4}, s{sH}, 10"); e(f"v_add_u32 v{vP8}, s{sT4}, v{T[11]}")
    e(f"s_lshl_b32 s{sT4}, s{sH}, 14"); e(f"v_add_u32 v{v8R}, s{sT4}, v{T[11]}")
    e(f"v_lshlrev_b32 v{T[9]}, 9, v{vG}")
    e(f"v_lshl_add_u32 v{T[9]}, v{vI}, 4, v{T[9]}")
    e(f"v_add_u32 v{vPR}, s{sT}, v{T[9]}")
    e(f"v_lshlrev_b32 v{T[9]}, 4, v{T[5]}")
    e(f"v_add_u32 v{vBI8}, {BIAS}, v{T[9]}")
    e(f"s_lshl_b32 s{sT4}, s{sH}, 7"); e(f"v_add_u32 v{vBI}, s{sT4}, v{vBI8}")
    e(f"s_mul_i32 s{sT}, s{sFJ}, 144"); e(f"s_lshl_b32 s{sT4}, s{sH}, 3"); e(f"s_add_u32 s{sT}, s{sT}, s{sT4}")
    e(f"s_lshl_b32 s{sT}, s{sT}, 14")
    e(f"s_lshl_b32 s{sT4}, s{sMI}, 10"); e(f"s_add_u32 s{sT}, s{sT}, s{sT4}")
    e(f"s_lshl_b32 s{sT4}, s{sQI}, 8"); e(f"s_add_u32 s{sT}, s{sT}, s{sT4}")
    e(f"v_lshlrev_b32 v{vOO}, 14, v{vG}")
    e(f"v_lshl_add_u32 v{vOO}, v{vI}, 4, v{vOO}")
    e(f"v_add_u32 v{vOO}, s{sT}, v{vOO}")
    e("s_setprio 1")
    xdma3(6)
    e("s_setprio 0")
    if PRO: stamp("xissued")
    kgen_piece(0)
    stamp("kpost")
    e(f"v_cmp_gt_u32 vcc, 32, v0")
    e(f"v_mov_b32 v{T[6]}, -32")
    e(f"v_mov_b32 v{T[7]}, 256")
    e(f"v_cndmask_b32 v{T[6]}, v{T[6]}, v{T[7]}, vcc")
    e(f"s_sub_u32 s{sT4}, s{sT2}, 1")
    e(f"v_and_b32 v{T[6]}, s{sT4}, v{T[6]}")
    e(f"v_add_u32 v{T[6]}, v{T[6]}, v0")
    e(f"v_min_u32 v{T[6]}, 287, v{T[6]}")
    e(f"v_lshlrev_b32 v{T[6]}, 1, v{T[6]}")
    p.vmem(f"buffer_load_ushort v{T[7]}, v{T[6]}, s[{SB1}:{SB1+3}], s{sT3} offen", tag='bias')
    e(f"v_min_u32 v{T[9]}, 359, v0")
    e(f"v_mul_u32_u24 v{T[10]}, 205, v{T[9]}")
    e(f"v_lshrrev_b32 v{T[10]}, 10, v{T[10]}")
    e(f"v_mul_u32_u24 v{T[11]}, 5, v{T[10]}")
    e(f"v_sub_u32 v{T[9]}, v{T[9]}, v{T[11]}")
    e(f"v_mul_u32_u24 v{T[10]}, 9216, v{T[10]}")
    e(f"v_lshl_add_u32 v{T[9]}, v{T[9]}, 7, v{T[10]}")
    e(f"s_and_b32 s{sT5}, s{sMI}, 7")
    e(f"s_mul_i32 s{sT}, s{sT5}, {72*9216}")
    e(f"s_and_b32 s{sT4}, s{sT3}, 0xffffff80")
    e(f"s_add_u32 s{sT}, s{sT}, s{sT4}")
    if W1T == 1: p.vmem(f"buffer_load_dword v{T[8]}, v{T[9]}, s[{SW1}:{SW1+3}], s{sT} offen", tag='pf')
    def w2_touch(wv):
        L = p.newlabel("K1_T")
        e(f"s_cmp_eq_u32 s{sW}, {wv}")
        e(f"s_cbranch_scc0 {L}")
        e(f"v_min_u32 v{vXTA}, 323, v0")
        e(f"v_lshlrev_b32 v{vXTA}, 7, v{vXTA}")
        e(f"s_and_b32 s{sT5}, s{sMI}, 7")
        e(f"s_mul_i32 s{sT}, s{sFJ}, {288*1152}")
        e(f"s_mul_i32 s{sT4}, s{sT5}, {324*128}")
        e(f"s_add_u32 s{sT}, s{sT}, s{sT4}")
        p.vmem(f"buffer_load_dword v{vROW}, v{vXTA}, s[{SW2}:{SW2+3}], s{sT} offen", maybe=True)
        p.label(L)
    def w1_touch(wv):
        L = p.newlabel("K1_T")
        e(f"s_cmp_eq_u32 s{sW}, {wv}")
        e(f"s_cbranch_scc0 {L}")
        e(f"v_min_u32 v{vXTA}, 359, v0")
        e(f"v_mul_u32_u24 v{vROW}, 205, v{vXTA}")
        e(f"v_lshrrev_b32 v{vROW}, 10, v{vROW}")
        e(f"v_lshlrev_b32 v{vXTA}, 7, v{vXTA}")
        e(f"v_mul_u32_u24 v{vROW}, {9216-640}, v{vROW}")
        e(f"v_add_u32 v{vXTA}, v{vXTA}, v{vROW}")
        e(f"s_and_b32 s{sT5}, s{sMI}, 7")
        e(f"s_mul_i32 s{sT}, s{sT5}, {72*9216}")
        e(f"s_and_b32 s{sT4}, s{sT3}, 0xffffff80")
        e(f"s_add_u32 s{sT}, s{sT}, s{sT4}")
        p.vmem(f"buffer_load_dword v{vROW}, v{vXTA}, s[{SW1}:{SW1+3}], s{sT} offen", maybe=True)
        p.label(L)
    def touch(wv, which, tau, start, count):
        L = p.newlabel("K1_T")
        e(f"s_cmp_eq_u32 s{sW}, {wv}")
        e(f"s_cbranch_scc0 {L}")
        e(f"v_min_u32 v{vXTA}, {count-1}, v{vLANE}")
        e(f"s_and_b32 s{sT5}, s{sMI}, 7")
        if which == 1:
            e(f"v_mul_u32_u24 v{vXTA}, 9216, v{vXTA}")
            e(f"s_mul_i32 s{sT}, s{sT5}, {72*9216}")
            e(f"s_lshl_b32 s{sT4}, s{sT2}, 6"); e(f"s_add_u32 s{sT4}, s{sT4}, s{sT3}")
            e(f"s_add_u32 s{sT}, s{sT}, s{sT4}"); e(f"s_add_u32 s{sT}, s{sT}, {128*tau + start*9216}")
        else:
            e(f"v_lshlrev_b32 v{vXTA}, 7, v{vXTA}")
            e(f"s_mul_i32 s{sT}, s{sFJ}, {288*1152}")
            e(f"s_mul_i32 s{sT4}, s{sT5}, {324*128}")
            e(f"s_add_u32 s{sT}, s{sT}, s{sT4}"); e(f"s_add_u32 s{sT}, s{sT}, {128*start}")
        srd = SW1 if which == 1 else SW2
        p.vmem(f"buffer_load_dword v{vROW}, v{vXTA}, s[{srd}:{srd+3}], s{sT} offen", maybe=True)
        p.label(L)
    def touches(seg):
        o = []
        if W1T == 4 and T1S <= seg < T1S + 12:
            q = seg - T1S
            o.append(lambda: touch(seg % 8, 1, 1 + q // 4, 18 * (q % 4), 18))
        if W2T == 4 and T2S <= seg < T2S + T2N:
            c = 324 // T2N
            o.append(lambda: touch((seg + 4) % 8, 2, 0, c * (seg - T2S), c))
        return o
    e(f"v_bfe_u32 v{T[12]}, v{vLANE}, 1, 3")
    e(f"v_xor_b32 v{T[12]}, s{sW}, v{T[12]}")
    e(f"v_lshlrev_b32 v{T[12]}, 4, v{T[12]}")
    e(f"v_lshl_add_u32 v{T[12]}, v{vI}, 7, v{T[12]}")
    e(f"v_lshl_add_u32 v{T[12]}, v{vG}, 12, v{T[12]}")
    e(f"s_sub_u32 s51, s{sFJ}, 7")
    e(f"s_lshl_b32 s{sT}, s51, 14")
    e(f"v_add_u32 v{T[12]}, s{sT}, v{T[12]}")
    e(f"v_add_u32 v{T[13]}, 8, v{T[12]}")
    e(f"v_lshlrev_b32 v{T[14]}, 4, v{vLANE}")
    e(f"s_lshl_b32 s52, s51, 18"); e(f"s_lshl_b32 s{sT}, s{sW}, 15"); e(f"s_add_u32 s52, s52, s{sT}")
    e(f"s_lshl_b32 s{sT}, s{sMI}, 10"); e(f"s_add_u32 s52, s52, s{sT}"); e(f"s_add_u32 s52, s52, {X4_OFF}")
    e(f"s_add_u32 s53, s52, 16384")
    def w2_prefetch():
        e(f"v_min_u32 v{T[9]}, 323, v0")
        e(f"v_lshlrev_b32 v{T[9]}, 7, v{T[9]}")
        e(f"s_and_b32 s{sT5}, s{sMI}, 7")
        e(f"s_mul_i32 s{sT}, s{sFJ}, {288*1152}")
        e(f"s_mul_i32 s{sT4}, s{sT5}, {324*128}")
        e(f"s_add_u32 s{sT}, s{sT}, s{sT4}")
        p.vmem(f"buffer_load_dword v{T[8]}, v{T[9]}, s[{SW2}:{SW2+3}], s{sT} offen", tag='pf')
    XA = lambda j: SA + j
    e(f"v_and_b32 v{T[10]}, 31, v{vLANE}")
    e(f"v_bfe_u32 v{T[9]}, v{vLANE}, 1, 3")
    e(f"v_xor_b32 v{T[9]}, v{T[9]}, v{T[5]}")
    e(f"s_lshl_b32 s{sT}, s{sQI}, 5")
    e(f"v_add_u32 v{vROW}, s{sT}, v{T[10]}")
    e(f"v_lshlrev_b32 v{T[10]}, 7, v{vROW}")
    for j in range(6):
        e(f"s_mul_i32 s{sT}, s{sH}, 6"); e(f"s_add_u32 s{sT}, s{sT}, {j}")
        e(f"s_and_b32 s{sT4}, s{sT}, 3"); e(f"s_lshl_b32 s{sT4}, s{sT4}, 1")
        e(f"s_lshr_b32 s{sT}, s{sT}, 2"); e(f"s_lshl_b32 s{sT}, s{sT}, 14")
        e(f"v_xor_b32 v{T[11]}, s{sT4}, v{T[9]}")
        e(f"v_lshl_add_u32 v{T[11]}, v{T[11]}, 4, v{T[10]}")
        e(f"v_add_u32 v{XA(j)}, s{sT}, v{T[11]}")
    e(f"v_lshrrev_b32 v{T[9]}, 1, v{T[4]}")
    e(f"v_lshl_add_u32 v{T[9]}, v{vG}, 2, v{T[9]}")
    e(f"v_and_b32 v{T[10]}, 1, v{T[4]}")
    e(f"v_lshl_add_u32 v{T[9]}, v{T[10]}, 4, v{T[9]}")
    e(f"v_bfe_u32 v{T[10]}, v{vLANE}, 1, 1")
    e(f"s_and_b32 s{sT}, s{sW}, 6")
    e(f"v_or_b32 v{T[10]}, s{sT}, v{T[10]}")
    e(f"v_lshlrev_b32 v{T[11]}, 1, v{vG}")
    e(f"v_xor_b32 v{T[10]}, v{T[10]}, v{T[11]}")
    e(f"v_lshlrev_b32 v{T[9]}, 7, v{T[9]}")
    e(f"v_and_b32 v{T[11]}, 1, v{vLANE}")
    e(f"v_lshl_add_u32 v{T[9]}, v{T[11]}, 3, v{T[9]}")
    e(f"s_and_b32 s{sT}, s{sW}, 1"); e(f"s_lshl_b32 s{sT}, s{sT}, 13")
    e(f"s_lshl_b32 s{sT4}, s{sFJ}, 14"); e(f"s_add_u32 s{sT}, s{sT}, s{sT4}")
    e(f"v_add_u32 v{T[9]}, s{sT}, v{T[9]}")
    e(f"v_lshl_add_u32 v{vXTA}, v{T[10]}, 4, v{T[9]}")
    vXTB = SA + 6
    e(f"v_xor_b32 v{vXTB}, 16, v{vXTA}")
    ACC = [SA + 8, SA + 9, SA + 10]
    for a in ACC: e(f"v_mov_b32 v{a}, 0")
    for i in range(4): e(f"v_mov_b32 v{WF+i}, s{sONE}")

    D = [(('B', 0, 0), ('B', 0, 1)), (('8', 0), ('8', 1)), (('B', 0, 2), ('B', 0, 3)), (('B', 0, 4), ('B', 0, 5)), (('8', 2), None)]
    for tau in (1, 2, 3):
        for k in range(3): D.append((('B', tau, 2*k), ('B', tau, 2*k+1)))
    p2 = [('E', 0, 0), ('E', 0, 1), ('E', 1, 0), ('E', 1, 1), ('E', 0, 2), ('E', 1, 2)]
    for j in range(2, 9): p2 += [('E', j, k) for k in range(3)]
    for i in range(0, len(p2), 2): D.append((p2[i], p2[i+1] if i + 1 < len(p2) else None))
    uloc = {}
    for k, (a, b) in enumerate(D):
        uloc[a] = (k, 0)
        if b: uloc[b] = (k, 1)
    def uparams(u):
        if u[0] == 'B': return SW1, vOW1, 96 * u[2] * 9216 + 128 * u[1], sRP1, sRP1X, sRP1H
        if u[0] == '8': return SW1, vOW8, 192 * u[1] * 9216, sRP8, sRP8X, sRP8H
        return SW2, vOW2, 96 * u[2] * 1152 + 128 * u[1], (sRP2K0 if u[2] == 0 else sRP2), sRP2X, None
    def dma_double(k):
        ops = []
        lds0 = slot_of(k) * 24576
        def one(m0r, m0i, sr_, base, srd, vo, maybe=False):
            e(f"s_add_u32 m0, s{m0r}, {m0i}")
            e(f"s_add_u32 s{sT}, s{sr_}, {base}")
            p.vmem(f"buffer_load_dwordx4 v{vo}, s[{srd}:{srd+3}], s{sT} offen lds", tag=('u', k), maybe=maybe)
        for half, u in enumerate(D[k]):
            if not u: continue
            srd, vo, base, r, rx, rh = uparams(u)
            ops.append(lambda srd=srd, vo=vo, base=base, r=r, half=half: one(sM0W, lds0 + half*12288, r, base, srd, vo))
        a, b = D[k]
        if b and a[0] != 'E':
            srd, vo, base, r, rx, rh = uparams(a)
            ops.append(lambda: one(sM0H, lds0, rh, base, srd, vo))
        else:
            for half, u in enumerate(D[k]):
                if not u: continue
                srd, vo, base, r, rx, rh = uparams(u)
                def extra(srd=srd, vo=vo, base=base, rx=rx, half=half):
                    L = p.newlabel("K1_X")
                    e(f"s_cmp_eq_u32 s{sH}, {half}")
                    e(f"s_cbranch_scc0 {L}")
                    one(sM0X, lds0 + half*12288, rx, base, srd, vo, maybe=True)
                    p.label(L)
                ops.append(extra)
        return ops

    if PRO: stamp("setup")
    for R in range(3):
        if R: kgen_piece(R)
        p.wait(vm=[('x', 3*R+2)], lg_all=True)
        e("s_barrier")
        stamp(f"xround{R}")
        for j in range(6):
            p.ds(f"ds_read_b128 {vr(Q(12*R+j), 4)}, v{XA(j)}", tag=('raw', R, j))
        if R == 1 or (R == 2 and not DL):
            for k in (2*(R-1), 2*(R-1)+1):
                for op in dma_double(k): op()
        if R < 2:
            for j in range(6): e(f"v_add_u32 v{XA(j)}, 49152, v{XA(j)}")
        L = p.newlabel("K1_XT")
        e(f"s_sub_u32 s{sT}, s{sFJ}, {3*R}")
        e(f"s_cmp_lt_u32 s{sT}, 3")
        e(f"s_cbranch_scc0 {L}")
        for job in range(2):
            e(f"ds_read_b64_tr_b16 {vr(vXT+4*job, 2)}, v{vXTA} offset:{4096*job}")
            e(f"ds_read_b64_tr_b16 {vr(vXT+4*job+2, 2)}, v{vXTB} offset:{4096*job+256}")
        e("s_waitcnt lgkmcnt(0)")
        p.label(L)
        L = p.newlabel("K1_X4")
        e(f"s_sub_u32 s{sT}, s51, {3*R}")
        e(f"s_cmp_lt_u32 s{sT}, 3")
        e(f"s_cbranch_scc0 {L}")
        e(f"ds_read2st64_b64 {vr(SC,4)}, v{T[12]} offset0:0 offset1:4")
        e(f"ds_read2st64_b64 {vr(SC+4,4)}, v{T[13]} offset0:0 offset1:4")
        e("s_waitcnt lgkmcnt(0)")
        p.vmem(f"buffer_store_dwordx4 {vr(SC,4)}, v{T[14]}, s[{SWS}:{SWS+3}], s52 offen {STM}", maybe=True)
        p.vmem(f"buffer_store_dwordx4 {vr(SC+4,4)}, v{T[14]}, s[{SWS}:{SWS+3}], s53 offen {STM}", maybe=True)
        p.label(L)
        for j in range(6):
            p.wait(lg=[('raw', R, j)])
            first = (R == 0 and j == 0)
            e(f"v_mfma_f32_32x32x16_bf16 {vr(SB,16)}, {vr(WF,4)}, {vr(Q(12*R+j),4)}, " + ("0" if first else vr(SB,16)))
            for d in range(4):
                x = Q(12*R+j) + d
                e(f"v_dot2_f32_bf16 v{ACC[1+(d&1)]}, v{x}, v{x}, v{ACC[1+(d&1)]}")
        if R == 1 and W2T == 0: w2_prefetch()
    p.wait(vm=['bias'])
    e(f"v_lshlrev_b32 v{T[7]}, 16, v{T[7]}")
    e(f"v_mov_b32 v{T[5]}, {fhex(ALPHA)}")
    e(f"v_mov_b32 v{T[4]}, {fhex(ALPHA*0.5)}")
    e(f"v_cmp_gt_u32 vcc, 32, v0")
    e(f"v_min_u32 v{T[6]}, 287, v0")
    e(f"v_lshlrev_b32 v{T[6]}, 2, v{T[6]}")
    e(f"v_cndmask_b32 v{T[5]}, v{T[5]}, v{T[4]}, vcc")
    e(f"v_add_u32 v{T[6]}, {BIAS}, v{T[6]}")
    e(f"v_mul_f32 v{T[7]}, v{T[7]}, v{T[5]}")
    e(f"v_cmp_gt_u32 vcc, 288, v0")
    e(f"s_and_saveexec_b64 s[54:55], vcc")
    p.ds(f"ds_write_b32 v{T[6]}, v{T[7]}")
    e(f"s_mov_b64 exec, s[54:55]")
    e(f"v_add_f32 v{ACC[1]}, v{ACC[1]}, v{ACC[2]}")
    e(f"v_mov_b32 v{T[0]}, v{ACC[1]}")
    e(f"s_lshl_b32 s{sT}, s{sH}, 3"); e(f"s_add_u32 s{sT}, s{sT}, {STAT}")
    e(f"v_lshlrev_b32 v{T[4]}, 4, v{vROW}")
    e(f"v_permlane32_swap_b32 v{ACC[1]}, v{T[0]}")
    e(f"v_add_u32 v{T[5]}, s{sT}, v{T[4]}")
    e(f"v_mov_b32 v{ACC[0]}, v{SB}")
    e(f"v_add_f32 v{ACC[1]}, v{ACC[1]}, v{T[0]}")
    p.ds(f"ds_write_b64 v{T[5]}, v[{ACC[0]}:{ACC[1]}]")
    e(f"v_add_u32 v{T[4]}, {STAT}, v{T[4]}")
    kgen_piece(3)
    assert kgst[0] == 8
    p.wait(lg_all=True)
    e("s_barrier")
    stamp("statbar")
    p.ds(f"ds_read_b128 {vr(T[8], 4)}, v{T[4]}", tag='st')
    def bias_init(S, tau):
        if tau == 8: return [lambda gg=gg: p.ds(f"ds_read_b128 {vr(S + gg*4, 4)}, v{vBI8} offset:{gg*32}", tag=('bias', tau)) for gg in range(4)]
        return [lambda gg=gg: p.ds(f"ds_read_b128 {vr(S + gg*4, 4)}, v{vBI} offset:{(32+64*tau+8*gg)*4}", tag=('bias', tau)) for gg in range(4)]
    for op in bias_init(SA, 0) + bias_init(SB, 8): op()
    p.wait(lg=['st'])
    inv = 1.0 / 576.0
    b = T[8]
    for s_ in [f"v_add_f32 v{b}, v{b}, v{b+2}", f"v_add_f32 v{b+1}, v{b+1}, v{b+3}",
            f"v_mul_f32 v{b}, {fhex(inv)}, v{b}", f"v_mul_f32 v{b+1}, {fhex(inv)}, v{b+1}",
            f"v_fma_f32 v{b+1}, -v{b}, v{b}, v{b+1}", f"v_max_f32 v{b+1}, 0, v{b+1}",
            f"v_cvt_pk_bf16_f32 v{b+2}, v{b}, v{b+1}", f"v_lshlrev_b32 v{b}, 16, v{b+2}",
            f"v_and_b32 v{b+1}, s{sMASK}, v{b+2}", f"v_add_f32 v{b+1}, {fhex(1e-5)}, v{b+1}",
            f"v_cvt_pk_bf16_f32 v{b+1}, v{b+1}, v{b+1}", f"v_and_b32 v{b+1}, s{sMASK}, v{b+1}",
            f"v_sqrt_f32 v{b+1}, v{b+1}", "s_nop 0", f"v_cvt_pk_bf16_f32 v{b+1}, v{b+1}, v{b+1}",
            f"v_and_b32 v{b+1}, s{sMASK}, v{b+1}", f"v_rcp_f32 v{b+2}, v{b+1}",
            f"v_lshlrev_b32 v{T[4]}, 3, v{vROW}",
            f"v_mul_f32 v{b+3}, -v{b}, v{b+2}", f"v_add_u32 v{T[4]}, {RCT}, v{T[4]}",
            f"v_mul_f32 v{vR}, s{sAL}, v{b+2}", f"v_mul_f32 v{vC}, s{sAL}, v{b+3}"]: e(s_)
    p.ds(f"ds_write_b64 v{T[4]}, v[{b+2}:{b+3}]", tag='w')

    seq = []
    def G(k, areg, imm, d2, mfs, need=()):
        seq.append(dict(kind='G', unit=k, areg=areg, imm=imm, d2=d2, mf=mfs, need=list(need)))
    def BAR(bg=(), pre=()):
        seq.append(dict(kind='BAR', bg=list(bg), first=list(pre)))
    def p1_group(tau, S, Dk, own, j, need=()):
        k = uloc[('B', tau, 2*Dk)][0]; slot = k % 4
        q = Q(12*Dk + 6*own + j)
        G(k, vA[('n', own, slot >> 1)], (slot & 1) * 24576 + j * 2048, 512,
          [lambda wf: f"v_mfma_f32_32x32x16_bf16 {vr(S,16)}, {vr(wf,4)}, {vr(q,4)}, {vr(S,16)}"], need)
    def b8_group(Dk, j, need=()):
        k, half = uloc[('8', Dk)]; slot = k % 4
        assert slot < 2
        q = Q(12*Dk + j)
        G(k, vA['8'], slot * 24576 + half * 12288 + j * 2048, 512,
          [lambda wf: f"v_mfma_f32_32x32x16_bf16 {vr(SB,16)}, {vr(wf,4)}, {vr(q,4)}, {vr(SB,16)}"], need)
    def norm_ops(slot0, buf):
        ops = []
        for sg in range(2):
            q = Q(slot0 + sg)
            tt = [TMP + 8*sg + i for i in range(8)]
            for d in range(4):
                ops.append(lambda d=d, q=q, tt=tt: e(f"v_lshlrev_b32 v{tt[2*d]}, 16, v{q+d}"))
                ops.append(lambda d=d, q=q, tt=tt: e(f"v_and_b32 v{tt[2*d+1]}, s{sMASK}, v{q+d}"))
            for d in range(8):
                ops.append(lambda d=d, tt=tt: e(f"v_fma_f32 v{tt[d]}, v{tt[d]}, v{vR}, v{vC}"))
            for d in range(4):
                ops.append(lambda d=d, q=q, tt=tt: e(f"v_cvt_pk_bf16_f32 v{q+d}, v{tt[2*d]}, v{tt[2*d+1]}"))
            ops.append(lambda q=q, sg=sg: p.ds(f"ds_write_b128 v{vPW}, {vr(q,4)} offset:{buf*16384+sg*1024}", tag='w'))
        return ops
    def gelu_ops(regs4, dst2, tbase):
        ops = []
        tt = [tbase + i for i in range(4)]
        for i in range(4): ops.append(lambda i=i: e(f"v_fmaak_f32 v{tt[i]}, v{regs4+i}, v{regs4+i}, {fhex(CA)}"))
        for i in range(4): ops.append(lambda i=i: e(f"v_mul_f32 v{tt[i]}, v{regs4+i}, v{tt[i]}"))
        for i in range(4): ops.append(lambda i=i: e(f"v_exp_f32 v{tt[i]}, -v{tt[i]}"))
        for i in range(4): ops.append(lambda i=i: e(f"v_fma_f32 v{tt[i]}, v{tt[i]}, s{sAL}, s{sAL}"))
        for i in range(4): ops.append(lambda i=i: e(f"v_rcp_f32 v{tt[i]}, v{tt[i]}"))
        for i in range(4): ops.append(lambda i=i: e(f"v_mul_f32 v{tt[i]}, v{regs4+i}, v{tt[i]}"))
        for i in range(2): ops.append(lambda i=i: e(f"v_cvt_pk_bf16_f32 v{dst2+i}, v{tt[2*i]}, v{tt[2*i+1]}"))
        return ops
    def gelu_block(S, tau):
        ops = []
        slot = (1 + 2*tau) if tau < 3 else 0
        for kap in range(2):
            pw = TMP + 8 + 4*kap
            for t in range(2):
                ops += gelu_ops(S + (kap*2+t)*4, pw + 2*t, TMP + 4*t)
            ops.append(lambda pw=pw, kap=kap: p.ds(f"ds_write_b128 v{vPW}, {vr(pw,4)} offset:{slot*8192+kap*1024}", tag='w'))
        return ops
    def s8_write():
        return [lambda gg=gg: p.ds(f"ds_write_b128 v{vPW}, {vr(SB+4*gg,4)} offset:{24576 + (gg>>1)*16384 + (gg&1)*1024}", tag='w') for gg in range(4)]
    def s8_read():
        ops = []
        for hh in range(2):
            for c in range(2):
                dst = (SC if hh == 0 else vXT) + 4*c
                ops.append(lambda hh=hh, c=c, dst=dst: p.ds(f"ds_read_b128 {vr(dst,4)}, v{v8R} offset:{24576 + hh*8192 + c*1024}", tag='s8'))
        return ops
    def gelu_b8():
        ops = [lambda: p.wait(lg=['s8'])]
        for i in range(8): ops.append(lambda i=i: e(f"v_add_f32 v{SC+i}, v{SC+i}, v{vXT+i}"))
        pw = TMP + 8
        for t in range(2): ops += gelu_ops(SC + 4*t, pw + 2*t, TMP + 4*t)
        ops.append(lambda: p.ds(f"ds_write_b128 v{vP8}, {vr(pw,4)}", tag='w'))
        return ops
    def pread(kk):
        slot = kk if kk < 7 else kk - 7
        return [lambda sg=sg: p.ds(f"ds_read_b128 {vr(Q(2*kk+sg),4)}, v{vPR} offset:{slot*8192+sg*256}", tag=('P', kk)) for sg in range(2)]
    def xt_job():
        L = p.newlabel("K1_XJ")
        e(f"s_cmp_lt_u32 s{sFJ}, 9")
        e(f"s_cbranch_scc0 {L}")
        e(f"s_lshl_b32 s{sT}, s{sFJ}, 6"); e(f"s_and_b32 s{sT4}, s{sW}, 6"); e(f"s_lshl_b32 s{sT4}, s{sT4}, 3")
        e(f"s_add_u32 s{sT}, s{sT}, s{sT4}"); e(f"s_lshl_b32 s{sT}, s{sT}, 12")
        e(f"s_lshl_b32 s{sT4}, s{sMI}, 8"); e(f"s_add_u32 s{sT}, s{sT}, s{sT4}")
        e(f"s_and_b32 s{sT4}, s{sW}, 1"); e(f"s_lshl_b32 s{sT5}, s{sT4}, 7"); e(f"s_add_u32 s{sT}, s{sT}, s{sT5}")
        e(f"s_add_u32 s{sT}, s{sT}, {XNT_OFF}")
        e(f"s_lshl_b32 s{sT4}, s{sT4}, 9"); e(f"s_add_u32 s{sT4}, s{sT4}, {RCT}")
        va, vb, v1_, v2_ = SC, SC+1, SC+2, SC+3
        e(f"v_lshlrev_b32 v{vb}, 5, v{vG}")
        e(f"v_add_u32 v{vb}, s{sT4}, v{vb}")
        e(f"s_add_u32 s{sT5}, s{sXM}, {PREG+40960}")
        e(f"v_lshlrev_b32 v{va}, 4, v{vG}")
        e(f"v_lshl_add_u32 v{va}, v{vI}, 7, v{va}")
        e(f"v_add_u32 v{va}, s{sT5}, v{va}")
        for job in range(2):
            x = vXT + 4*job
            for q in range(4):
                e(f"ds_read_b128 {vr(TMP+4*q,4)}, v{vb} offset:{256*job+128*(q>>1)+16*(q&1)}")
            e("s_waitcnt lgkmcnt(0)")
            for d in range(4):
                e(f"v_lshlrev_b32 v{v1_}, 16, v{x+d}")
                e(f"v_and_b32 v{v2_}, s{sMASK}, v{x+d}")
                e(f"v_fma_f32 v{v1_}, v{v1_}, v{TMP+2*d}, v{TMP+2*d+1}")
                e(f"v_fma_f32 v{v2_}, v{v2_}, v{TMP+8+2*d}, v{TMP+8+2*d+1}")
                e(f"v_cvt_pk_bf16_f32 v{x+d}, v{v1_}, v{v2_}")
            e(f"ds_write_b128 v{va}, {vr(x,4)} offset:{64*job}")
        e(f"v_lshlrev_b32 v{va}, 4, v{vLANE}")
        e(f"v_add_u32 v{va}, s{sT5}, v{va}")
        e(f"v_lshrrev_b32 v{vb}, 3, v{vLANE}")
        e(f"v_lshlrev_b32 v{vb}, 12, v{vb}")
        e(f"v_and_b32 v{v1_}, 7, v{vLANE}")
        e(f"v_lshl_add_u32 v{vb}, v{v1_}, 4, v{vb}")
        e("s_waitcnt lgkmcnt(0)")
        e(f"ds_read_b128 {vr(TMP,4)}, v{va}")
        e(f"ds_read_b128 {vr(TMP+4,4)}, v{va} offset:1024")
        e(f"s_add_u32 s{sT4}, s{sT}, {8*4096}")
        e("s_waitcnt lgkmcnt(0)")
        p.vmem(f"buffer_store_dwordx4 {vr(TMP,4)}, v{vb}, s[{SWS}:{SWS+3}], s{sT} offen {STM}", maybe=True)
        p.vmem(f"buffer_store_dwordx4 {vr(TMP+4,4)}, v{vb}, s[{SWS}:{SWS+3}], s{sT4} offen {STM}", maybe=True)
        e("s_nop 1")
        p.label(L)

    def xt_ops():
        ops = []
        A = lambda s_: ops.append(lambda: e(s_))
        va, vb, v1_, v2_, vc, vd = SC, SC+1, SC+2, SC+3, SC+4, SC+5
        def setup():
            e(f"s_lshl_b32 s51, s{sFJ}, 6"); e(f"s_and_b32 s52, s{sW}, 6"); e(f"s_lshl_b32 s52, s52, 3")
            e(f"s_add_u32 s51, s51, s52"); e(f"s_lshl_b32 s51, s51, 12")
            e(f"s_lshl_b32 s52, s{sMI}, 8"); e(f"s_add_u32 s51, s51, s52")
            e(f"s_and_b32 s52, s{sW}, 1"); e(f"s_lshl_b32 s53, s52, 7"); e(f"s_add_u32 s51, s51, s53")
            e(f"s_add_u32 s51, s51, {XNT_OFF}")
            e(f"s_lshl_b32 s52, s52, 9"); e(f"s_add_u32 s52, s52, {RCT}")
            e(f"v_lshlrev_b32 v{vb}, 5, v{vG}")
            e(f"v_add_u32 v{vb}, s52, v{vb}")
            e(f"s_add_u32 s53, s{sXM}, {PREG+40960}")
            for q in range(4):
                p.ds(f"ds_read_b128 {vr(TMP+4*q,4)}, v{vb} offset:{128*(q>>1)+16*(q&1)}", tag='xr0')
        ops.append(setup)
        A(f"v_lshlrev_b32 v{va}, 4, v{vG}")
        A(f"v_lshl_add_u32 v{va}, v{vI}, 7, v{va}")
        A(f"v_add_u32 v{va}, s53, v{va}")
        A(f"v_lshlrev_b32 v{vc}, 4, v{vLANE}")
        A(f"v_add_u32 v{vc}, s53, v{vc}")
        A(f"v_lshrrev_b32 v{vd}, 3, v{vLANE}")
        A(f"v_lshlrev_b32 v{vd}, 12, v{vd}")
        A(f"v_and_b32 v{v1_}, 7, v{vLANE}")
        A(f"v_lshl_add_u32 v{vd}, v{v1_}, 4, v{vd}")
        A(f"s_cmp_lt_u32 s{sFJ}, 9\n    s_cselect_b32 s52, 0, 0x10000000\n    v_add_u32 v{vd}, s52, v{vd}\n    s_add_u32 s52, s51, {8*4096}")
        for job in range(2):
            x = vXT + 4*job
            ops.append(lambda job=job: p.wait(lg=[f'xr{job}']))
            for d in range(4):
                A(f"v_lshlrev_b32 v{v1_}, 16, v{x+d}")
                A(f"v_and_b32 v{v2_}, s{sMASK}, v{x+d}")
                A(f"v_fma_f32 v{v1_}, v{v1_}, v{TMP+2*d}, v{TMP+2*d+1}")
                A(f"v_fma_f32 v{v2_}, v{v2_}, v{TMP+8+2*d}, v{TMP+8+2*d+1}")
                A(f"v_cvt_pk_bf16_f32 v{x+d}, v{v1_}, v{v2_}")
            def wr(job=job, x=x):
                p.ds(f"ds_write_b128 v{va}, {vr(x,4)} offset:{64*job}")
                if job == 0:
                    for q in range(4):
                        p.ds(f"ds_read_b128 {vr(TMP+4*q,4)}, v{vb} offset:{256+128*(q>>1)+16*(q&1)}", tag='xr1')
                else:
                    p.ds(f"ds_read_b128 {vr(TMP,4)}, v{vc}", tag='xo')
                    p.ds(f"ds_read_b128 {vr(TMP+4,4)}, v{vc} offset:1024", tag='xo')
            ops.append(wr)
        def st():
            p.wait(lg=['xo'])
            p.vmem(f"buffer_store_dwordx4 {vr(TMP,4)}, v{vd}, s[{SWS}:{SWS+3}], s51 offen")
            p.vmem(f"buffer_store_dwordx4 {vr(TMP+4,4)}, v{vd}, s[{SWS}:{SWS+3}], s52 offen")
            e("s_nop 1")
        ops.append(st)
        return ops
    for op in norm_ops(0, 0): op()
    for r in range(9):
        Dk, j = divmod(r, 3)
        pre = [lambda sg=sg, r=r, Dk=Dk, j=j: p.ds(f"ds_read_b128 {vr(Q(12*Dk+6+2*j+sg),4)}, v{vXR} offset:{(r%2)*16384+sg*1024}", tag=('oth', r)) for sg in range(2)]
        bg = []
        if r + 1 < 9:
            Dn, jn = divmod(r + 1, 3)
            bg = norm_ops(12*Dn + 2*jn, (r + 1) % 2)
            if W1T == 2 and r < 3: bg = [lambda wv=2*r: w1_touch(wv), lambda wv=2*r+1: w1_touch(wv)] + bg
            if W1T == 3 and r < 6: bg = [lambda wv=r: w1_touch(wv)] + bg
        else:
            bg = xt_ops() if XI else [xt_job]
        if W2T == 2 and r >= 3: bg = bg[:6] + [lambda wv=r-3: w2_touch(wv)] + bg[6:]
        bg = bg[:8] + touches(r) + bg[8:]
        BAR(bg=bg, pre=pre)
        nd = [('bias', 0), ('bias', 8)] if r == 0 else []
        for sg in range(2):
            b8_group(Dk, 2*j+sg, nd); p1_group(0, SA, Dk, 0, 2*j+sg, nd)
        for sg in range(2): p1_group(0, SA, Dk, 1, 2*j+sg, [('oth', r)])
    Sbuf = {0: SA, 1: SB, 2: SA, 3: SB}
    for tau in (1, 2, 3):
        gl = gelu_block(Sbuf[tau-1], tau-1)
        n3 = (len(gl) + 2) // 3
        for Dk in range(3):
            pre = []
            if tau == 1 and Dk == 0: pre = s8_write() + bias_init(SB, 1)
            bg = gl[Dk*n3:(Dk+1)*n3]
            if W2T == 1 and tau < 3: bg = bg[:6] + [lambda wv=3*(tau-1)+Dk: w2_touch(wv)] + bg[6:]
            if tau == 1 and Dk == 1: bg = s8_read() + bg
            if tau == 3 and Dk == 0: bg = gelu_b8() + bg
            if Dk == 2 and tau < 3: bg = bg + bias_init(Sbuf[tau+1], tau+1)
            if tau == 3 and Dk == 1: bg = pread(1) + pread(2) + pread(0) + bg
            if tau == 3 and Dk == 2: bg = pread(3) + pread(4) + bg
            bg = bg[:8] + touches(6 + 3*tau + Dk) + bg[8:]
            BAR(bg=bg, pre=pre)
            for own in range(2):
                for j in range(6):
                    p1_group(tau, Sbuf[tau], Dk, own, j, [('bias', tau)] if (Dk == 0 and own == 0 and j == 0) else [])
    OB = {0: Q(18), 1: Q(22)}
    ET = Q(26)
    def epi(j):
        O = OB[j % 2]
        ops = []
        for t in range(2):
            dst = ET + 4*t + 8*(j % 2)
            for sg in range(2):
                for i in range(2):
                    ops.append(lambda t=t, sg=sg, i=i, dst=dst: e(f"v_cvt_pk_bf16_f32 v{dst+2*sg+i}, v{O+(t*2+sg)*4+2*i}, v{O+(t*2+sg)*4+2*i+1}"))
            def st(t=t, dst=dst):
                e(f"s_mov_b32 s{sT}, {(16*j+4*t)*16384}")
                p.vmem(f"buffer_store_dwordx4 {vr(dst,4)}, v{vOO}, s[{SWS}:{SWS+3}], s{sT} offen {STM if STJ[j] == '1' else ''}")
            if not NOST: ops.append(st)
        return ops
    gl3 = gelu_block(SB, 3)
    for i, u in enumerate(p2):
        _, j, k = u
        kd, half = uloc[u]
        if half == 0:
            bg = []; pre = []
            if i == 0: pre = pread(5) + pread(6); bg = gl3[:len(gl3)//2]
            if i == 2: bg = gl3[len(gl3)//2:]
            if i == 4: pre = pread(7) + pread(8) + [lambda t=t: e(f"v_add_u32 v{vA[('p',t,2)]}, 0x18000, v{vA[('p',t,0)]}") for t in (0, 1)]
            BAR(bg=bg, pre=pre)
        slot = slot_of(kd)
        O = OB[j % 2]
        for jj in range(3):
            kk = 3*k + jj
            for t in range(2):
                first = (kk == 0)
                mfs = [lambda wf, t=t, sg=sg, kk=kk, first=first, O=O: f"v_mfma_f32_16x16x32_bf16 {vr(O+(t*2+sg)*4,4)}, {vr(wf,4)}, {vr(Q(2*kk+sg),4)}, " + ("0" if first else vr(O+(t*2+sg)*4,4)) for sg in range(2)]
                G(kd, vA[('p', t, slot >> 1)], (slot & 1) * 24576 + half * 12288 + jj * 4096, 2048, mfs, [('P', kk)])
        if k == 2:
            seq.append(dict(kind='EPI', ops=epi(j)))
    gidx = [i for i, s in enumerate(seq) if s['kind'] == 'G']
    pos_of_g = {g: n for n, g in enumerate(gidx)}
    bars = [i for i, s in enumerate(seq) if s['kind'] == 'BAR']
    first_read_pos = {}; last_use = {}
    for n, g in enumerate(gidx):
        k = seq[g]['unit']
        rp = gidx[n - RA] if n - RA >= 0 else -1
        first_read_pos.setdefault(k, rp)
        last_use[k] = g
    land = {}; rel = {}
    for k in first_read_pos:
        prev = [b for b in bars if b < first_read_pos[k]]
        land.setdefault(prev[-1] if prev else bars[0], []).append(k)
        nxt = [b for b in bars if b > last_use[k]]
        if nxt and k + 4 < len(D) and not (R6 and k + 4 in ISS6): rel.setdefault(nxt[0], []).append(k + 4)
    if R6:
        assert len(D) == 28 and len(bars) == 32 and D[14][0][0] == 'E' and D[13][0][0] == 'B'
        assert rel[bars[21]] == [20]
        for k in sorted(ISS6): rel.setdefault(bars[ISS6[k]], []).append(k)
    if DL:
        rel.setdefault(bars[0], []).append(2)
        rel.setdefault(bars[DL-1], []).append(3)
    wf_of = {}
    def issue_reads(n):
        if n >= len(gidx): return
        s = seq[gidx[n]]
        wf = WF + 4 * (n % NWF)
        wf_of[n] = wf
        if NOREAD: return
        p.ds(f"ds_read_b64_tr_b16 {vr(wf,2)}, v{s['areg']} offset:{s['imm']}", tag=('wf', n))
        p.ds(f"ds_read_b64_tr_b16 {vr(wf+2,2)}, v{s['areg']} offset:{s['imm']+s['d2']}", tag=('wf', n))
    bgq = []
    def groups_left(i):
        c = 0
        for s in seq[i:]:
            if s['kind'] == 'BAR': break
            if s['kind'] == 'G': c += 1
        return c
    delay = []
    for i, s in enumerate(seq):
        if s['kind'] == 'EPI':
            delay.append([3, s['ops']])
        elif s['kind'] == 'BAR':
            for op in bgq: op()
            p.wait(vm=[('u', k) for k in land.get(i, [])], lg=['w'])
            if not NOBAR: e("s_barrier")
            bi = bars.index(i)
            if bi in ((0, 3, 6, 9, 12, 15, 18, 21, 24, 27, 30) if PRO else (0, 9, 18)): stamp(f"bar{bi}")
            if i == bars[0]:
                for n in range(RA): issue_reads(n)
            if bi == 9: e("s_nop 7")
            for op in s['first']: op()
            dm = []
            for k in rel.get(i, []):
                if not NODMA: dm += dma_double(k)
            bgq = []
            b = [] if NOBG else list(s['bg'])
            step = max(1, len(b) // (len(dm) + 1)) if dm else 0
            while dm or b:
                if dm: bgq.append(dm.pop(0))
                take = b[:step] if dm else b
                bgq += take; b = b[len(take):]
        else:
            n = pos_of_g[i]
            left = groups_left(i)
            if seq[i-1]['kind'] == 'BAR': segn = left
            done = segn - left
            if PRIO and (done == 0 or (done * 4) // segn != ((done - 1) * 4) // segn):
                e(f"s_setprio {3 - (done * 4) // segn}")
            left = max(left - FRONT, 1)
            for dl in delay: dl[0] -= 1
            while delay and delay[0][0] <= 0: bgq += delay.pop(0)[1]
            k = -(-len(bgq) // left)
            p.wait(lg=[('wf', n)] + s['need'])
            nm = len(s['mf'])
            for mi_, mf in enumerate(s['mf']):
                e(mf(wf_of[n]))
                if mi_ == 0: issue_reads(n + RA)
                lo = (k * mi_) // nm; hi = (k * (mi_ + 1)) // nm
                for op in bgq[lo:hi]: op()
            bgq = bgq[k:]
    e("s_nop 7")
    for op in bgq: op()
    for dl in delay:
        for op in dl[1]: op()
    if DIAG:
        stamp("lastissue")
        e("s_waitcnt vmcnt(0)")
        stamp("end")
        e("s_memrealtime s[100:101]")
        e("s_waitcnt lgkmcnt(0)")
        e(f"v_writelane_b32 v{TMP}, s100, 40")
        for i in range(len(stamps)):
            e(f"s_sub_u32 s{sT}, s{56+2*i}, s56")
            e(f"v_writelane_b32 v{TMP}, s{sT}, {i}")
        e(f"s_lshl_b32 s{sT}, s2, 3"); e(f"s_add_u32 s{sT}, s{sT}, s{sW}"); e(f"s_lshl_b32 s{sT}, s{sT}, 8")
        e(f"s_add_u32 s{sT}, s{sT}, 0x4000000")
        e(f"v_lshlrev_b32 v{TMP+1}, 2, v{vLANE}")
        e(f"buffer_store_dword v{TMP}, v{TMP+1}, s[{SWS}:{SWS+3}], s{sT} offen")
        open("stamps.txt", "w").write(" ".join(stamps))
    p.label("K1_END")
    e("s_endpgm")
    return p.text()
```

```python
from asmlib import *
import math, os
DIAG = int(os.environ.get("DIAG", "0")); PRO = int(os.environ.get("PRO", "0"))
NODMA = int(os.environ.get("NODMA", "0")); NOREAD = int(os.environ.get("NOREAD", "0")); NOST = int(os.environ.get("NOST", "0"))
NOBAR = int(os.environ.get("NOBAR", "0")); NOBG = int(os.environ.get("NOBG", "0"))
PRIO = int(os.environ.get("PRIO", "1")); FRONT = int(os.environ.get("FRONT", "1")); MAP = 1
RA = int(os.environ.get("RA", "4"))

PART_OFF = 0
X4_OFF = 37748736
XNT_OFF = 40108032
KT_OFF = 42467328
KSPL = [int(c) for c in os.environ.get('KSPL', '8000')]
LOG2E = math.log2(math.e)
TW = int(os.environ.get("TW", "0"))
T1S = int(os.environ.get("T1S", "0")); T2S = int(os.environ.get("T2S", "4")); T2N = int(os.environ.get("T2N", "12"))
STM = os.environ.get("STM", "sc1")
KB = int(os.environ.get("KB", "1"))
R6 = int(os.environ.get("R6", "1"))
SLOT6 = {21: 4, 22: 1, 23: 5, 24: 2, 25: 3, 26: 0, 27: 4}
ISS6 = {21: 21, 22: 22, 23: 22, 24: 23, 25: 24, 26: 25, 27: 26}
def slot_of(k): return SLOT6[k] if (R6 and k in SLOT6) else k % 4
STJ = os.environ.get("STJ", "111111111")
DL = int(os.environ.get("DL", "1")); XI = int(os.environ.get("XI", "0"))
W1T = int(os.environ.get("W1T", "2")); W2T = int(os.environ.get("W2T", "1"))
RING = 0; PREG = 98304; STAT = 155648; RCT = 157696; BIAS = 158720
SX, SW1, SW2, SWS, SB1 = 4, 8, 12, 16, 20
sW, sH, sQI, sFJ, sMI = 24, 25, 26, 27, 28
sRP1, sRP1X, sRP8, sRP8X, sRP2, sRP2K0, sRP2X, sM0W, sM0X, sT = 29, 30, 31, 32, 33, 34, 35, 36, 37, 38
sT2, sXS, sXM, sT3, sONE, sMASK, sT4, sT5, sAL = 39, 40, 41, 42, 43, 44, 45, 46, 47
sRP1H, sRP8H, sM0H = 48, 49, 50
vLANE, vG, vI = 1, 2, 3
vA = {}
n = 4
for own in (0, 1):
    for hi in (0, 1):
        vA[('n', own, hi)] = n; n += 1
vA['8'] = 8
for t in (0, 1):
    for hi in (0, 1):
        vA[('p', t, hi)] = 9 + 2*t + hi
vA[('p', 0, 2)] = 4; vA[('p', 1, 2)] = 5
vOW1, vOW8, vOW2 = 13, 14, 15
vPW, vPR, vBI, vBI8, vOO, vXR, vR, vC, v8R, vP8 = 16, 17, 18, 19, 20, 21, 22, 23, 24, 25
vXT = 26
TMP = 34
WF = 50
NWF = 5
vROW, vXTA = 70, 71
SB = 72; SC = 88; SA = 96
QB = 112
def Q(slot): return QB + slot * 4
C0 = -2.0 * 0.7978845608028654 * math.log2(math.e)
C1 = C0 * 0.044715
ALPHA = (-C1) ** (1.0 / 3.0)
CA = -C0 / ALPHA

def gen():
    p = Prog()
    e = p.emit
    stamps = []
    def stamp(name):
        if DIAG and len(stamps) < 13:
            e(f"s_memtime s[{56+2*len(stamps)}:{57+2*len(stamps)}]")
            stamps.append(name)
    T = [TMP + i for i in range(16)]
    e("s_cmp_ge_u32 s2, 256")
    e("s_cbranch_scc1 K1_END")
    stamp("start")
    e("s_load_dwordx2 s[4:5], s[0:1], 0")
    e("s_load_dwordx4 s[48:51], s[0:1], 80")
    e("s_load_dwordx2 s[12:13], s[0:1], 96")
    e("s_load_dwordx2 s[16:17], s[0:1], 128")
    e("s_load_dwordx16 s[84:99], s[0:1], 8")
    e(f"v_lshrrev_b32 v{T[0]}, 6, v0")
    e(f"v_and_b32 v{vLANE}, 63, v0")
    e(f"v_readfirstlane_b32 s{sW}, v{T[0]}")
    e(f"v_lshrrev_b32 v{vG}, 4, v{vLANE}")
    e(f"v_and_b32 v{vI}, 15, v{vLANE}")
    nb = 1 + MAP
    e("s_and_b32 s3, s2, 7")
    e(f"s_lshr_b32 s{sMI}, s2, 3")
    e(f"s_and_b32 s{sFJ}, s{sMI}, {(1<<nb)-1}")
    e(f"s_lshr_b32 s{sT}, s3, {MAP}")
    e(f"s_lshl_b32 s{sT}, s{sT}, {nb}")
    e(f"s_add_u32 s{sFJ}, s{sFJ}, s{sT}")
    e(f"s_lshr_b32 s{sMI}, s{sMI}, {nb}")
    e(f"s_and_b32 s3, s3, {(1<<MAP)-1}")
    e(f"s_lshl_b32 s3, s3, {4-MAP}")
    e(f"s_add_u32 s{sMI}, s{sMI}, s3")
    e(f"s_lshr_b32 s{sH}, s{sW}, 2")
    e(f"s_and_b32 s{sQI}, s{sW}, 3")
    e(f"s_mov_b32 s{sONE}, 0x3f803f80")
    e(f"s_mov_b32 s{sMASK}, 0xffff0000")
    e(f"s_mov_b32 s{sAL}, {fhex(ALPHA)}")
    e(f"v_lshrrev_b32 v{T[2]}, 3, v{vLANE}")
    e(f"v_and_b32 v{T[3]}, 7, v{vLANE}")
    e(f"v_xor_b32 v{T[4]}, v{vG}, v{T[3]}")
    e(f"v_mul_u32_u24 v{T[5]}, 2304, v{T[2]}")
    e(f"v_lshl_add_u32 v{T[0]}, v{T[4]}, 4, v{T[5]}")
    e(f"v_xor_b32 v{T[1]}, 64, v{T[0]}")
    e(f"s_lshl_b32 s{sXS}, s{sMI}, 7")
    e(f"s_lshr_b32 s{sT}, s{sW}, 1"); e(f"s_lshl_b32 s{sT}, s{sT}, 5"); e(f"s_add_u32 s{sXS}, s{sXS}, s{sT}")
    e(f"s_and_b32 s{sT}, s{sW}, 1"); e(f"s_add_u32 s{sXS}, s{sXS}, s{sT}")
    e(f"s_mul_i32 s{sXS}, s{sXS}, 1152")
    e(f"s_lshl_b32 s{sXM}, s{sW}, 11")
    e(f"v_subrev_u32 v{T[9]}, 192, v0")
    e(f"v_min_u32 v{T[9]}, 287, v{T[9]}")
    e(f"v_lshlrev_b32 v{T[9]}, 7, v{T[9]}")
    e(f"s_and_b32 s{sT4}, s{sFJ}, 3"); e(f"s_mul_i32 s{sT4}, s{sT4}, {288*128}")
    e(f"s_mul_i32 s{sT5}, s{sMI}, {128*1152}"); e(f"s_add_u32 s{sT4}, s{sT4}, s{sT5}")
    e(f"s_getpc_b64 s[52:53]")
    e(f"s_lshl_b32 s{sT5}, s{sH}, 6")
    e(f"v_add_u32 v{T[10]}, s{sT5}, v{vLANE}")
    e("s_waitcnt lgkmcnt(0)")
    if PRO: stamp("karg")
    e("s_mov_b32 s6, 2359296"); e("s_mov_b32 s7, 0x00020000")
    e("s_mov_b32 s8, s48"); e("s_mov_b32 s9, s49"); e("s_mov_b32 s10, 5308416"); e("s_mov_b32 s11, 0x00020000")
    e("s_mov_b32 s14, 5308416"); e("s_mov_b32 s15, 0x00020000")
    e("s_mov_b32 s18, 268435456"); e("s_mov_b32 s19, 0x00020000")
    e("s_mov_b32 s20, s50"); e("s_mov_b32 s21, s51"); e("s_mov_b32 s22, 9216"); e("s_mov_b32 s23, 0x00020000")
    KACC = Q(6); KP = Q(6)+16; KFR = Q(18); HR = KFR+16; HC = KFR+17; KRAW = KFR+18; KT = Q(30)
    e(f"s_lshl_b32 s83, s{sMI}, 4"); e(f"s_add_u32 s83, s83, s{sFJ}"); e("s_mul_i32 s83, s83, 3"); e(f"s_add_u32 s83, s83, s{sW}")
    e(f"s_cmp_lt_u32 s{sMI}, 12"); e("s_cselect_b32 s82, 1, 0")
    e(f"s_sub_u32 s3, s{sW}, 4"); e("s_cmp_lt_u32 s3, 3"); e("s_cselect_b32 s55, s82, 0")
    e(f"s_cmp_lt_u32 s{sW}, 3"); e("s_cselect_b32 s82, s82, 0")
    e("s_cmp_eq_u32 s82, 0"); e("s_cbranch_scc1 K1_KG0")
    e("s_lshl_b32 s3, s83, 8")
    e(f"v_lshlrev_b32 v{KT}, 2, v{vLANE}"); e(f"v_add_u32 v{KT}, s3, v{KT}")
    for a in range(6):
        p.vmem(f"global_load_dword v{KRAW+a}, v{KT}, s[{84+2*a}:{85+2*a}]", tag='kp', maybe=True)
    e("s_lshr_b32 s3, s83, 1"); e("s_lshl_b32 s3, s3, 2")
    e("s_load_dword s100, s[96:97], s3"); e("s_load_dword s101, s[98:99], s3")
    p.label("K1_KG0")
    if KB: e("s_barrier")
    kgst = [0]
    def kgen_piece(pi):
        n = KSPL[pi]
        if n == 0: return
        L = p.newlabel("K1_KG")
        e("s_cmp_eq_u32 s82, 0"); e(f"s_cbranch_scc1 {L}")
        wr, wi, t0, t1, t2, t3, t4, t5, t6, t7, t8, t9 = range(KT, KT+12)
        DP = "row_mask:0xf bank_mask:0xf"
        RA1, RA2, CB1, CB2 = KFR, KFR+4, KFR+8, KFR+12
        if kgst[0] == 0:
            e(f"v_lshlrev_b32 v{t0}, 1, v{vI}"); e(f"v_add_u32 v{t0}, 240, v{t0}")
            e(f"v_cmp_gt_u32 vcc, 8, v{vI}")
            e(f"s_mov_b32 s84, {hex(512 | 128 << 16)}"); e(f"s_mov_b32 s85, {hex(1280 | 1536 << 16)}")
            e(f"v_lshlrev_b32 v{t1}, 4, v{vI}")
            e(f"v_cndmask_b32 v{t0}, v{t0}, v{vI}, vcc")
            e(f"v_lshrrev_b64 {vr(t2,2)}, v{t1}, s[84:85]")
            e(f"v_cmp_le_u32 vcc, 12, v{vI}")
            e(f"v_and_b32 v{t2}, 0xffff, v{t2}")
            e(f"v_lshlrev_b32 v{t1}, 3, v{vI}")
            e(f"v_cndmask_b32 v{t0}, v{t0}, v{t2}, vcc")
            e(f"v_cvt_f32_u32 v{HC}, v{t1}"); e(f"v_cvt_f32_u32 v{HR}, v{t0}")
            e("s_waitcnt lgkmcnt(0)")
            e("s_and_b32 s3, s83, 1"); e("s_lshl_b32 s3, s3, 4")
            e("s_lshr_b32 s100, s100, s3"); e("s_lshl_b32 s100, s100, 16")
            e("s_lshr_b32 s101, s101, s3"); e("s_lshl_b32 s101, s101, 16")
            e(f"v_mov_b32 v{t0}, {fhex(LOG2E)}"); e(f"v_mul_f32 v{t0}, s100, v{t0}"); e(f"v_exp_f32 v{t0}, v{t0}"); e("s_nop 0")
            e(f"v_cvt_pk_bf16_f32 v{t0}, v{t0}, v{t0}"); e(f"v_and_b32 v{t0}, s{sMASK}, v{t0}")
            e(f"v_mul_f32 v{t1}, {fhex(LOG2E)}, v{t0}"); e(f"v_mul_f32 v{t2}, {fhex(1/(2*math.pi))}, v{t0}")
            stamp("kpre")
            e("s_waitcnt vmcnt(0)")
            stamp("kp")
            for hs in range(2):
                for a in range(6):
                    if hs: e(f"v_and_b32 v{t3+a}, s{sMASK}, v{KRAW+a}")
                    else: e(f"v_lshlrev_b32 v{t3+a}, 16, v{KRAW+a}")
                A2, B2, WR, WI = [KP + 4*hs + i for i in range(4)]
                e(f"v_mul_f32 v{A2}, v{t1}, v{t3}"); e(f"v_mul_f32 v{B2}, v{t2}, v{t4}")
                e(f"v_mul_f32 v{t5}, v{t0}, v{t5}"); e(f"v_mul_f32 v{t6}, v{t0}, v{t6}")
                e(f"v_rndne_f32 v{t9}, v{B2}")
                e(f"v_mul_f32 v{WR}, v{t7}, v{t5}"); e(f"v_mul_f32 v{WI}, v{t7}, v{t6}")
                e(f"v_sub_f32 v{B2}, v{B2}, v{t9}")
                e(f"v_fma_f32 v{WR}, -v{t8}, v{t6}, v{WR}"); e(f"v_fmac_f32 v{WI}, v{t8}, v{t5}")
            e("s_nop 1")
        for ks in range(kgst[0], kgst[0] + n):
            A2, B2, WR, WI = [KP + 4*(ks >> 2) + i for i in range(4)]
            s_ = ks & 3
            for nn in range(4):
                BC = f"row_newbcast:{4*s_+nn} {DP}"
                e(f"v_mul_f32_dpp v{t1}, v{B2}, v{HR} {BC}"); e(f"v_mul_f32_dpp v{t0}, v{A2}, v{HR} {BC}")
                e(f"v_mul_f32_dpp v{t4}, v{B2}, v{HC} {BC}"); e(f"v_mul_f32_dpp v{t3}, v{A2}, v{HC} {BC}")
                e(f"v_fract_f32 v{t1}, v{t1}"); e(f"v_exp_f32 v{t0}, v{t0}")
                e(f"v_cos_f32 v{t2}, v{t1}"); e(f"v_sin_f32 v{t1}, v{t1}")
                e(f"v_exp_f32 v{t3}, v{t3}")
                e(f"v_mul_f32 v{t2}, v{t0}, v{t2}")
                e(f"v_cos_f32 v{t5}, v{t4}")
                e(f"v_mul_f32 v{t1}, v{t0}, v{t1}")
                e(f"v_sin_f32 v{t4}, v{t4}")
                e(f"v_mul_f32_dpp v{wr}, v{WR}, v{t3} {BC}"); e(f"v_mul_f32_dpp v{wi}, v{WI}, v{t3} {BC}")
                e(f"v_cvt_pk_bf16_f32 v{RA1+nn}, v{t2}, v{t1}")
                e(f"v_mul_f32_dpp v{t6}, v{t2}, v{t2} row_newbcast:12 {DP}")
                e(f"v_mul_f32_dpp v{t7}, v{t1}, v{t2} row_newbcast:12 {DP}")
                e(f"v_mul_f32 v{t8}, v{wr}, v{t5}"); e(f"v_mul_f32 v{t9}, v{wr}, v{t4}")
                e(f"v_fmac_f32_dpp v{t6}, -v{t1}, v{t1} row_newbcast:12 {DP}")
                e(f"v_fmac_f32_dpp v{t7}, v{t2}, v{t1} row_newbcast:12 {DP}")
                e(f"v_fma_f32 v{t8}, -v{wi}, v{t4}, v{t8}"); e(f"v_fmac_f32 v{t9}, v{wi}, v{t5}")
                e(f"v_cvt_pk_bf16_f32 v{RA2+nn}, v{t6}, v{t7}")
                e(f"v_mul_f32_dpp v{t0}, v{t2}, v{t8} row_newbcast:13 {DP}")
                e(f"v_mul_f32_dpp v{t3}, v{t1}, v{t8} row_newbcast:13 {DP}")
                e(f"v_cvt_pk_bf16_f32 v{CB1+nn}, v{t8}, -v{t9}")
                e(f"v_fmac_f32_dpp v{t0}, -v{t1}, v{t9} row_newbcast:13 {DP}")
                e(f"v_fmac_f32_dpp v{t3}, v{t2}, v{t9} row_newbcast:13 {DP}")
                e(f"v_cvt_pk_bf16_f32 v{CB2+nn}, v{t0}, -v{t3}")
            e("s_nop 1")
            for a in range(2):
                for b in range(2):
                    d = KACC + 4*(2*a+b)
                    c = "0" if ks == 0 else vr(d, 4)
                    e(f"v_mfma_f32_16x16x32_bf16 {vr(d,4)}, {vr((RA1,RA2)[a],4)}, {vr((CB1,CB2)[b],4)}, {c}")
        kgst[0] += n
        if kgst[0] == 8:
            e(f"v_cmp_eq_u32 vcc, 0, v{vLANE}")
            e(f"v_mov_b32 v{t8}, s101"); e(f"v_lshlrev_b32 v{t9}, 4, v{vLANE}")
            e(f"v_cndmask_b32 v{t8}, 0, v{t8}, vcc")
            e("s_lshl_b32 s3, s83, 11"); e(f"s_add_u32 s3, s3, {KT_OFF}")
            e("s_nop 7"); e("s_nop 3")
            e(f"v_add_f32 v{KACC}, v{KACC}, v{t8}")
            for q in range(8): e(f"v_cvt_pk_bf16_f32 v{KT+q}, v{KACC+2*q}, v{KACC+2*q+1}")
            for a in range(2):
                p.vmem(f"buffer_store_dwordx4 {vr(KT+4*a,4)}, v{t9}, s[{SWS}:{SWS+3}], s3 offen offset:{1024*a} {STM}", maybe=True)
        p.label(L)
    Lc = p.newlabel("K1_PF"); Ld = p.newlabel("K1_PF")
    e(f"s_cmp_lt_u32 s{sW}, 3"); e(f"s_cbranch_scc1 {Ld}")
    e(f"s_cmp_eq_u32 s{sQI}, 3"); e(f"s_cbranch_scc0 {Lc}")
    for q in range(3):
        e(f"v_add_u32 v{T[11]}, {128*q}, v{T[10]}")
        e(f"v_min_u32 v{T[11]}, K1_CODE_LINES, v{T[11]}")
        e(f"v_lshlrev_b32 v{T[12+q]}, 7, v{T[11]}")
        e(f"global_load_dword v{T[8]}, v{T[12+q]}, s[52:53]")
    p.label(Lc)
    p.vmem(f"buffer_load_dword v{T[8]}, v{T[9]}, s[{SX}:{SX+3}], s{sT4} offen", tag='pf')
    if TW:
        e(f"s_cmp_lg_u32 s{sW}, 7"); e(f"s_cbranch_scc1 {Ld}")
        e(f"v_min_u32 v{T[11]}, 3, v{vLANE}")
        e(f"v_mul_u32_u24 v{T[12]}, {191*9216}, v{T[11]}")
        e(f"s_mul_i32 s{sT3}, s{sFJ}, 576")
        e(f"buffer_load_dword v{T[8]}, v{T[12]}, s[{SW1}:{SW1+3}], s{sT3} offen")
        e(f"v_mul_u32_u24 v{T[13]}, 110548, v{T[11]}")
        e(f"s_mul_i32 s{sT3}, s{sFJ}, 331776")
        e(f"buffer_load_dword v{T[8]}, v{T[13]}, s[{SW2}:{SW2+3}], s{sT3} offen")
        e(f"v_mul_u32_u24 v{T[14]}, 786400, v{T[11]}")
        e(f"s_mul_i32 s{sT3}, s{sFJ}, 2359296")
        e(f"buffer_load_dword v{T[8]}, v{T[14]}, s[{SWS}:{SWS+3}], s{sT3} offen")
        e(f"v_mul_u32_u24 v{T[15]}, 1572800, v{T[11]}")
        e(f"s_mov_b32 s{sT3}, {X4_OFF}")
        e(f"buffer_load_dword v{T[8]}, v{T[15]}, s[{SWS}:{SWS+3}], s{sT3} offen")
    p.label(Ld)
    def xdma1(c, extra):
        for nn in range(2):
            e(f"s_add_u32 m0, s{sXM}, {16384*c + 1024*nn + (-8192 if extra else 0)}")
            e(f"s_add_u32 s{sT}, s{sXS}, {128*c + nn*16*1152 + (-64*1152 if extra else 0)}")
            p.vmem(f"buffer_load_dwordx4 v{T[nn]}, s[{SX}:{SX+3}], s{sT} offen lds", tag=('x', c), maybe=extra)
    def xdma3(c0):
        L1 = p.newlabel("K1_XD"); L2 = p.newlabel("K1_XD")
        e("s_cmp_eq_u32 s55, 0"); e(f"s_cbranch_scc1 {L1}")
        for c in range(c0, c0+3): xdma1(c, True)
        p.label(L1)
        e("s_cmp_eq_u32 s82, 1"); e(f"s_cbranch_scc1 {L2}")
        for c in range(c0, c0+3): xdma1(c, False)
        p.label(L2)
    e("s_setprio 3")
    xdma3(0)
    e("s_setprio 0")
    e(f"s_and_b32 s{sT2}, s{sFJ}, 1")
    e(f"s_mul_i32 s{sT3}, s{sFJ}, 576")
    e(f"s_add_u32 s{sT5}, s{sQI}, 8")
    e(f"s_mul_i32 s{sRP1}, s{sW}, {8*9216}"); e(f"s_mul_i32 s{sRP1X}, s{sT5}, {8*9216}")
    e(f"s_lshl_b32 s{sT4}, s{sT2}, 6"); e(f"s_add_u32 s{sT4}, s{sT4}, s{sT3}")
    e(f"s_lshl_b32 s{sT}, s{sT2}, 9"); e(f"s_sub_u32 s{sT}, 512, s{sT}"); e(f"s_add_u32 s{sT}, s{sT}, s{sT3}")
    e(f"s_add_u32 s{sRP8}, s{sRP1}, s{sT}"); e(f"s_add_u32 s{sRP8X}, s{sRP1X}, s{sT}")
    e(f"s_add_u32 s{sRP1}, s{sRP1}, s{sT4}"); e(f"s_add_u32 s{sRP1X}, s{sRP1X}, s{sT4}")
    e(f"s_mul_i32 s{sT}, s{sH}, {96*9216}"); e(f"s_add_u32 s{sRP1H}, s{sRP1X}, s{sT}")
    e(f"s_mul_i32 s{sT}, s{sH}, {192*9216}"); e(f"s_add_u32 s{sRP8H}, s{sRP8X}, s{sT}")
    def rowperm(dst, nreg, tmp):
        e(f"s_lshr_b32 s{dst}, s{nreg}, 2"); e(f"s_lshl_b32 s{dst}, s{dst}, 5")
        e(f"s_and_b32 s{tmp}, s{nreg}, 1"); e(f"s_lshl_b32 s{tmp}, s{tmp}, 4"); e(f"s_add_u32 s{dst}, s{dst}, s{tmp}")
        e(f"s_and_b32 s{tmp}, s{nreg}, 2"); e(f"s_lshl_b32 s{tmp}, s{tmp}, 2"); e(f"s_add_u32 s{dst}, s{dst}, s{tmp}")
    rowperm(sRP2, sW, sT4); rowperm(sRP2X, sT5, sT4)
    e(f"s_mul_i32 s{sT}, s{sFJ}, 288"); e(f"s_lshl_b32 s{sT4}, s{sT2}, 5"); e(f"s_add_u32 s{sT}, s{sT}, s{sT4}"); e(f"s_sub_u32 s{sT}, s{sT}, 32")
    e(f"s_add_u32 s{sRP2}, s{sRP2}, s{sT}"); e(f"s_add_u32 s{sRP2X}, s{sRP2X}, s{sT}")
    e(f"s_or_b32 s{sT4}, s{sT2}, s{sH}"); e(f"s_cmp_eq_u32 s{sT4}, 0"); e(f"s_cselect_b32 s{sT4}, 288, 0")
    e(f"s_add_u32 s{sRP2K0}, s{sRP2}, s{sT4}")
    e(f"s_mul_i32 s{sRP2}, s{sRP2}, 1152"); e(f"s_mul_i32 s{sRP2X}, s{sRP2X}, 1152"); e(f"s_mul_i32 s{sRP2K0}, s{sRP2K0}, 1152")
    e(f"s_lshl_b32 s{sM0W}, s{sW}, 10"); e(f"s_lshl_b32 s{sM0X}, s{sT5}, 10")
    e(f"s_mul_i32 s{sT}, s{sH}, 12288"); e(f"s_add_u32 s{sM0H}, s{sM0X}, s{sT}")
    e("s_setprio 2")
    xdma3(3)
    e("s_setprio 0")
    e(f"v_and_b32 v{T[4]}, 1, v{vG}")
    e(f"v_lshlrev_b32 v{T[4]}, 2, v{T[4]}")
    e(f"v_xor_b32 v{T[4]}, v{T[4]}, v{T[3]}")
    e(f"v_mul_u32_u24 v{T[10]}, 9216, v{T[2]}")
    e(f"v_lshl_add_u32 v{vOW1}, v{T[4]}, 4, v{T[10]}")
    e(f"v_lshrrev_b32 v{T[11]}, 2, v{T[4]}")
    e(f"v_mul_u32_u24 v{T[11]}, {96*9216}, v{T[11]}")
    e(f"v_and_b32 v{T[4]}, 3, v{T[4]}")
    e(f"v_lshlrev_b32 v{T[4]}, 4, v{T[4]}")
    e(f"v_add3_u32 v{vOW8}, v{T[4]}, v{T[10]}, v{T[11]}")
    e(f"v_lshlrev_b32 v{T[4]}, 1, v{vG}")
    e(f"v_xor_b32 v{T[4]}, v{T[4]}, v{T[3]}")
    e(f"v_mul_u32_u24 v{T[10]}, 1152, v{T[2]}")
    e(f"v_lshl_add_u32 v{vOW2}, v{T[4]}, 4, v{T[10]}")
    e(f"v_lshrrev_b32 v{T[4]}, 2, v{vI}")
    e(f"v_and_b32 v{T[10]}, 3, v{vLANE}")
    e(f"v_lshlrev_b32 v{T[10]}, 3, v{T[10]}")
    e(f"v_lshrrev_b32 v{T[5]}, 1, v{vG}")
    e(f"v_lshl_add_u32 v{T[9]}, v{T[5]}, 3, v{T[4]}")
    e(f"v_lshl_add_u32 v{T[9]}, v{T[9]}, 7, v{T[10]}")
    e(f"v_lshrrev_b32 v{T[11]}, 1, v{T[4]}")
    e(f"v_xor_b32 v{T[11]}, s{sH}, v{T[11]}")
    e(f"v_lshl_add_u32 v{T[9]}, v{T[11]}, 6, v{T[9]}")
    e(f"v_and_b32 v{T[11]}, 1, v{vG}")
    e(f"v_lshl_add_u32 v{vA['8']}, v{T[11]}, 5, v{T[9]}")
    e(f"s_mul_i32 s{sT4}, s{sH}, 12288"); e(f"s_sub_u32 s{sT5}, 12288, s{sT4}")
    e(f"v_add_u32 v{vA[('n',0,0)]}, s{sT4}, v{vA['8']}"); e(f"v_add_u32 v{vA[('n',1,0)]}, s{sT5}, v{vA['8']}")
    e(f"v_add_u32 v{vA[('n',0,1)]}, 49152, v{vA[('n',0,0)]}"); e(f"v_add_u32 v{vA[('n',1,1)]}, 49152, v{vA[('n',1,0)]}")
    e(f"v_lshl_add_u32 v{T[9]}, v{vG}, 2, v{T[4]}")
    e(f"v_lshl_add_u32 v{T[10]}, v{T[9]}, 7, v{T[10]}")
    e(f"v_bfe_u32 v{T[9]}, v{T[9]}, 1, 2")
    e(f"s_lshl_b32 s{sT}, s{sH}, 1")
    e(f"v_xor_b32 v{T[9]}, s{sT}, v{T[9]}")
    e(f"v_lshl_add_u32 v{vA[('p',0,0)]}, v{T[9]}, 5, v{T[10]}")
    e(f"v_xor_b32 v{vA[('p',1,0)]}, 32, v{vA[('p',0,0)]}")
    for t in (0, 1): e(f"v_add_u32 v{vA[('p',t,1)]}, 49152, v{vA[('p',t,0)]}")
    e(f"s_lshl_b32 s{sT}, s{sQI}, 11"); e(f"s_add_u32 s{sT}, s{sT}, {PREG}")
    e(f"v_lshlrev_b32 v{T[11]}, 4, v{vLANE}")
    e(f"v_add_u32 v{T[11]}, s{sT}, v{T[11]}")
    e(f"s_lshl_b32 s{sT4}, s{sH}, 13"); e(f"v_add_u32 v{vPW}, s{sT4}, v{T[11]}")
    e(f"v_xor_b32 v{vXR}, 8192, v{vPW}")
    e(f"s_lshl_b32 s{sT4}, s{sH}, 10"); e(f"v_add_u32 v{vP8}, s{sT4}, v{T[11]}")
    e(f"s_lshl_b32 s{sT4}, s{sH}, 14"); e(f"v_add_u32 v{v8R}, s{sT4}, v{T[11]}")
    e(f"v_lshlrev_b32 v{T[9]}, 9, v{vG}")
    e(f"v_lshl_add_u32 v{T[9]}, v{vI}, 4, v{T[9]}")
    e(f"v_add_u32 v{vPR}, s{sT}, v{T[9]}")
    e(f"v_lshlrev_b32 v{T[9]}, 4, v{T[5]}")
    e(f"v_add_u32 v{vBI8}, {BIAS}, v{T[9]}")
    e(f"s_lshl_b32 s{sT4}, s{sH}, 7"); e(f"v_add_u32 v{vBI}, s{sT4}, v{vBI8}")
    e(f"s_mul_i32 s{sT}, s{sFJ}, 144"); e(f"s_lshl_b32 s{sT4}, s{sH}, 3"); e(f"s_add_u32 s{sT}, s{sT}, s{sT4}")
    e(f"s_lshl_b32 s{sT}, s{sT}, 14")
    e(f"s_lshl_b32 s{sT4}, s{sMI}, 10"); e(f"s_add_u32 s{sT}, s{sT}, s{sT4}")
    e(f"s_lshl_b32 s{sT4}, s{sQI}, 8"); e(f"s_add_u32 s{sT}, s{sT}, s{sT4}")
    e(f"v_lshlrev_b32 v{vOO}, 14, v{vG}")
    e(f"v_lshl_add_u32 v{vOO}, v{vI}, 4, v{vOO}")
    e(f"v_add_u32 v{vOO}, s{sT}, v{vOO}")
    e("s_setprio 1")
    xdma3(6)
    e("s_setprio 0")
    if PRO: stamp("xissued")
    kgen_piece(0)
    stamp("kpost")
    e(f"v_cmp_gt_u32 vcc, 32, v0")
    e(f"v_mov_b32 v{T[6]}, -32")
    e(f"v_mov_b32 v{T[7]}, 256")
    e(f"v_cndmask_b32 v{T[6]}, v{T[6]}, v{T[7]}, vcc")
    e(f"s_sub_u32 s{sT4}, s{sT2}, 1")
    e(f"v_and_b32 v{T[6]}, s{sT4}, v{T[6]}")
    e(f"v_add_u32 v{T[6]}, v{T[6]}, v0")
    e(f"v_min_u32 v{T[6]}, 287, v{T[6]}")
    e(f"v_lshlrev_b32 v{T[6]}, 1, v{T[6]}")
    p.vmem(f"buffer_load_ushort v{T[7]}, v{T[6]}, s[{SB1}:{SB1+3}], s{sT3} offen", tag='bias')
    e(f"v_min_u32 v{T[9]}, 359, v0")
    e(f"v_mul_u32_u24 v{T[10]}, 205, v{T[9]}")
    e(f"v_lshrrev_b32 v{T[10]}, 10, v{T[10]}")
    e(f"v_mul_u32_u24 v{T[11]}, 5, v{T[10]}")
    e(f"v_sub_u32 v{T[9]}, v{T[9]}, v{T[11]}")
    e(f"v_mul_u32_u24 v{T[10]}, 9216, v{T[10]}")
    e(f"v_lshl_add_u32 v{T[9]}, v{T[9]}, 7, v{T[10]}")
    e(f"s_and_b32 s{sT5}, s{sMI}, 7")
    e(f"s_mul_i32 s{sT}, s{sT5}, {72*9216}")
    e(f"s_and_b32 s{sT4}, s{sT3}, 0xffffff80")
    e(f"s_add_u32 s{sT}, s{sT}, s{sT4}")
    if W1T == 1: p.vmem(f"buffer_load_dword v{T[8]}, v{T[9]}, s[{SW1}:{SW1+3}], s{sT} offen", tag='pf')
    def w2_touch(wv):
        L = p.newlabel("K1_T")
        e(f"s_cmp_eq_u32 s{sW}, {wv}")
        e(f"s_cbranch_scc0 {L}")
        e(f"v_min_u32 v{vXTA}, 323, v0")
        e(f"v_lshlrev_b32 v{vXTA}, 7, v{vXTA}")
        e(f"s_and_b32 s{sT5}, s{sMI}, 7")
        e(f"s_mul_i32 s{sT}, s{sFJ}, {288*1152}")
        e(f"s_mul_i32 s{sT4}, s{sT5}, {324*128}")
        e(f"s_add_u32 s{sT}, s{sT}, s{sT4}")
        p.vmem(f"buffer_load_dword v{vROW}, v{vXTA}, s[{SW2}:{SW2+3}], s{sT} offen", maybe=True)
        p.label(L)
    def w2_touch5(wv):
        L = p.newlabel("K1_T")
        e(f"s_cmp_eq_u32 s{sW}, {wv}")
        e(f"s_cbranch_scc0 {L}")
        e(f"v_min_u32 v{vXTA}, 179, v0")
        e(f"v_mul_u32_u24 v{vC}, 205, v{vXTA}")
        e(f"v_lshrrev_b32 v{vC}, 10, v{vC}")
        e(f"v_lshlrev_b32 v{vXTA}, 7, v{vXTA}")
        e(f"v_lshl_add_u32 v{vXTA}, v{vC}, 9, v{vXTA}")
        e(f"s_and_b32 s{sT5}, s{sMI}, 7")
        e(f"s_mul_i32 s{sT}, s{sFJ}, {288*1152}")
        e(f"s_mul_i32 s{sT4}, s{sT5}, {324*128}")
        e(f"s_add_u32 s{sT}, s{sT}, s{sT4}")
        p.vmem(f"buffer_load_dword v{vROW}, v{vXTA}, s[{SW2}:{SW2+3}], s{sT} offen", maybe=True)
        p.label(L)
    def w1_touch(wv):
        L = p.newlabel("K1_T")
        e(f"s_cmp_eq_u32 s{sW}, {wv}")
        e(f"s_cbranch_scc0 {L}")
        e(f"v_min_u32 v{vXTA}, 359, v0")
        e(f"v_mul_u32_u24 v{vROW}, 205, v{vXTA}")
        e(f"v_lshrrev_b32 v{vROW}, 10, v{vROW}")
        e(f"v_lshlrev_b32 v{vXTA}, 7, v{vXTA}")
        e(f"v_mul_u32_u24 v{vROW}, {9216-640}, v{vROW}")
        e(f"v_add_u32 v{vXTA}, v{vXTA}, v{vROW}")
        e(f"s_and_b32 s{sT5}, s{sMI}, 7")
        e(f"s_mul_i32 s{sT}, s{sT5}, {72*9216}")
        e(f"s_and_b32 s{sT4}, s{sT3}, 0xffffff80")
        e(f"s_add_u32 s{sT}, s{sT}, s{sT4}")
        p.vmem(f"buffer_load_dword v{vROW}, v{vXTA}, s[{SW1}:{SW1+3}], s{sT} offen", maybe=True)
        p.label(L)
    def touch(wv, which, tau, start, count):
        L = p.newlabel("K1_T")
        e(f"s_cmp_eq_u32 s{sW}, {wv}")
        e(f"s_cbranch_scc0 {L}")
        e(f"v_min_u32 v{vXTA}, {count-1}, v{vLANE}")
        e(f"s_and_b32 s{sT5}, s{sMI}, 7")
        if which == 1:
            e(f"v_mul_u32_u24 v{vXTA}, 9216, v{vXTA}")
            e(f"s_mul_i32 s{sT}, s{sT5}, {72*9216}")
            e(f"s_lshl_b32 s{sT4}, s{sT2}, 6"); e(f"s_add_u32 s{sT4}, s{sT4}, s{sT3}")
            e(f"s_add_u32 s{sT}, s{sT}, s{sT4}"); e(f"s_add_u32 s{sT}, s{sT}, {128*tau + start*9216}")
        else:
            e(f"v_lshlrev_b32 v{vXTA}, 7, v{vXTA}")
            e(f"s_mul_i32 s{sT}, s{sFJ}, {288*1152}")
            e(f"s_mul_i32 s{sT4}, s{sT5}, {324*128}")
            e(f"s_add_u32 s{sT}, s{sT}, s{sT4}"); e(f"s_add_u32 s{sT}, s{sT}, {128*start}")
        srd = SW1 if which == 1 else SW2
        p.vmem(f"buffer_load_dword v{vROW}, v{vXTA}, s[{srd}:{srd+3}], s{sT} offen", maybe=True)
        p.label(L)
    def touches(seg):
        o = []
        if W1T == 4 and T1S <= seg < T1S + 12:
            q = seg - T1S
            o.append(lambda: touch(seg % 8, 1, 1 + q // 4, 18 * (q % 4), 18))
        if W2T == 4 and T2S <= seg < T2S + T2N:
            c = 324 // T2N
            o.append(lambda: touch((seg + 4) % 8, 2, 0, c * (seg - T2S), c))
        return o
    e(f"v_bfe_u32 v{T[12]}, v{vLANE}, 1, 3")
    e(f"v_xor_b32 v{T[12]}, s{sW}, v{T[12]}")
    e(f"v_lshlrev_b32 v{T[12]}, 4, v{T[12]}")
    e(f"v_lshl_add_u32 v{T[12]}, v{vI}, 7, v{T[12]}")
    e(f"v_lshl_add_u32 v{T[12]}, v{vG}, 12, v{T[12]}")
    e(f"s_sub_u32 s51, s{sFJ}, 7")
    e(f"s_lshl_b32 s{sT}, s51, 14")
    e(f"v_add_u32 v{T[12]}, s{sT}, v{T[12]}")
    e(f"v_add_u32 v{T[13]}, 8, v{T[12]}")
    e(f"v_lshlrev_b32 v{T[14]}, 4, v{vLANE}")
    e(f"s_lshl_b32 s52, s51, 18"); e(f"s_lshl_b32 s{sT}, s{sW}, 15"); e(f"s_add_u32 s52, s52, s{sT}")
    e(f"s_lshl_b32 s{sT}, s{sMI}, 10"); e(f"s_add_u32 s52, s52, s{sT}"); e(f"s_add_u32 s52, s52, {X4_OFF}")
    e(f"s_add_u32 s53, s52, 16384")
    def w2_prefetch():
        e(f"v_min_u32 v{T[9]}, 323, v0")
        e(f"v_lshlrev_b32 v{T[9]}, 7, v{T[9]}")
        e(f"s_and_b32 s{sT5}, s{sMI}, 7")
        e(f"s_mul_i32 s{sT}, s{sFJ}, {288*1152}")
        e(f"s_mul_i32 s{sT4}, s{sT5}, {324*128}")
        e(f"s_add_u32 s{sT}, s{sT}, s{sT4}")
        p.vmem(f"buffer_load_dword v{T[8]}, v{T[9]}, s[{SW2}:{SW2+3}], s{sT} offen", tag='pf')
    XA = lambda j: SA + j
    e(f"v_and_b32 v{T[10]}, 31, v{vLANE}")
    e(f"v_bfe_u32 v{T[9]}, v{vLANE}, 1, 3")
    e(f"v_xor_b32 v{T[9]}, v{T[9]}, v{T[5]}")
    e(f"s_lshl_b32 s{sT}, s{sQI}, 5")
    e(f"v_add_u32 v{vROW}, s{sT}, v{T[10]}")
    e(f"v_lshlrev_b32 v{T[10]}, 7, v{vROW}")
    for j in range(6):
        e(f"s_mul_i32 s{sT}, s{sH}, 6"); e(f"s_add_u32 s{sT}, s{sT}, {j}")
        e(f"s_and_b32 s{sT4}, s{sT}, 3"); e(f"s_lshl_b32 s{sT4}, s{sT4}, 1")
        e(f"s_lshr_b32 s{sT}, s{sT}, 2"); e(f"s_lshl_b32 s{sT}, s{sT}, 14")
        e(f"v_xor_b32 v{T[11]}, s{sT4}, v{T[9]}")
        e(f"v_lshl_add_u32 v{T[11]}, v{T[11]}, 4, v{T[10]}")
        e(f"v_add_u32 v{XA(j)}, s{sT}, v{T[11]}")
    e(f"v_lshrrev_b32 v{T[9]}, 1, v{T[4]}")
    e(f"v_lshl_add_u32 v{T[9]}, v{vG}, 2, v{T[9]}")
    e(f"v_and_b32 v{T[10]}, 1, v{T[4]}")
    e(f"v_lshl_add_u32 v{T[9]}, v{T[10]}, 4, v{T[9]}")
    e(f"v_bfe_u32 v{T[10]}, v{vLANE}, 1, 1")
    e(f"s_and_b32 s{sT}, s{sW}, 6")
    e(f"v_or_b32 v{T[10]}, s{sT}, v{T[10]}")
    e(f"v_lshlrev_b32 v{T[11]}, 1, v{vG}")
    e(f"v_xor_b32 v{T[10]}, v{T[10]}, v{T[11]}")
    e(f"v_lshlrev_b32 v{T[9]}, 7, v{T[9]}")
    e(f"v_and_b32 v{T[11]}, 1, v{vLANE}")
    e(f"v_lshl_add_u32 v{T[9]}, v{T[11]}, 3, v{T[9]}")
    e(f"s_and_b32 s{sT}, s{sW}, 1"); e(f"s_lshl_b32 s{sT}, s{sT}, 13")
    e(f"s_lshl_b32 s{sT4}, s{sFJ}, 14"); e(f"s_add_u32 s{sT}, s{sT}, s{sT4}")
    e(f"v_add_u32 v{T[9]}, s{sT}, v{T[9]}")
    e(f"v_lshl_add_u32 v{vXTA}, v{T[10]}, 4, v{T[9]}")
    vXTB = SA + 6
    e(f"v_xor_b32 v{vXTB}, 16, v{vXTA}")
    ACC = [SA + 8, SA + 9, SA + 10]
    for a in ACC: e(f"v_mov_b32 v{a}, 0")
    for i in range(4): e(f"v_mov_b32 v{WF+i}, s{sONE}")

    D = [(('B', 0, 0), ('B', 0, 1)), (('8', 0), ('8', 1)), (('B', 0, 2), ('B', 0, 3)), (('B', 0, 4), ('B', 0, 5)), (('8', 2), None)]
    for tau in (1, 2, 3):
        for k in range(3): D.append((('B', tau, 2*k), ('B', tau, 2*k+1)))
    p2 = [('E', 0, 0), ('E', 0, 1), ('E', 1, 0), ('E', 1, 1), ('E', 0, 2), ('E', 1, 2)]
    for j in range(2, 9): p2 += [('E', j, k) for k in range(3)]
    for i in range(0, len(p2), 2): D.append((p2[i], p2[i+1] if i + 1 < len(p2) else None))
    uloc = {}
    for k, (a, b) in enumerate(D):
        uloc[a] = (k, 0)
        if b: uloc[b] = (k, 1)
    def uparams(u):
        if u[0] == 'B': return SW1, vOW1, 96 * u[2] * 9216 + 128 * u[1], sRP1, sRP1X, sRP1H
        if u[0] == '8': return SW1, vOW8, 192 * u[1] * 9216, sRP8, sRP8X, sRP8H
        return SW2, vOW2, 96 * u[2] * 1152 + 128 * u[1], (sRP2K0 if u[2] == 0 else sRP2), sRP2X, None
    def dma_double(k):
        ops = []
        lds0 = slot_of(k) * 24576
        def one(m0r, m0i, sr_, base, srd, vo, maybe=False):
            e(f"s_add_u32 m0, s{m0r}, {m0i}")
            e(f"s_add_u32 s{sT}, s{sr_}, {base}")
            p.vmem(f"buffer_load_dwordx4 v{vo}, s[{srd}:{srd+3}], s{sT} offen lds", tag=('u', k), maybe=maybe)
        for half, u in enumerate(D[k]):
            if not u: continue
            srd, vo, base, r, rx, rh = uparams(u)
            ops.append(lambda srd=srd, vo=vo, base=base, r=r, half=half: one(sM0W, lds0 + half*12288, r, base, srd, vo))
        a, b = D[k]
        if b and a[0] != 'E':
            srd, vo, base, r, rx, rh = uparams(a)
            ops.append(lambda: one(sM0H, lds0, rh, base, srd, vo))
        else:
            for half, u in enumerate(D[k]):
                if not u: continue
                srd, vo, base, r, rx, rh = uparams(u)
                def extra(srd=srd, vo=vo, base=base, rx=rx, half=half):
                    L = p.newlabel("K1_X")
                    e(f"s_cmp_eq_u32 s{sH}, {half}")
                    e(f"s_cbranch_scc0 {L}")
                    one(sM0X, lds0 + half*12288, rx, base, srd, vo, maybe=True)
                    p.label(L)
                ops.append(extra)
        return ops

    if PRO: stamp("setup")
    for R in range(3):
        if R: kgen_piece(R)
        p.wait(vm=[('x', 3*R+2)], lg_all=True)
        e("s_barrier")
        stamp(f"xround{R}")
        for j in range(6):
            p.ds(f"ds_read_b128 {vr(Q(12*R+j), 4)}, v{XA(j)}", tag=('raw', R, j))
        if R == 1 or (R == 2 and not DL):
            for k in (2*(R-1), 2*(R-1)+1):
                for op in dma_double(k): op()
        if R < 2:
            for j in range(6): e(f"v_add_u32 v{XA(j)}, 49152, v{XA(j)}")
        L = p.newlabel("K1_XT")
        e(f"s_sub_u32 s{sT}, s{sFJ}, {3*R}")
        e(f"s_cmp_lt_u32 s{sT}, 3")
        e(f"s_cbranch_scc0 {L}")
        for job in range(2):
            e(f"ds_read_b64_tr_b16 {vr(vXT+4*job, 2)}, v{vXTA} offset:{4096*job}")
            e(f"ds_read_b64_tr_b16 {vr(vXT+4*job+2, 2)}, v{vXTB} offset:{4096*job+256}")
        e("s_waitcnt lgkmcnt(0)")
        p.label(L)
        L = p.newlabel("K1_X4")
        e(f"s_sub_u32 s{sT}, s51, {3*R}")
        e(f"s_cmp_lt_u32 s{sT}, 3")
        e(f"s_cbranch_scc0 {L}")
        e(f"ds_read2st64_b64 {vr(SC,4)}, v{T[12]} offset0:0 offset1:4")
        e(f"ds_read2st64_b64 {vr(SC+4,4)}, v{T[13]} offset0:0 offset1:4")
        e("s_waitcnt lgkmcnt(0)")
        p.vmem(f"buffer_store_dwordx4 {vr(SC,4)}, v{T[14]}, s[{SWS}:{SWS+3}], s52 offen {STM}", maybe=True)
        p.vmem(f"buffer_store_dwordx4 {vr(SC+4,4)}, v{T[14]}, s[{SWS}:{SWS+3}], s53 offen {STM}", maybe=True)
        p.label(L)
        for j in range(6):
            p.wait(lg=[('raw', R, j)])
            first = (R == 0 and j == 0)
            e(f"v_mfma_f32_32x32x16_bf16 {vr(SB,16)}, {vr(WF,4)}, {vr(Q(12*R+j),4)}, " + ("0" if first else vr(SB,16)))
            for d in range(4):
                x = Q(12*R+j) + d
                e(f"v_dot2_f32_bf16 v{ACC[1+(d&1)]}, v{x}, v{x}, v{ACC[1+(d&1)]}")
        if R == 1 and W2T == 0: w2_prefetch()
    p.wait(vm=['bias'])
    e(f"v_lshlrev_b32 v{T[7]}, 16, v{T[7]}")
    e(f"v_mov_b32 v{T[5]}, {fhex(ALPHA)}")
    e(f"v_mov_b32 v{T[4]}, {fhex(ALPHA*0.5)}")
    e(f"v_cmp_gt_u32 vcc, 32, v0")
    e(f"v_min_u32 v{T[6]}, 287, v0")
    e(f"v_lshlrev_b32 v{T[6]}, 2, v{T[6]}")
    e(f"v_cndmask_b32 v{T[5]}, v{T[5]}, v{T[4]}, vcc")
    e(f"v_add_u32 v{T[6]}, {BIAS}, v{T[6]}")
    e(f"v_mul_f32 v{T[7]}, v{T[7]}, v{T[5]}")
    e(f"v_cmp_gt_u32 vcc, 288, v0")
    e(f"s_and_saveexec_b64 s[54:55], vcc")
    p.ds(f"ds_write_b32 v{T[6]}, v{T[7]}")
    e(f"s_mov_b64 exec, s[54:55]")
    e(f"v_add_f32 v{ACC[1]}, v{ACC[1]}, v{ACC[2]}")
    e(f"v_mov_b32 v{T[0]}, v{ACC[1]}")
    e(f"s_lshl_b32 s{sT}, s{sH}, 3"); e(f"s_add_u32 s{sT}, s{sT}, {STAT}")
    e(f"v_lshlrev_b32 v{T[4]}, 4, v{vROW}")
    e(f"v_permlane32_swap_b32 v{ACC[1]}, v{T[0]}")
    e(f"v_add_u32 v{T[5]}, s{sT}, v{T[4]}")
    e(f"v_mov_b32 v{ACC[0]}, v{SB}")
    e(f"v_add_f32 v{ACC[1]}, v{ACC[1]}, v{T[0]}")
    p.ds(f"ds_write_b64 v{T[5]}, v[{ACC[0]}:{ACC[1]}]")
    e(f"v_add_u32 v{T[4]}, {STAT}, v{T[4]}")
    kgen_piece(3)
    assert kgst[0] == 8
    p.wait(lg_all=True)
    e("s_barrier")
    stamp("statbar")
    p.ds(f"ds_read_b128 {vr(T[8], 4)}, v{T[4]}", tag='st')
    def bias_init(S, tau):
        if tau == 8: return [lambda gg=gg: p.ds(f"ds_read_b128 {vr(S + gg*4, 4)}, v{vBI8} offset:{gg*32}", tag=('bias', tau)) for gg in range(4)]
        return [lambda gg=gg: p.ds(f"ds_read_b128 {vr(S + gg*4, 4)}, v{vBI} offset:{(32+64*tau+8*gg)*4}", tag=('bias', tau)) for gg in range(4)]
    for op in bias_init(SA, 0) + bias_init(SB, 8): op()
    p.wait(lg=['st'])
    inv = 1.0 / 576.0
    b = T[8]
    for s_ in [f"v_add_f32 v{b}, v{b}, v{b+2}", f"v_add_f32 v{b+1}, v{b+1}, v{b+3}",
            f"v_mul_f32 v{b}, {fhex(inv)}, v{b}", f"v_mul_f32 v{b+1}, {fhex(inv)}, v{b+1}",
            f"v_fma_f32 v{b+1}, -v{b}, v{b}, v{b+1}", f"v_max_f32 v{b+1}, 0, v{b+1}",
            f"v_cvt_pk_bf16_f32 v{b+2}, v{b}, v{b+1}", f"v_lshlrev_b32 v{b}, 16, v{b+2}",
            f"v_and_b32 v{b+1}, s{sMASK}, v{b+2}", f"v_add_f32 v{b+1}, {fhex(1e-5)}, v{b+1}",
            f"v_cvt_pk_bf16_f32 v{b+1}, v{b+1}, v{b+1}", f"v_and_b32 v{b+1}, s{sMASK}, v{b+1}",
            f"v_sqrt_f32 v{b+1}, v{b+1}", "s_nop 0", f"v_cvt_pk_bf16_f32 v{b+1}, v{b+1}, v{b+1}",
            f"v_and_b32 v{b+1}, s{sMASK}, v{b+1}", f"v_rcp_f32 v{b+2}, v{b+1}",
            f"v_lshlrev_b32 v{T[4]}, 3, v{vROW}",
            f"v_mul_f32 v{b+3}, -v{b}, v{b+2}", f"v_add_u32 v{T[4]}, {RCT}, v{T[4]}",
            f"v_mul_f32 v{vR}, s{sAL}, v{b+2}", f"v_mul_f32 v{vC}, s{sAL}, v{b+3}"]: e(s_)
    p.ds(f"ds_write_b64 v{T[4]}, v[{b+2}:{b+3}]", tag='w')

    seq = []
    def G(k, areg, imm, d2, mfs, need=()):
        seq.append(dict(kind='G', unit=k, areg=areg, imm=imm, d2=d2, mf=mfs, need=list(need)))
    def BAR(bg=(), pre=()):
        seq.append(dict(kind='BAR', bg=list(bg), first=list(pre)))
    def p1_group(tau, S, Dk, own, j, need=()):
        k = uloc[('B', tau, 2*Dk)][0]; slot = k % 4
        q = Q(12*Dk + 6*own + j)
        G(k, vA[('n', own, slot >> 1)], (slot & 1) * 24576 + j * 2048, 512,
          [lambda wf: f"v_mfma_f32_32x32x16_bf16 {vr(S,16)}, {vr(wf,4)}, {vr(q,4)}, {vr(S,16)}"], need)
    def b8_group(Dk, j, need=()):
        k, half = uloc[('8', Dk)]; slot = k % 4
        assert slot < 2
        q = Q(12*Dk + j)
        G(k, vA['8'], slot * 24576 + half * 12288 + j * 2048, 512,
          [lambda wf: f"v_mfma_f32_32x32x16_bf16 {vr(SB,16)}, {vr(wf,4)}, {vr(q,4)}, {vr(SB,16)}"], need)
    def norm_ops(slot0, buf):
        ops = []
        for sg in range(2):
            q = Q(slot0 + sg)
            tt = [TMP + 8*sg + i for i in range(8)]
            for d in range(4):
                ops.append(lambda d=d, q=q, tt=tt: e(f"v_lshlrev_b32 v{tt[2*d]}, 16, v{q+d}"))
                ops.append(lambda d=d, q=q, tt=tt: e(f"v_and_b32 v{tt[2*d+1]}, s{sMASK}, v{q+d}"))
            for d in range(8):
                ops.append(lambda d=d, tt=tt: e(f"v_fma_f32 v{tt[d]}, v{tt[d]}, v{vR}, v{vC}"))
            for d in range(4):
                ops.append(lambda d=d, q=q, tt=tt: e(f"v_cvt_pk_bf16_f32 v{q+d}, v{tt[2*d]}, v{tt[2*d+1]}"))
            ops.append(lambda q=q, sg=sg: p.ds(f"ds_write_b128 v{vPW}, {vr(q,4)} offset:{buf*16384+sg*1024}", tag='w'))
        return ops
    def gelu_ops(regs4, dst2, tbase):
        ops = []
        tt = [tbase + i for i in range(4)]
        for i in range(4): ops.append(lambda i=i: e(f"v_fmaak_f32 v{tt[i]}, v{regs4+i}, v{regs4+i}, {fhex(CA)}"))
        for i in range(4): ops.append(lambda i=i: e(f"v_mul_f32 v{tt[i]}, v{regs4+i}, v{tt[i]}"))
        for i in range(4): ops.append(lambda i=i: e(f"v_exp_f32 v{tt[i]}, -v{tt[i]}"))
        for i in range(4): ops.append(lambda i=i: e(f"v_fma_f32 v{tt[i]}, v{tt[i]}, s{sAL}, s{sAL}"))
        for i in range(4): ops.append(lambda i=i: e(f"v_rcp_f32 v{tt[i]}, v{tt[i]}"))
        for i in range(4): ops.append(lambda i=i: e(f"v_mul_f32 v{tt[i]}, v{regs4+i}, v{tt[i]}"))
        for i in range(2): ops.append(lambda i=i: e(f"v_cvt_pk_bf16_f32 v{dst2+i}, v{tt[2*i]}, v{tt[2*i+1]}"))
        return ops
    def gelu_block(S, tau):
        ops = []
        slot = (1 + 2*tau) if tau < 3 else 0
        for kap in range(2):
            pw = TMP + 8 + 4*kap
            for t in range(2):
                ops += gelu_ops(S + (kap*2+t)*4, pw + 2*t, TMP + 4*t)
            ops.append(lambda pw=pw, kap=kap: p.ds(f"ds_write_b128 v{vPW}, {vr(pw,4)} offset:{slot*8192+kap*1024}", tag='w'))
        return ops
    def s8_write():
        return [lambda gg=gg: p.ds(f"ds_write_b128 v{vPW}, {vr(SB+4*gg,4)} offset:{24576 + (gg>>1)*16384 + (gg&1)*1024}", tag='w') for gg in range(4)]
    def s8_read():
        ops = []
        for hh in range(2):
            for c in range(2):
                dst = (SC if hh == 0 else vXT) + 4*c
                ops.append(lambda hh=hh, c=c, dst=dst: p.ds(f"ds_read_b128 {vr(dst,4)}, v{v8R} offset:{24576 + hh*8192 + c*1024}", tag='s8'))
        return ops
    def gelu_b8():
        ops = [lambda: p.wait(lg=['s8'])]
        for i in range(8): ops.append(lambda i=i: e(f"v_add_f32 v{SC+i}, v{SC+i}, v{vXT+i}"))
        pw = TMP + 8
        for t in range(2): ops += gelu_ops(SC + 4*t, pw + 2*t, TMP + 4*t)
        ops.append(lambda: p.ds(f"ds_write_b128 v{vP8}, {vr(pw,4)}", tag='w'))
        return ops
    def pread(kk):
        slot = kk if kk < 7 else kk - 7
        return [lambda sg=sg: p.ds(f"ds_read_b128 {vr(Q(2*kk+sg),4)}, v{vPR} offset:{slot*8192+sg*256}", tag=('P', kk)) for sg in range(2)]
    def xt_job():
        L = p.newlabel("K1_XJ")
        e(f"s_cmp_lt_u32 s{sFJ}, 9")
        e(f"s_cbranch_scc0 {L}")
        e(f"s_lshl_b32 s{sT}, s{sFJ}, 6"); e(f"s_and_b32 s{sT4}, s{sW}, 6"); e(f"s_lshl_b32 s{sT4}, s{sT4}, 3")
        e(f"s_add_u32 s{sT}, s{sT}, s{sT4}"); e(f"s_lshl_b32 s{sT}, s{sT}, 12")
        e(f"s_lshl_b32 s{sT4}, s{sMI}, 8"); e(f"s_add_u32 s{sT}, s{sT}, s{sT4}")
        e(f"s_and_b32 s{sT4}, s{sW}, 1"); e(f"s_lshl_b32 s{sT5}, s{sT4}, 7"); e(f"s_add_u32 s{sT}, s{sT}, s{sT5}")
        e(f"s_add_u32 s{sT}, s{sT}, {XNT_OFF}")
        e(f"s_lshl_b32 s{sT4}, s{sT4}, 9"); e(f"s_add_u32 s{sT4}, s{sT4}, {RCT}")
        va, vb, v1_, v2_ = SC, SC+1, SC+2, SC+3
        e(f"v_lshlrev_b32 v{vb}, 5, v{vG}")
        e(f"v_add_u32 v{vb}, s{sT4}, v{vb}")
        e(f"s_add_u32 s{sT5}, s{sXM}, {PREG+40960}")
        e(f"v_lshlrev_b32 v{va}, 4, v{vG}")
        e(f"v_lshl_add_u32 v{va}, v{vI}, 7, v{va}")
        e(f"v_add_u32 v{va}, s{sT5}, v{va}")
        for job in range(2):
            x = vXT + 4*job
            for q in range(4):
                e(f"ds_read_b128 {vr(TMP+4*q,4)}, v{vb} offset:{256*job+128*(q>>1)+16*(q&1)}")
            e("s_waitcnt lgkmcnt(0)")
            for d in range(4):
                e(f"v_lshlrev_b32 v{v1_}, 16, v{x+d}")
                e(f"v_and_b32 v{v2_}, s{sMASK}, v{x+d}")
                e(f"v_fma_f32 v{v1_}, v{v1_}, v{TMP+2*d}, v{TMP+2*d+1}")
                e(f"v_fma_f32 v{v2_}, v{v2_}, v{TMP+8+2*d}, v{TMP+8+2*d+1}")
                e(f"v_cvt_pk_bf16_f32 v{x+d}, v{v1_}, v{v2_}")
            e(f"ds_write_b128 v{va}, {vr(x,4)} offset:{64*job}")
        e(f"v_lshlrev_b32 v{va}, 4, v{vLANE}")
        e(f"v_add_u32 v{va}, s{sT5}, v{va}")
        e(f"v_lshrrev_b32 v{vb}, 3, v{vLANE}")
        e(f"v_lshlrev_b32 v{vb}, 12, v{vb}")
        e(f"v_and_b32 v{v1_}, 7, v{vLANE}")
        e(f"v_lshl_add_u32 v{vb}, v{v1_}, 4, v{vb}")
        e("s_waitcnt lgkmcnt(0)")
        e(f"ds_read_b128 {vr(TMP,4)}, v{va}")
        e(f"ds_read_b128 {vr(TMP+4,4)}, v{va} offset:1024")
        e(f"s_add_u32 s{sT4}, s{sT}, {8*4096}")
        e("s_waitcnt lgkmcnt(0)")
        p.vmem(f"buffer_store_dwordx4 {vr(TMP,4)}, v{vb}, s[{SWS}:{SWS+3}], s{sT} offen {STM}", maybe=True)
        p.vmem(f"buffer_store_dwordx4 {vr(TMP+4,4)}, v{vb}, s[{SWS}:{SWS+3}], s{sT4} offen {STM}", maybe=True)
        e("s_nop 1")
        p.label(L)

    def xt_ops():
        ops = []
        A = lambda s_: ops.append(lambda: e(s_))
        va, vb, v1_, v2_, vc, vd = SC, SC+1, SC+2, SC+3, SC+4, SC+5
        def setup():
            e(f"s_lshl_b32 s51, s{sFJ}, 6"); e(f"s_and_b32 s52, s{sW}, 6"); e(f"s_lshl_b32 s52, s52, 3")
            e(f"s_add_u32 s51, s51, s52"); e(f"s_lshl_b32 s51, s51, 12")
            e(f"s_lshl_b32 s52, s{sMI}, 8"); e(f"s_add_u32 s51, s51, s52")
            e(f"s_and_b32 s52, s{sW}, 1"); e(f"s_lshl_b32 s53, s52, 7"); e(f"s_add_u32 s51, s51, s53")
            e(f"s_add_u32 s51, s51, {XNT_OFF}")
            e(f"s_lshl_b32 s52, s52, 9"); e(f"s_add_u32 s52, s52, {RCT}")
            e(f"v_lshlrev_b32 v{vb}, 5, v{vG}")
            e(f"v_add_u32 v{vb}, s52, v{vb}")
            e(f"s_add_u32 s53, s{sXM}, {PREG+40960}")
            for q in range(4):
                p.ds(f"ds_read_b128 {vr(TMP+4*q,4)}, v{vb} offset:{128*(q>>1)+16*(q&1)}", tag='xr0')
        ops.append(setup)
        A(f"v_lshlrev_b32 v{va}, 4, v{vG}")
        A(f"v_lshl_add_u32 v{va}, v{vI}, 7, v{va}")
        A(f"v_add_u32 v{va}, s53, v{va}")
        A(f"v_lshlrev_b32 v{vc}, 4, v{vLANE}")
        A(f"v_add_u32 v{vc}, s53, v{vc}")
        A(f"v_lshrrev_b32 v{vd}, 3, v{vLANE}")
        A(f"v_lshlrev_b32 v{vd}, 12, v{vd}")
        A(f"v_and_b32 v{v1_}, 7, v{vLANE}")
        A(f"v_lshl_add_u32 v{vd}, v{v1_}, 4, v{vd}")
        A(f"s_cmp_lt_u32 s{sFJ}, 9\n    s_cselect_b32 s52, 0, 0x10000000\n    v_add_u32 v{vd}, s52, v{vd}\n    s_add_u32 s52, s51, {8*4096}")
        for job in range(2):
            x = vXT + 4*job
            ops.append(lambda job=job: p.wait(lg=[f'xr{job}']))
            for d in range(4):
                A(f"v_lshlrev_b32 v{v1_}, 16, v{x+d}")
                A(f"v_and_b32 v{v2_}, s{sMASK}, v{x+d}")
                A(f"v_fma_f32 v{v1_}, v{v1_}, v{TMP+2*d}, v{TMP+2*d+1}")
                A(f"v_fma_f32 v{v2_}, v{v2_}, v{TMP+8+2*d}, v{TMP+8+2*d+1}")
                A(f"v_cvt_pk_bf16_f32 v{x+d}, v{v1_}, v{v2_}")
            def wr(job=job, x=x):
                p.ds(f"ds_write_b128 v{va}, {vr(x,4)} offset:{64*job}")
                if job == 0:
                    for q in range(4):
                        p.ds(f"ds_read_b128 {vr(TMP+4*q,4)}, v{vb} offset:{256+128*(q>>1)+16*(q&1)}", tag='xr1')
                else:
                    p.ds(f"ds_read_b128 {vr(TMP,4)}, v{vc}", tag='xo')
                    p.ds(f"ds_read_b128 {vr(TMP+4,4)}, v{vc} offset:1024", tag='xo')
            ops.append(wr)
        def st():
            p.wait(lg=['xo'])
            p.vmem(f"buffer_store_dwordx4 {vr(TMP,4)}, v{vd}, s[{SWS}:{SWS+3}], s51 offen")
            p.vmem(f"buffer_store_dwordx4 {vr(TMP+4,4)}, v{vd}, s[{SWS}:{SWS+3}], s52 offen")
            e("s_nop 1")
        ops.append(st)
        return ops
    for op in norm_ops(0, 0): op()
    for r in range(9):
        Dk, j = divmod(r, 3)
        pre = [lambda sg=sg, r=r, Dk=Dk, j=j: p.ds(f"ds_read_b128 {vr(Q(12*Dk+6+2*j+sg),4)}, v{vXR} offset:{(r%2)*16384+sg*1024}", tag=('oth', r)) for sg in range(2)]
        bg = []
        if r + 1 < 9:
            Dn, jn = divmod(r + 1, 3)
            bg = norm_ops(12*Dn + 2*jn, (r + 1) % 2)
            if W1T == 2 and r < 3: bg = [lambda wv=2*r: w1_touch(wv), lambda wv=2*r+1: w1_touch(wv)] + bg
            if W1T == 3 and r < 6: bg = [lambda wv=r: w1_touch(wv)] + bg
        else:
            bg = xt_ops() if XI else [xt_job]
        if W2T == 2 and r >= 3: bg = bg[:6] + [lambda wv=r-3: w2_touch(wv)] + bg[6:]
        bg = bg[:8] + touches(r) + bg[8:]
        BAR(bg=bg, pre=pre)
        nd = [('bias', 0), ('bias', 8)] if r == 0 else []
        for sg in range(2):
            b8_group(Dk, 2*j+sg, nd); p1_group(0, SA, Dk, 0, 2*j+sg, nd)
        for sg in range(2): p1_group(0, SA, Dk, 1, 2*j+sg, [('oth', r)])
    Sbuf = {0: SA, 1: SB, 2: SA, 3: SB}
    for tau in (1, 2, 3):
        gl = gelu_block(Sbuf[tau-1], tau-1)
        n3 = (len(gl) + 2) // 3
        for Dk in range(3):
            pre = []
            if tau == 1 and Dk == 0: pre = s8_write() + bias_init(SB, 1)
            bg = gl[Dk*n3:(Dk+1)*n3]
            if W2T == 5 and tau == 1: bg = bg[:6] + [lambda wv=Dk: w2_touch5(wv)] + bg[6:]
            if W2T == 6 and tau == 2: bg = bg[:6] + [lambda wv=Dk: w2_touch5(wv)] + bg[6:]
            if W2T == 1 and tau < 3: bg = bg[:6] + [lambda wv=3*(tau-1)+Dk: w2_touch(wv)] + bg[6:]
            if tau == 1 and Dk == 1: bg = s8_read() + bg
            if tau == 3 and Dk == 0: bg = gelu_b8() + bg
            if Dk == 2 and tau < 3: bg = bg + bias_init(Sbuf[tau+1], tau+1)
            if tau == 3 and Dk == 1: bg = pread(1) + pread(2) + pread(0) + bg
            if tau == 3 and Dk == 2: bg = pread(3) + pread(4) + bg
            bg = bg[:8] + touches(6 + 3*tau + Dk) + bg[8:]
            BAR(bg=bg, pre=pre)
            for own in range(2):
                for j in range(6):
                    p1_group(tau, Sbuf[tau], Dk, own, j, [('bias', tau)] if (Dk == 0 and own == 0 and j == 0) else [])
    OB = {0: Q(18), 1: Q(22)}
    ET = Q(26)
    def epi(j):
        O = OB[j % 2]
        ops = []
        for t in range(2):
            dst = ET + 4*t + 8*(j % 2)
            for sg in range(2):
                for i in range(2):
                    ops.append(lambda t=t, sg=sg, i=i, dst=dst: e(f"v_cvt_pk_bf16_f32 v{dst+2*sg+i}, v{O+(t*2+sg)*4+2*i}, v{O+(t*2+sg)*4+2*i+1}"))
            def st(t=t, dst=dst):
                e(f"s_mov_b32 s{sT}, {(16*j+4*t)*16384}")
                p.vmem(f"buffer_store_dwordx4 {vr(dst,4)}, v{vOO}, s[{SWS}:{SWS+3}], s{sT} offen {STM if STJ[j] == '1' else ''}")
            if not NOST: ops.append(st)
        return ops
    gl3 = gelu_block(SB, 3)
    for i, u in enumerate(p2):
        _, j, k = u
        kd, half = uloc[u]
        if half == 0:
            bg = []; pre = []
            if i == 0: pre = pread(5) + pread(6); bg = gl3[:len(gl3)//2]
            if i == 2: bg = gl3[len(gl3)//2:]
            if i == 4: pre = pread(7) + pread(8) + [lambda t=t: e(f"v_add_u32 v{vA[('p',t,2)]}, 0x18000, v{vA[('p',t,0)]}") for t in (0, 1)]
            BAR(bg=bg, pre=pre)
        slot = slot_of(kd)
        O = OB[j % 2]
        for jj in range(3):
            kk = 3*k + jj
            for t in range(2):
                first = (kk == 0)
                mfs = [lambda wf, t=t, sg=sg, kk=kk, first=first, O=O: f"v_mfma_f32_16x16x32_bf16 {vr(O+(t*2+sg)*4,4)}, {vr(wf,4)}, {vr(Q(2*kk+sg),4)}, " + ("0" if first else vr(O+(t*2+sg)*4,4)) for sg in range(2)]
                G(kd, vA[('p', t, slot >> 1)], (slot & 1) * 24576 + half * 12288 + jj * 4096, 2048, mfs, [('P', kk)])
        if k == 2:
            seq.append(dict(kind='EPI', ops=epi(j)))
    gidx = [i for i, s in enumerate(seq) if s['kind'] == 'G']
    pos_of_g = {g: n for n, g in enumerate(gidx)}
    bars = [i for i, s in enumerate(seq) if s['kind'] == 'BAR']
    first_read_pos = {}; last_use = {}
    for n, g in enumerate(gidx):
        k = seq[g]['unit']
        rp = gidx[n - RA] if n - RA >= 0 else -1
        first_read_pos.setdefault(k, rp)
        last_use[k] = g
    land = {}; rel = {}
    for k in first_read_pos:
        prev = [b for b in bars if b < first_read_pos[k]]
        land.setdefault(prev[-1] if prev else bars[0], []).append(k)
        nxt = [b for b in bars if b > last_use[k]]
        if nxt and k + 4 < len(D) and not (R6 and k + 4 in ISS6): rel.setdefault(nxt[0], []).append(k + 4)
    if R6:
        assert len(D) == 28 and len(bars) == 32 and D[14][0][0] == 'E' and D[13][0][0] == 'B'
        assert rel[bars[21]] == [20]
        for k in sorted(ISS6): rel.setdefault(bars[ISS6[k]], []).append(k)
    if DL:
        rel.setdefault(bars[0], []).append(2)
        rel.setdefault(bars[DL-1], []).append(3)
    wf_of = {}
    def issue_reads(n):
        if n >= len(gidx): return
        s = seq[gidx[n]]
        wf = WF + 4 * (n % NWF)
        wf_of[n] = wf
        if NOREAD: return
        p.ds(f"ds_read_b64_tr_b16 {vr(wf,2)}, v{s['areg']} offset:{s['imm']}", tag=('wf', n))
        p.ds(f"ds_read_b64_tr_b16 {vr(wf+2,2)}, v{s['areg']} offset:{s['imm']+s['d2']}", tag=('wf', n))
    bgq = []
    def groups_left(i):
        c = 0
        for s in seq[i:]:
            if s['kind'] == 'BAR': break
            if s['kind'] == 'G': c += 1
        return c
    delay = []
    for i, s in enumerate(seq):
        if s['kind'] == 'EPI':
            delay.append([3, s['ops']])
        elif s['kind'] == 'BAR':
            for op in bgq: op()
            p.wait(vm=[('u', k) for k in land.get(i, [])], lg=['w'])
            if not NOBAR: e("s_barrier")
            bi = bars.index(i)
            if bi in ((0, 3, 6, 9, 12, 15, 18, 21, 24, 27, 30) if PRO else (0, 9, 18)): stamp(f"bar{bi}")
            if i == bars[0]:
                for n in range(RA): issue_reads(n)
            if bi == 9: e("s_nop 7")
            for op in s['first']: op()
            dm = []
            for k in rel.get(i, []):
                if not NODMA: dm += dma_double(k)
            bgq = []
            b = [] if NOBG else list(s['bg'])
            step = max(1, len(b) // (len(dm) + 1)) if dm else 0
            while dm or b:
                if dm: bgq.append(dm.pop(0))
                take = b[:step] if dm else b
                bgq += take; b = b[len(take):]
        else:
            n = pos_of_g[i]
            left = groups_left(i)
            if seq[i-1]['kind'] == 'BAR': segn = left
            done = segn - left
            if PRIO and (done == 0 or (done * 4) // segn != ((done - 1) * 4) // segn):
                e(f"s_setprio {3 - (done * 4) // segn}")
            left = max(left - FRONT, 1)
            for dl in delay: dl[0] -= 1
            while delay and delay[0][0] <= 0: bgq += delay.pop(0)[1]
            k = -(-len(bgq) // left)
            p.wait(lg=[('wf', n)] + s['need'])
            nm = len(s['mf'])
            for mi_, mf in enumerate(s['mf']):
                e(mf(wf_of[n]))
                if mi_ == 0: issue_reads(n + RA)
                lo = (k * mi_) // nm; hi = (k * (mi_ + 1)) // nm
                for op in bgq[lo:hi]: op()
            bgq = bgq[k:]
    e("s_nop 7")
    for op in bgq: op()
    for dl in delay:
        for op in dl[1]: op()
    if DIAG:
        stamp("lastissue")
        e("s_waitcnt vmcnt(0)")
        stamp("end")
        e("s_memrealtime s[100:101]")
        e("s_waitcnt lgkmcnt(0)")
        e(f"v_writelane_b32 v{TMP}, s100, 40")
        for i in range(len(stamps)):
            e(f"s_sub_u32 s{sT}, s{56+2*i}, s56")
            e(f"v_writelane_b32 v{TMP}, s{sT}, {i}")
        e(f"s_lshl_b32 s{sT}, s2, 3"); e(f"s_add_u32 s{sT}, s{sT}, s{sW}"); e(f"s_lshl_b32 s{sT}, s{sT}, 8")
        e(f"s_add_u32 s{sT}, s{sT}, 0x4000000")
        e(f"v_lshlrev_b32 v{TMP+1}, 2, v{vLANE}")
        e(f"buffer_store_dword v{TMP}, v{TMP+1}, s[{SWS}:{SWS+3}], s{sT} offen")
        open("stamps.txt", "w").write(" ".join(stamps))
    p.label("K1_END")
    e("s_endpgm")
    return p.text()
```

```python
from asmlib import *
import math, os
DIAG = int(os.environ.get("DIAG", "0")); PRO = int(os.environ.get("PRO", "0"))
NODMA = int(os.environ.get("NODMA", "0")); NOREAD = int(os.environ.get("NOREAD", "0")); NOST = int(os.environ.get("NOST", "0"))
NOBAR = int(os.environ.get("NOBAR", "0")); NOBG = int(os.environ.get("NOBG", "0"))
PRIO = int(os.environ.get("PRIO", "1")); FRONT = int(os.environ.get("FRONT", "1")); MAP = 1
RA = int(os.environ.get("RA", "4"))

PART_OFF = 0
X4_OFF = 37748736
XNT_OFF = 40108032
KT_OFF = 42467328
KSPL = [int(c) for c in os.environ.get('KSPL', '8000')]
LOG2E = math.log2(math.e)
TW = int(os.environ.get("TW", "0"))
T1S = int(os.environ.get("T1S", "0")); T2S = int(os.environ.get("T2S", "4")); T2N = int(os.environ.get("T2N", "12"))
STM = os.environ.get("STM", "sc1")
KB = int(os.environ.get("KB", "1"))
R6 = int(os.environ.get("R6", "1"))
SLOT6 = {21: 4, 22: 1, 23: 5, 24: 2, 25: 3, 26: 0, 27: 4}
ISS6 = {21: 21, 22: 22, 23: 22, 24: 23, 25: 24, 26: 25, 27: 26}
def slot_of(k): return SLOT6[k] if (R6 and k in SLOT6) else k % 4
STJ = os.environ.get("STJ", "111111111")
DL = int(os.environ.get("DL", "1")); XI = int(os.environ.get("XI", "0"))
W1T = int(os.environ.get("W1T", "2")); W2T = int(os.environ.get("W2T", "1"))
RING = 0; PREG = 98304; STAT = 155648; RCT = 157696; BIAS = 158720
SX, SW1, SW2, SWS, SB1 = 4, 8, 12, 16, 20
sW, sH, sQI, sFJ, sMI = 24, 25, 26, 27, 28
sRP1, sRP1X, sRP8, sRP8X, sRP2, sRP2K0, sRP2X, sM0W, sM0X, sT = 29, 30, 31, 32, 33, 34, 35, 36, 37, 38
sT2, sXS, sXM, sT3, sONE, sMASK, sT4, sT5, sAL = 39, 40, 41, 42, 43, 44, 45, 46, 47
sRP1H, sRP8H, sM0H = 48, 49, 50
vLANE, vG, vI = 1, 2, 3
vA = {}
n = 4
for own in (0, 1):
    for hi in (0, 1):
        vA[('n', own, hi)] = n; n += 1
vA['8'] = 8
for t in (0, 1):
    for hi in (0, 1):
        vA[('p', t, hi)] = 9 + 2*t + hi
vA[('p', 0, 2)] = 4; vA[('p', 1, 2)] = 5
vOW1, vOW8, vOW2 = 13, 14, 15
vPW, vPR, vBI, vBI8, vOO, vXR, vR, vC, v8R, vP8 = 16, 17, 18, 19, 20, 21, 22, 23, 24, 25
vXT = 26
TMP = 34
WF = 50
NWF = 5
vROW, vXTA = 70, 71
SB = 72; SC = 88; SA = 96
QB = 112
def Q(slot): return QB + slot * 4
C0 = -2.0 * 0.7978845608028654 * math.log2(math.e)
C1 = C0 * 0.044715
ALPHA = (-C1) ** (1.0 / 3.0)
CA = -C0 / ALPHA

def gen():
    p = Prog()
    e = p.emit
    stamps = []
    def stamp(name):
        if DIAG and len(stamps) < 13:
            e(f"s_memtime s[{56+2*len(stamps)}:{57+2*len(stamps)}]")
            stamps.append(name)
    T = [TMP + i for i in range(16)]
    e("s_cmp_ge_u32 s2, 256")
    e("s_cbranch_scc1 K1_END")
    stamp("start")
    e("s_load_dwordx2 s[4:5], s[0:1], 0")
    e("s_load_dwordx4 s[48:51], s[0:1], 80")
    e("s_load_dwordx2 s[12:13], s[0:1], 96")
    e("s_load_dwordx2 s[16:17], s[0:1], 128")
    e("s_load_dwordx16 s[84:99], s[0:1], 8")
    e(f"v_lshrrev_b32 v{T[0]}, 6, v0")
    e(f"v_and_b32 v{vLANE}, 63, v0")
    e(f"v_readfirstlane_b32 s{sW}, v{T[0]}")
    e(f"v_lshrrev_b32 v{vG}, 4, v{vLANE}")
    e(f"v_and_b32 v{vI}, 15, v{vLANE}")
    nb = 1 + MAP
    e("s_and_b32 s3, s2, 7")
    e(f"s_lshr_b32 s{sMI}, s2, 3")
    e(f"s_and_b32 s{sFJ}, s{sMI}, {(1<<nb)-1}")
    e(f"s_lshr_b32 s{sT}, s3, {MAP}")
    e(f"s_lshl_b32 s{sT}, s{sT}, {nb}")
    e(f"s_add_u32 s{sFJ}, s{sFJ}, s{sT}")
    e(f"s_lshr_b32 s{sMI}, s{sMI}, {nb}")
    e(f"s_and_b32 s3, s3, {(1<<MAP)-1}")
    e(f"s_lshl_b32 s3, s3, {4-MAP}")
    e(f"s_add_u32 s{sMI}, s{sMI}, s3")
    e(f"s_lshr_b32 s{sH}, s{sW}, 2")
    e(f"s_and_b32 s{sQI}, s{sW}, 3")
    e(f"s_mov_b32 s{sONE}, 0x3f803f80")
    e(f"s_mov_b32 s{sMASK}, 0xffff0000")
    e(f"s_mov_b32 s{sAL}, {fhex(ALPHA)}")
    e(f"v_lshrrev_b32 v{T[2]}, 3, v{vLANE}")
    e(f"v_and_b32 v{T[3]}, 7, v{vLANE}")
    e(f"v_xor_b32 v{T[4]}, v{vG}, v{T[3]}")
    e(f"v_mul_u32_u24 v{T[5]}, 2304, v{T[2]}")
    e(f"v_lshl_add_u32 v{T[0]}, v{T[4]}, 4, v{T[5]}")
    e(f"v_xor_b32 v{T[1]}, 64, v{T[0]}")
    e(f"s_lshl_b32 s{sXS}, s{sMI}, 7")
    e(f"s_lshr_b32 s{sT}, s{sW}, 1"); e(f"s_lshl_b32 s{sT}, s{sT}, 5"); e(f"s_add_u32 s{sXS}, s{sXS}, s{sT}")
    e(f"s_and_b32 s{sT}, s{sW}, 1"); e(f"s_add_u32 s{sXS}, s{sXS}, s{sT}")
    e(f"s_mul_i32 s{sXS}, s{sXS}, 1152")
    e(f"s_lshl_b32 s{sXM}, s{sW}, 11")
    e(f"v_subrev_u32 v{T[9]}, 192, v0")
    e(f"v_min_u32 v{T[9]}, 287, v{T[9]}")
    e(f"v_lshlrev_b32 v{T[9]}, 7, v{T[9]}")
    e(f"s_and_b32 s{sT4}, s{sFJ}, 3"); e(f"s_mul_i32 s{sT4}, s{sT4}, {288*128}")
    e(f"s_mul_i32 s{sT5}, s{sMI}, {128*1152}"); e(f"s_add_u32 s{sT4}, s{sT4}, s{sT5}")
    e(f"s_getpc_b64 s[52:53]")
    e(f"s_lshl_b32 s{sT5}, s{sH}, 6")
    e(f"v_add_u32 v{T[10]}, s{sT5}, v{vLANE}")
    e("s_waitcnt lgkmcnt(0)")
    if PRO: stamp("karg")
    e("s_mov_b32 s6, 2359296"); e("s_mov_b32 s7, 0x00020000")
    e("s_mov_b32 s8, s48"); e("s_mov_b32 s9, s49"); e("s_mov_b32 s10, 5308416"); e("s_mov_b32 s11, 0x00020000")
    e("s_mov_b32 s14, 5308416"); e("s_mov_b32 s15, 0x00020000")
    e("s_mov_b32 s18, 268435456"); e("s_mov_b32 s19, 0x00020000")
    e("s_mov_b32 s20, s50"); e("s_mov_b32 s21, s51"); e("s_mov_b32 s22, 9216"); e("s_mov_b32 s23, 0x00020000")
    KACC = Q(6); KP = Q(6)+16; KFR = Q(18); HR = KFR+16; HC = KFR+17; KRAW = KFR+18; KT = Q(30)
    e(f"s_lshl_b32 s83, s{sMI}, 4"); e(f"s_add_u32 s83, s83, s{sFJ}"); e("s_mul_i32 s83, s83, 3"); e(f"s_add_u32 s83, s83, s{sW}")
    e(f"s_cmp_lt_u32 s{sMI}, 12"); e("s_cselect_b32 s82, 1, 0")
    e(f"s_sub_u32 s3, s{sW}, 4"); e("s_cmp_lt_u32 s3, 3"); e("s_cselect_b32 s55, s82, 0")
    e(f"s_cmp_lt_u32 s{sW}, 3"); e("s_cselect_b32 s82, s82, 0")
    e("s_cmp_eq_u32 s82, 0"); e("s_cbranch_scc1 K1_KG0")
    e("s_lshl_b32 s3, s83, 8")
    e(f"v_lshlrev_b32 v{KT}, 2, v{vLANE}"); e(f"v_add_u32 v{KT}, s3, v{KT}")
    for a in range(6):
        p.vmem(f"global_load_dword v{KRAW+a}, v{KT}, s[{84+2*a}:{85+2*a}]", tag='kp', maybe=True)
    e("s_lshr_b32 s3, s83, 1"); e("s_lshl_b32 s3, s3, 2")
    e("s_load_dword s100, s[96:97], s3"); e("s_load_dword s101, s[98:99], s3")
    p.label("K1_KG0")
    if KB: e("s_barrier")
    kgst = [0]
    def kgen_piece(pi):
        n = KSPL[pi]
        if n == 0: return
        L = p.newlabel("K1_KG")
        e("s_cmp_eq_u32 s82, 0"); e(f"s_cbranch_scc1 {L}")
        wr, wi, t0, t1, t2, t3, t4, t5, t6, t7, t8, t9 = range(KT, KT+12)
        DP = "row_mask:0xf bank_mask:0xf"
        RA1, RA2, CB1, CB2 = KFR, KFR+4, KFR+8, KFR+12
        if kgst[0] == 0:
            e(f"v_lshlrev_b32 v{t0}, 1, v{vI}"); e(f"v_add_u32 v{t0}, 240, v{t0}")
            e(f"v_cmp_gt_u32 vcc, 8, v{vI}")
            e(f"s_mov_b32 s84, {hex(512 | 128 << 16)}"); e(f"s_mov_b32 s85, {hex(1280 | 1536 << 16)}")
            e(f"v_lshlrev_b32 v{t1}, 4, v{vI}")
            e(f"v_cndmask_b32 v{t0}, v{t0}, v{vI}, vcc")
            e(f"v_lshrrev_b64 {vr(t2,2)}, v{t1}, s[84:85]")
            e(f"v_cmp_le_u32 vcc, 12, v{vI}")
            e(f"v_and_b32 v{t2}, 0xffff, v{t2}")
            e(f"v_lshlrev_b32 v{t1}, 3, v{vI}")
            e(f"v_cndmask_b32 v{t0}, v{t0}, v{t2}, vcc")
            e(f"v_cvt_f32_u32 v{HC}, v{t1}"); e(f"v_cvt_f32_u32 v{HR}, v{t0}")
            e("s_waitcnt lgkmcnt(0)")
            e("s_and_b32 s3, s83, 1"); e("s_lshl_b32 s3, s3, 4")
            e("s_lshr_b32 s100, s100, s3"); e("s_lshl_b32 s100, s100, 16")
            e("s_lshr_b32 s101, s101, s3"); e("s_lshl_b32 s101, s101, 16")
            e(f"v_mov_b32 v{t0}, {fhex(LOG2E)}"); e(f"v_mul_f32 v{t0}, s100, v{t0}"); e(f"v_exp_f32 v{t0}, v{t0}"); e("s_nop 0")
            e(f"v_cvt_pk_bf16_f32 v{t0}, v{t0}, v{t0}"); e(f"v_and_b32 v{t0}, s{sMASK}, v{t0}")
            e(f"v_mul_f32 v{t1}, {fhex(LOG2E)}, v{t0}"); e(f"v_mul_f32 v{t2}, {fhex(1/(2*math.pi))}, v{t0}")
            stamp("kpre")
            e("s_waitcnt vmcnt(0)")
            stamp("kp")
            for hs in range(2):
                for a in range(6):
                    if hs: e(f"v_and_b32 v{t3+a}, s{sMASK}, v{KRAW+a}")
                    else: e(f"v_lshlrev_b32 v{t3+a}, 16, v{KRAW+a}")
                A2, B2, WR, WI = [KP + 4*hs + i for i in range(4)]
                e(f"v_mul_f32 v{A2}, v{t1}, v{t3}"); e(f"v_mul_f32 v{B2}, v{t2}, v{t4}")
                e(f"v_mul_f32 v{t5}, v{t0}, v{t5}"); e(f"v_mul_f32 v{t6}, v{t0}, v{t6}")
                e(f"v_rndne_f32 v{t9}, v{B2}")
                e(f"v_mul_f32 v{WR}, v{t7}, v{t5}"); e(f"v_mul_f32 v{WI}, v{t7}, v{t6}")
                e(f"v_sub_f32 v{B2}, v{B2}, v{t9}")
                e(f"v_fma_f32 v{WR}, -v{t8}, v{t6}, v{WR}"); e(f"v_fmac_f32 v{WI}, v{t8}, v{t5}")
            e("s_nop 1")
        for ks in range(kgst[0], kgst[0] + n):
            A2, B2, WR, WI = [KP + 4*(ks >> 2) + i for i in range(4)]
            s_ = ks & 3
            for nn in range(4):
                BC = f"row_newbcast:{4*s_+nn} {DP}"
                e(f"v_mul_f32_dpp v{t1}, v{B2}, v{HR} {BC}"); e(f"v_mul_f32_dpp v{t0}, v{A2}, v{HR} {BC}")
                e(f"v_mul_f32_dpp v{t4}, v{B2}, v{HC} {BC}"); e(f"v_mul_f32_dpp v{t3}, v{A2}, v{HC} {BC}")
                e(f"v_fract_f32 v{t1}, v{t1}"); e(f"v_exp_f32 v{t0}, v{t0}")
                e(f"v_cos_f32 v{t2}, v{t1}"); e(f"v_sin_f32 v{t1}, v{t1}")
                e(f"v_exp_f32 v{t3}, v{t3}")
                e(f"v_mul_f32 v{t2}, v{t0}, v{t2}")
                e(f"v_cos_f32 v{t5}, v{t4}")
                e(f"v_mul_f32 v{t1}, v{t0}, v{t1}")
                e(f"v_sin_f32 v{t4}, v{t4}")
                e(f"v_mul_f32_dpp v{wr}, v{WR}, v{t3} {BC}"); e(f"v_mul_f32_dpp v{wi}, v{WI}, v{t3} {BC}")
                e(f"v_cvt_pk_bf16_f32 v{RA1+nn}, v{t2}, v{t1}")
                e(f"v_mul_f32_dpp v{t6}, v{t2}, v{t2} row_newbcast:12 {DP}")
                e(f"v_mul_f32_dpp v{t7}, v{t1}, v{t2} row_newbcast:12 {DP}")
                e(f"v_mul_f32 v{t8}, v{wr}, v{t5}"); e(f"v_mul_f32 v{t9}, v{wr}, v{t4}")
                e(f"v_fmac_f32_dpp v{t6}, -v{t1}, v{t1} row_newbcast:12 {DP}")
                e(f"v_fmac_f32_dpp v{t7}, v{t2}, v{t1} row_newbcast:12 {DP}")
                e(f"v_fma_f32 v{t8}, -v{wi}, v{t4}, v{t8}"); e(f"v_fmac_f32 v{t9}, v{wi}, v{t5}")
                e(f"v_cvt_pk_bf16_f32 v{RA2+nn}, v{t6}, v{t7}")
                e(f"v_mul_f32_dpp v{t0}, v{t2}, v{t8} row_newbcast:13 {DP}")
                e(f"v_mul_f32_dpp v{t3}, v{t1}, v{t8} row_newbcast:13 {DP}")
                e(f"v_cvt_pk_bf16_f32 v{CB1+nn}, v{t8}, -v{t9}")
                e(f"v_fmac_f32_dpp v{t0}, -v{t1}, v{t9} row_newbcast:13 {DP}")
                e(f"v_fmac_f32_dpp v{t3}, v{t2}, v{t9} row_newbcast:13 {DP}")
                e(f"v_cvt_pk_bf16_f32 v{CB2+nn}, v{t0}, -v{t3}")
            e("s_nop 1")
            for a in range(2):
                for b in range(2):
                    d = KACC + 4*(2*a+b)
                    c = "0" if ks == 0 else vr(d, 4)
                    e(f"v_mfma_f32_16x16x32_bf16 {vr(d,4)}, {vr((RA1,RA2)[a],4)}, {vr((CB1,CB2)[b],4)}, {c}")
        kgst[0] += n
        if kgst[0] == 8:
            e(f"v_cmp_eq_u32 vcc, 0, v{vLANE}")
            e(f"v_mov_b32 v{t8}, s101"); e(f"v_lshlrev_b32 v{t9}, 4, v{vLANE}")
            e(f"v_cndmask_b32 v{t8}, 0, v{t8}, vcc")
            e("s_lshl_b32 s3, s83, 11"); e(f"s_add_u32 s3, s3, {KT_OFF}")
            e("s_nop 7"); e("s_nop 3")
            e(f"v_add_f32 v{KACC}, v{KACC}, v{t8}")
            for q in range(8): e(f"v_cvt_pk_bf16_f32 v{KT+q}, v{KACC+2*q}, v{KACC+2*q+1}")
            for a in range(2):
                p.vmem(f"buffer_store_dwordx4 {vr(KT+4*a,4)}, v{t9}, s[{SWS}:{SWS+3}], s3 offen offset:{1024*a} {STM}", maybe=True)
        p.label(L)
    Lc = p.newlabel("K1_PF"); Ld = p.newlabel("K1_PF")
    e(f"s_cmp_lt_u32 s{sW}, 3"); e(f"s_cbranch_scc1 {Ld}")
    e(f"s_cmp_eq_u32 s{sQI}, 3"); e(f"s_cbranch_scc0 {Lc}")
    for q in range(3):
        e(f"v_add_u32 v{T[11]}, {128*q}, v{T[10]}")
        e(f"v_min_u32 v{T[11]}, K1_CODE_LINES, v{T[11]}")
        e(f"v_lshlrev_b32 v{T[12+q]}, 7, v{T[11]}")
        e(f"global_load_dword v{T[8]}, v{T[12+q]}, s[52:53]")
    p.label(Lc)
    p.vmem(f"buffer_load_dword v{T[8]}, v{T[9]}, s[{SX}:{SX+3}], s{sT4} offen", tag='pf')
    if TW:
        e(f"s_cmp_lg_u32 s{sW}, 7"); e(f"s_cbranch_scc1 {Ld}")
        e(f"v_min_u32 v{T[11]}, 3, v{vLANE}")
        e(f"v_mul_u32_u24 v{T[12]}, {191*9216}, v{T[11]}")
        e(f"s_mul_i32 s{sT3}, s{sFJ}, 576")
        e(f"buffer_load_dword v{T[8]}, v{T[12]}, s[{SW1}:{SW1+3}], s{sT3} offen")
        e(f"v_mul_u32_u24 v{T[13]}, 110548, v{T[11]}")
        e(f"s_mul_i32 s{sT3}, s{sFJ}, 331776")
        e(f"buffer_load_dword v{T[8]}, v{T[13]}, s[{SW2}:{SW2+3}], s{sT3} offen")
        e(f"v_mul_u32_u24 v{T[14]}, 786400, v{T[11]}")
        e(f"s_mul_i32 s{sT3}, s{sFJ}, 2359296")
        e(f"buffer_load_dword v{T[8]}, v{T[14]}, s[{SWS}:{SWS+3}], s{sT3} offen")
        e(f"v_mul_u32_u24 v{T[15]}, 1572800, v{T[11]}")
        e(f"s_mov_b32 s{sT3}, {X4_OFF}")
        e(f"buffer_load_dword v{T[8]}, v{T[15]}, s[{SWS}:{SWS+3}], s{sT3} offen")
    p.label(Ld)
    def xdma1(c, extra):
        for nn in range(2):
            e(f"s_add_u32 m0, s{sXM}, {16384*c + 1024*nn + (-8192 if extra else 0)}")
            e(f"s_add_u32 s{sT}, s{sXS}, {128*c + nn*16*1152 + (-64*1152 if extra else 0)}")
            p.vmem(f"buffer_load_dwordx4 v{T[nn]}, s[{SX}:{SX+3}], s{sT} offen lds", tag=('x', c), maybe=extra)
    def xdma3(c0):
        L1 = p.newlabel("K1_XD"); L2 = p.newlabel("K1_XD")
        e("s_cmp_eq_u32 s55, 0"); e(f"s_cbranch_scc1 {L1}")
        for c in range(c0, c0+3): xdma1(c, True)
        p.label(L1)
        e("s_cmp_eq_u32 s82, 1"); e(f"s_cbranch_scc1 {L2}")
        for c in range(c0, c0+3): xdma1(c, False)
        p.label(L2)
    e("s_setprio 3")
    xdma3(0)
    e("s_setprio 0")
    e(f"s_and_b32 s{sT2}, s{sFJ}, 1")
    e(f"s_mul_i32 s{sT3}, s{sFJ}, 576")
    e(f"s_add_u32 s{sT5}, s{sQI}, 8")
    e(f"s_mul_i32 s{sRP1}, s{sW}, {8*9216}"); e(f"s_mul_i32 s{sRP1X}, s{sT5}, {8*9216}")
    e(f"s_lshl_b32 s{sT4}, s{sT2}, 6"); e(f"s_add_u32 s{sT4}, s{sT4}, s{sT3}")
    e(f"s_lshl_b32 s{sT}, s{sT2}, 9"); e(f"s_sub_u32 s{sT}, 512, s{sT}"); e(f"s_add_u32 s{sT}, s{sT}, s{sT3}")
    e(f"s_add_u32 s{sRP8}, s{sRP1}, s{sT}"); e(f"s_add_u32 s{sRP8X}, s{sRP1X}, s{sT}")
    e(f"s_add_u32 s{sRP1}, s{sRP1}, s{sT4}"); e(f"s_add_u32 s{sRP1X}, s{sRP1X}, s{sT4}")
    e(f"s_mul_i32 s{sT}, s{sH}, {96*9216}"); e(f"s_add_u32 s{sRP1H}, s{sRP1X}, s{sT}")
    e(f"s_mul_i32 s{sT}, s{sH}, {192*9216}"); e(f"s_add_u32 s{sRP8H}, s{sRP8X}, s{sT}")
    def rowperm(dst, nreg, tmp):
        e(f"s_lshr_b32 s{dst}, s{nreg}, 2"); e(f"s_lshl_b32 s{dst}, s{dst}, 5")
        e(f"s_and_b32 s{tmp}, s{nreg}, 1"); e(f"s_lshl_b32 s{tmp}, s{tmp}, 4"); e(f"s_add_u32 s{dst}, s{dst}, s{tmp}")
        e(f"s_and_b32 s{tmp}, s{nreg}, 2"); e(f"s_lshl_b32 s{tmp}, s{tmp}, 2"); e(f"s_add_u32 s{dst}, s{dst}, s{tmp}")
    rowperm(sRP2, sW, sT4); rowperm(sRP2X, sT5, sT4)
    e(f"s_mul_i32 s{sT}, s{sFJ}, 288"); e(f"s_lshl_b32 s{sT4}, s{sT2}, 5"); e(f"s_add_u32 s{sT}, s{sT}, s{sT4}"); e(f"s_sub_u32 s{sT}, s{sT}, 32")
    e(f"s_add_u32 s{sRP2}, s{sRP2}, s{sT}"); e(f"s_add_u32 s{sRP2X}, s{sRP2X}, s{sT}")
    e(f"s_or_b32 s{sT4}, s{sT2}, s{sH}"); e(f"s_cmp_eq_u32 s{sT4}, 0"); e(f"s_cselect_b32 s{sT4}, 288, 0")
    e(f"s_add_u32 s{sRP2K0}, s{sRP2}, s{sT4}")
    e(f"s_mul_i32 s{sRP2}, s{sRP2}, 1152"); e(f"s_mul_i32 s{sRP2X}, s{sRP2X}, 1152"); e(f"s_mul_i32 s{sRP2K0}, s{sRP2K0}, 1152")
    e(f"s_lshl_b32 s{sM0W}, s{sW}, 10"); e(f"s_lshl_b32 s{sM0X}, s{sT5}, 10")
    e(f"s_mul_i32 s{sT}, s{sH}, 12288"); e(f"s_add_u32 s{sM0H}, s{sM0X}, s{sT}")
    e("s_setprio 2")
    xdma3(3)
    e("s_setprio 0")
    e(f"v_and_b32 v{T[4]}, 1, v{vG}")
    e(f"v_lshlrev_b32 v{T[4]}, 2, v{T[4]}")
    e(f"v_xor_b32 v{T[4]}, v{T[4]}, v{T[3]}")
    e(f"v_mul_u32_u24 v{T[10]}, 9216, v{T[2]}")
    e(f"v_lshl_add_u32 v{vOW1}, v{T[4]}, 4, v{T[10]}")
    e(f"v_lshrrev_b32 v{T[11]}, 2, v{T[4]}")
    e(f"v_mul_u32_u24 v{T[11]}, {96*9216}, v{T[11]}")
    e(f"v_and_b32 v{T[4]}, 3, v{T[4]}")
    e(f"v_lshlrev_b32 v{T[4]}, 4, v{T[4]}")
    e(f"v_add3_u32 v{vOW8}, v{T[4]}, v{T[10]}, v{T[11]}")
    e(f"v_lshlrev_b32 v{T[4]}, 1, v{vG}")
    e(f"v_xor_b32 v{T[4]}, v{T[4]}, v{T[3]}")
    e(f"v_mul_u32_u24 v{T[10]}, 1152, v{T[2]}")
    e(f"v_lshl_add_u32 v{vOW2}, v{T[4]}, 4, v{T[10]}")
    e(f"v_lshrrev_b32 v{T[4]}, 2, v{vI}")
    e(f"v_and_b32 v{T[10]}, 3, v{vLANE}")
    e(f"v_lshlrev_b32 v{T[10]}, 3, v{T[10]}")
    e(f"v_lshrrev_b32 v{T[5]}, 1, v{vG}")
    e(f"v_lshl_add_u32 v{T[9]}, v{T[5]}, 3, v{T[4]}")
    e(f"v_lshl_add_u32 v{T[9]}, v{T[9]}, 7, v{T[10]}")
    e(f"v_lshrrev_b32 v{T[11]}, 1, v{T[4]}")
    e(f"v_xor_b32 v{T[11]}, s{sH}, v{T[11]}")
    e(f"v_lshl_add_u32 v{T[9]}, v{T[11]}, 6, v{T[9]}")
    e(f"v_and_b32 v{T[11]}, 1, v{vG}")
    e(f"v_lshl_add_u32 v{vA['8']}, v{T[11]}, 5, v{T[9]}")
    e(f"s_mul_i32 s{sT4}, s{sH}, 12288"); e(f"s_sub_u32 s{sT5}, 12288, s{sT4}")
    e(f"v_add_u32 v{vA[('n',0,0)]}, s{sT4}, v{vA['8']}"); e(f"v_add_u32 v{vA[('n',1,0)]}, s{sT5}, v{vA['8']}")
    e(f"v_add_u32 v{vA[('n',0,1)]}, 49152, v{vA[('n',0,0)]}"); e(f"v_add_u32 v{vA[('n',1,1)]}, 49152, v{vA[('n',1,0)]}")
    e(f"v_lshl_add_u32 v{T[9]}, v{vG}, 2, v{T[4]}")
    e(f"v_lshl_add_u32 v{T[10]}, v{T[9]}, 7, v{T[10]}")
    e(f"v_bfe_u32 v{T[9]}, v{T[9]}, 1, 2")
    e(f"s_lshl_b32 s{sT}, s{sH}, 1")
    e(f"v_xor_b32 v{T[9]}, s{sT}, v{T[9]}")
    e(f"v_lshl_add_u32 v{vA[('p',0,0)]}, v{T[9]}, 5, v{T[10]}")
    e(f"v_xor_b32 v{vA[('p',1,0)]}, 32, v{vA[('p',0,0)]}")
    for t in (0, 1): e(f"v_add_u32 v{vA[('p',t,1)]}, 49152, v{vA[('p',t,0)]}")
    e(f"s_lshl_b32 s{sT}, s{sQI}, 11"); e(f"s_add_u32 s{sT}, s{sT}, {PREG}")
    e(f"v_lshlrev_b32 v{T[11]}, 4, v{vLANE}")
    e(f"v_add_u32 v{T[11]}, s{sT}, v{T[11]}")
    e(f"s_lshl_b32 s{sT4}, s{sH}, 13"); e(f"v_add_u32 v{vPW}, s{sT4}, v{T[11]}")
    e(f"v_xor_b32 v{vXR}, 8192, v{vPW}")
    e(f"s_lshl_b32 s{sT4}, s{sH}, 10"); e(f"v_add_u32 v{vP8}, s{sT4}, v{T[11]}")
    e(f"s_lshl_b32 s{sT4}, s{sH}, 14"); e(f"v_add_u32 v{v8R}, s{sT4}, v{T[11]}")
    e(f"v_lshlrev_b32 v{T[9]}, 9, v{vG}")
    e(f"v_lshl_add_u32 v{T[9]}, v{vI}, 4, v{T[9]}")
    e(f"v_add_u32 v{vPR}, s{sT}, v{T[9]}")
    e(f"v_lshlrev_b32 v{T[9]}, 4, v{T[5]}")
    e(f"v_add_u32 v{vBI8}, {BIAS}, v{T[9]}")
    e(f"s_lshl_b32 s{sT4}, s{sH}, 7"); e(f"v_add_u32 v{vBI}, s{sT4}, v{vBI8}")
    e(f"s_mul_i32 s{sT}, s{sFJ}, 144"); e(f"s_lshl_b32 s{sT4}, s{sH}, 3"); e(f"s_add_u32 s{sT}, s{sT}, s{sT4}")
    e(f"s_lshl_b32 s{sT}, s{sT}, 14")
    e(f"s_lshl_b32 s{sT4}, s{sMI}, 10"); e(f"s_add_u32 s{sT}, s{sT}, s{sT4}")
    e(f"s_lshl_b32 s{sT4}, s{sQI}, 8"); e(f"s_add_u32 s{sT}, s{sT}, s{sT4}")
    e(f"v_lshlrev_b32 v{vOO}, 14, v{vG}")
    e(f"v_lshl_add_u32 v{vOO}, v{vI}, 4, v{vOO}")
    e(f"v_add_u32 v{vOO}, s{sT}, v{vOO}")
    e("s_setprio 1")
    xdma3(6)
    e("s_setprio 0")
    if PRO: stamp("xissued")
    kgen_piece(0)
    stamp("kpost")
    e(f"v_cmp_gt_u32 vcc, 32, v0")
    e(f"v_mov_b32 v{T[6]}, -32")
    e(f"v_mov_b32 v{T[7]}, 256")
    e(f"v_cndmask_b32 v{T[6]}, v{T[6]}, v{T[7]}, vcc")
    e(f"s_sub_u32 s{sT4}, s{sT2}, 1")
    e(f"v_and_b32 v{T[6]}, s{sT4}, v{T[6]}")
    e(f"v_add_u32 v{T[6]}, v{T[6]}, v0")
    e(f"v_min_u32 v{T[6]}, 287, v{T[6]}")
    e(f"v_lshlrev_b32 v{T[6]}, 1, v{T[6]}")
    p.vmem(f"buffer_load_ushort v{T[7]}, v{T[6]}, s[{SB1}:{SB1+3}], s{sT3} offen", tag='bias')
    if W1T >= 5:
        e(f"v_subrev_u32 v{T[9]}, 192, v0")
        e(f"v_min_u32 v{T[9]}, 359, v{T[9]}")
    else: e(f"v_min_u32 v{T[9]}, 359, v0")
    e(f"v_mul_u32_u24 v{T[10]}, 205, v{T[9]}")
    e(f"v_lshrrev_b32 v{T[10]}, 10, v{T[10]}")
    e(f"v_mul_u32_u24 v{T[11]}, 5, v{T[10]}")
    e(f"v_sub_u32 v{T[9]}, v{T[9]}, v{T[11]}")
    e(f"v_mul_u32_u24 v{T[10]}, 9216, v{T[10]}")
    e(f"v_lshl_add_u32 v{T[9]}, v{T[9]}, 7, v{T[10]}")
    e(f"s_and_b32 s{sT5}, s{sMI}, 7")
    e(f"s_mul_i32 s{sT}, s{sT5}, {72*9216}")
    e(f"s_and_b32 s{sT4}, s{sT3}, 0xffffff80")
    e(f"s_add_u32 s{sT}, s{sT}, s{sT4}")
    if W1T == 1: p.vmem(f"buffer_load_dword v255, v{T[9]}, s[{SW1}:{SW1+3}], s{sT} offen", tag='pf')
    if W1T >= 5:
        e(f"s_cmp_lt_u32 s{sW}, 3"); e("s_cbranch_scc1 K1_W1T")
        p.vmem(f"buffer_load_dword v255, v{T[9]}, s[{SW1}:{SW1+3}], s{sT} offen", maybe=True)
        p.label("K1_W1T")
    def w2_touch(wv):
        L = p.newlabel("K1_T")
        e(f"s_cmp_eq_u32 s{sW}, {wv}")
        e(f"s_cbranch_scc0 {L}")
        e(f"v_min_u32 v{vXTA}, 323, v0")
        e(f"v_lshlrev_b32 v{vXTA}, 7, v{vXTA}")
        e(f"s_and_b32 s{sT5}, s{sMI}, 7")
        e(f"s_mul_i32 s{sT}, s{sFJ}, {288*1152}")
        e(f"s_mul_i32 s{sT4}, s{sT5}, {324*128}")
        e(f"s_add_u32 s{sT}, s{sT}, s{sT4}")
        p.vmem(f"buffer_load_dword v{vROW}, v{vXTA}, s[{SW2}:{SW2+3}], s{sT} offen", maybe=True)
        p.label(L)
    def w2_touch5(wv):
        L = p.newlabel("K1_T")
        e(f"s_cmp_eq_u32 s{sW}, {wv}")
        e(f"s_cbranch_scc0 {L}")
        e(f"v_min_u32 v{vXTA}, 179, v0")
        e(f"v_mul_u32_u24 v{vC}, 205, v{vXTA}")
        e(f"v_lshrrev_b32 v{vC}, 10, v{vC}")
        e(f"v_lshlrev_b32 v{vXTA}, 7, v{vXTA}")
        e(f"v_lshl_add_u32 v{vXTA}, v{vC}, 9, v{vXTA}")
        e(f"s_and_b32 s{sT5}, s{sMI}, 7")
        e(f"s_mul_i32 s{sT}, s{sFJ}, {288*1152}")
        e(f"s_mul_i32 s{sT4}, s{sT5}, {324*128}")
        e(f"s_add_u32 s{sT}, s{sT}, s{sT4}")
        p.vmem(f"buffer_load_dword v{vROW}, v{vXTA}, s[{SW2}:{SW2+3}], s{sT} offen", maybe=True)
        p.label(L)
    def w1_touch(wv):
        L = p.newlabel("K1_T")
        e(f"s_cmp_eq_u32 s{sW}, {wv}")
        e(f"s_cbranch_scc0 {L}")
        e(f"v_min_u32 v{vXTA}, 359, v0")
        e(f"v_mul_u32_u24 v{vROW}, 205, v{vXTA}")
        e(f"v_lshrrev_b32 v{vROW}, 10, v{vROW}")
        e(f"v_lshlrev_b32 v{vXTA}, 7, v{vXTA}")
        e(f"v_mul_u32_u24 v{vROW}, {9216-640}, v{vROW}")
        e(f"v_add_u32 v{vXTA}, v{vXTA}, v{vROW}")
        e(f"s_and_b32 s{sT5}, s{sMI}, 7")
        e(f"s_mul_i32 s{sT}, s{sT5}, {72*9216}")
        e(f"s_and_b32 s{sT4}, s{sT3}, 0xffffff80")
        e(f"s_add_u32 s{sT}, s{sT}, s{sT4}")
        p.vmem(f"buffer_load_dword v{vROW}, v{vXTA}, s[{SW1}:{SW1+3}], s{sT} offen", maybe=True)
        p.label(L)
    def touch(wv, which, tau, start, count):
        L = p.newlabel("K1_T")
        e(f"s_cmp_eq_u32 s{sW}, {wv}")
        e(f"s_cbranch_scc0 {L}")
        e(f"v_min_u32 v{vXTA}, {count-1}, v{vLANE}")
        e(f"s_and_b32 s{sT5}, s{sMI}, 7")
        if which == 1:
            e(f"v_mul_u32_u24 v{vXTA}, 9216, v{vXTA}")
            e(f"s_mul_i32 s{sT}, s{sT5}, {72*9216}")
            e(f"s_lshl_b32 s{sT4}, s{sT2}, 6"); e(f"s_add_u32 s{sT4}, s{sT4}, s{sT3}")
            e(f"s_add_u32 s{sT}, s{sT}, s{sT4}"); e(f"s_add_u32 s{sT}, s{sT}, {128*tau + start*9216}")
        else:
            e(f"v_lshlrev_b32 v{vXTA}, 7, v{vXTA}")
            e(f"s_mul_i32 s{sT}, s{sFJ}, {288*1152}")
            e(f"s_mul_i32 s{sT4}, s{sT5}, {324*128}")
            e(f"s_add_u32 s{sT}, s{sT}, s{sT4}"); e(f"s_add_u32 s{sT}, s{sT}, {128*start}")
        srd = SW1 if which == 1 else SW2
        p.vmem(f"buffer_load_dword v{vROW}, v{vXTA}, s[{srd}:{srd+3}], s{sT} offen", maybe=True)
        p.label(L)
    def touches(seg):
        o = []
        if W1T == 4 and T1S <= seg < T1S + 12:
            q = seg - T1S
            o.append(lambda: touch(seg % 8, 1, 1 + q // 4, 18 * (q % 4), 18))
        if W2T == 4 and T2S <= seg < T2S + T2N:
            c = 324 // T2N
            o.append(lambda: touch((seg + 4) % 8, 2, 0, c * (seg - T2S), c))
        return o
    e(f"v_bfe_u32 v{T[12]}, v{vLANE}, 1, 3")
    e(f"v_xor_b32 v{T[12]}, s{sW}, v{T[12]}")
    e(f"v_lshlrev_b32 v{T[12]}, 4, v{T[12]}")
    e(f"v_lshl_add_u32 v{T[12]}, v{vI}, 7, v{T[12]}")
    e(f"v_lshl_add_u32 v{T[12]}, v{vG}, 12, v{T[12]}")
    e(f"s_sub_u32 s51, s{sFJ}, 7")
    e(f"s_lshl_b32 s{sT}, s51, 14")
    e(f"v_add_u32 v{T[12]}, s{sT}, v{T[12]}")
    e(f"v_add_u32 v{T[13]}, 8, v{T[12]}")
    e(f"v_lshlrev_b32 v{T[14]}, 4, v{vLANE}")
    e(f"s_lshl_b32 s52, s51, 18"); e(f"s_lshl_b32 s{sT}, s{sW}, 15"); e(f"s_add_u32 s52, s52, s{sT}")
    e(f"s_lshl_b32 s{sT}, s{sMI}, 10"); e(f"s_add_u32 s52, s52, s{sT}"); e(f"s_add_u32 s52, s52, {X4_OFF}")
    e(f"s_add_u32 s53, s52, 16384")
    def w2_prefetch():
        e(f"v_min_u32 v{T[9]}, 323, v0")
        e(f"v_lshlrev_b32 v{T[9]}, 7, v{T[9]}")
        e(f"s_and_b32 s{sT5}, s{sMI}, 7")
        e(f"s_mul_i32 s{sT}, s{sFJ}, {288*1152}")
        e(f"s_mul_i32 s{sT4}, s{sT5}, {324*128}")
        e(f"s_add_u32 s{sT}, s{sT}, s{sT4}")
        p.vmem(f"buffer_load_dword v{T[8]}, v{T[9]}, s[{SW2}:{SW2+3}], s{sT} offen", tag='pf')
    XA = lambda j: SA + j
    e(f"v_and_b32 v{T[10]}, 31, v{vLANE}")
    e(f"v_bfe_u32 v{T[9]}, v{vLANE}, 1, 3")
    e(f"v_xor_b32 v{T[9]}, v{T[9]}, v{T[5]}")
    e(f"s_lshl_b32 s{sT}, s{sQI}, 5")
    e(f"v_add_u32 v{vROW}, s{sT}, v{T[10]}")
    e(f"v_lshlrev_b32 v{T[10]}, 7, v{vROW}")
    for j in range(6):
        e(f"s_mul_i32 s{sT}, s{sH}, 6"); e(f"s_add_u32 s{sT}, s{sT}, {j}")
        e(f"s_and_b32 s{sT4}, s{sT}, 3"); e(f"s_lshl_b32 s{sT4}, s{sT4}, 1")
        e(f"s_lshr_b32 s{sT}, s{sT}, 2"); e(f"s_lshl_b32 s{sT}, s{sT}, 14")
        e(f"v_xor_b32 v{T[11]}, s{sT4}, v{T[9]}")
        e(f"v_lshl_add_u32 v{T[11]}, v{T[11]}, 4, v{T[10]}")
        e(f"v_add_u32 v{XA(j)}, s{sT}, v{T[11]}")
    e(f"v_lshrrev_b32 v{T[9]}, 1, v{T[4]}")
    e(f"v_lshl_add_u32 v{T[9]}, v{vG}, 2, v{T[9]}")
    e(f"v_and_b32 v{T[10]}, 1, v{T[4]}")
    e(f"v_lshl_add_u32 v{T[9]}, v{T[10]}, 4, v{T[9]}")
    e(f"v_bfe_u32 v{T[10]}, v{vLANE}, 1, 1")
    e(f"s_and_b32 s{sT}, s{sW}, 6")
    e(f"v_or_b32 v{T[10]}, s{sT}, v{T[10]}")
    e(f"v_lshlrev_b32 v{T[11]}, 1, v{vG}")
    e(f"v_xor_b32 v{T[10]}, v{T[10]}, v{T[11]}")
    e(f"v_lshlrev_b32 v{T[9]}, 7, v{T[9]}")
    e(f"v_and_b32 v{T[11]}, 1, v{vLANE}")
    e(f"v_lshl_add_u32 v{T[9]}, v{T[11]}, 3, v{T[9]}")
    e(f"s_and_b32 s{sT}, s{sW}, 1"); e(f"s_lshl_b32 s{sT}, s{sT}, 13")
    e(f"s_lshl_b32 s{sT4}, s{sFJ}, 14"); e(f"s_add_u32 s{sT}, s{sT}, s{sT4}")
    e(f"v_add_u32 v{T[9]}, s{sT}, v{T[9]}")
    e(f"v_lshl_add_u32 v{vXTA}, v{T[10]}, 4, v{T[9]}")
    vXTB = SA + 6
    e(f"v_xor_b32 v{vXTB}, 16, v{vXTA}")
    ACC = [SA + 8, SA + 9, SA + 10]
    for a in ACC: e(f"v_mov_b32 v{a}, 0")
    for i in range(4): e(f"v_mov_b32 v{WF+i}, s{sONE}")

    D = [(('B', 0, 0), ('B', 0, 1)), (('8', 0), ('8', 1)), (('B', 0, 2), ('B', 0, 3)), (('B', 0, 4), ('B', 0, 5)), (('8', 2), None)]
    for tau in (1, 2, 3):
        for k in range(3): D.append((('B', tau, 2*k), ('B', tau, 2*k+1)))
    p2 = [('E', 0, 0), ('E', 0, 1), ('E', 1, 0), ('E', 1, 1), ('E', 0, 2), ('E', 1, 2)]
    for j in range(2, 9): p2 += [('E', j, k) for k in range(3)]
    for i in range(0, len(p2), 2): D.append((p2[i], p2[i+1] if i + 1 < len(p2) else None))
    uloc = {}
    for k, (a, b) in enumerate(D):
        uloc[a] = (k, 0)
        if b: uloc[b] = (k, 1)
    def uparams(u):
        if u[0] == 'B': return SW1, vOW1, 96 * u[2] * 9216 + 128 * u[1], sRP1, sRP1X, sRP1H
        if u[0] == '8': return SW1, vOW8, 192 * u[1] * 9216, sRP8, sRP8X, sRP8H
        return SW2, vOW2, 96 * u[2] * 1152 + 128 * u[1], (sRP2K0 if u[2] == 0 else sRP2), sRP2X, None
    def dma_double(k):
        ops = []
        lds0 = slot_of(k) * 24576
        def one(m0r, m0i, sr_, base, srd, vo, maybe=False):
            e(f"s_add_u32 m0, s{m0r}, {m0i}")
            e(f"s_add_u32 s{sT}, s{sr_}, {base}")
            p.vmem(f"buffer_load_dwordx4 v{vo}, s[{srd}:{srd+3}], s{sT} offen lds", tag=('u', k), maybe=maybe)
        for half, u in enumerate(D[k]):
            if not u: continue
            srd, vo, base, r, rx, rh = uparams(u)
            ops.append(lambda srd=srd, vo=vo, base=base, r=r, half=half: one(sM0W, lds0 + half*12288, r, base, srd, vo))
        a, b = D[k]
        if b and a[0] != 'E':
            srd, vo, base, r, rx, rh = uparams(a)
            ops.append(lambda: one(sM0H, lds0, rh, base, srd, vo))
        else:
            for half, u in enumerate(D[k]):
                if not u: continue
                srd, vo, base, r, rx, rh = uparams(u)
                def extra(srd=srd, vo=vo, base=base, rx=rx, half=half):
                    L = p.newlabel("K1_X")
                    e(f"s_cmp_eq_u32 s{sH}, {half}")
                    e(f"s_cbranch_scc0 {L}")
                    one(sM0X, lds0 + half*12288, rx, base, srd, vo, maybe=True)
                    p.label(L)
                ops.append(extra)
        return ops

    if PRO: stamp("setup")
    for R in range(3):
        if R: kgen_piece(R)
        p.wait(vm=[('x', 3*R+2)], lg_all=True)
        e("s_barrier")
        stamp(f"xround{R}")
        for j in range(6):
            p.ds(f"ds_read_b128 {vr(Q(12*R+j), 4)}, v{XA(j)}", tag=('raw', R, j))
        if R == 1 or (R == 2 and not DL):
            for k in (2*(R-1), 2*(R-1)+1):
                for op in dma_double(k): op()
        if R < 2:
            for j in range(6): e(f"v_add_u32 v{XA(j)}, 49152, v{XA(j)}")
        L = p.newlabel("K1_XT")
        e(f"s_sub_u32 s{sT}, s{sFJ}, {3*R}")
        e(f"s_cmp_lt_u32 s{sT}, 3")
        e(f"s_cbranch_scc0 {L}")
        for job in range(2):
            e(f"ds_read_b64_tr_b16 {vr(vXT+4*job, 2)}, v{vXTA} offset:{4096*job}")
            e(f"ds_read_b64_tr_b16 {vr(vXT+4*job+2, 2)}, v{vXTB} offset:{4096*job+256}")
        e("s_waitcnt lgkmcnt(0)")
        p.label(L)
        L = p.newlabel("K1_X4")
        e(f"s_sub_u32 s{sT}, s51, {3*R}")
        e(f"s_cmp_lt_u32 s{sT}, 3")
        e(f"s_cbranch_scc0 {L}")
        e(f"ds_read2st64_b64 {vr(SC,4)}, v{T[12]} offset0:0 offset1:4")
        e(f"ds_read2st64_b64 {vr(SC+4,4)}, v{T[13]} offset0:0 offset1:4")
        e("s_waitcnt lgkmcnt(0)")
        p.vmem(f"buffer_store_dwordx4 {vr(SC,4)}, v{T[14]}, s[{SWS}:{SWS+3}], s52 offen {STM}", maybe=True)
        p.vmem(f"buffer_store_dwordx4 {vr(SC+4,4)}, v{T[14]}, s[{SWS}:{SWS+3}], s53 offen {STM}", maybe=True)
        p.label(L)
        for j in range(6):
            p.wait(lg=[('raw', R, j)])
            first = (R == 0 and j == 0)
            e(f"v_mfma_f32_32x32x16_bf16 {vr(SB,16)}, {vr(WF,4)}, {vr(Q(12*R+j),4)}, " + ("0" if first else vr(SB,16)))
            for d in range(4):
                x = Q(12*R+j) + d
                e(f"v_dot2_f32_bf16 v{ACC[1+(d&1)]}, v{x}, v{x}, v{ACC[1+(d&1)]}")
        if R == 1 and W2T == 0: w2_prefetch()
    p.wait(vm=['bias'])
    e(f"v_lshlrev_b32 v{T[7]}, 16, v{T[7]}")
    e(f"v_mov_b32 v{T[5]}, {fhex(ALPHA)}")
    e(f"v_mov_b32 v{T[4]}, {fhex(ALPHA*0.5)}")
    e(f"v_cmp_gt_u32 vcc, 32, v0")
    e(f"v_min_u32 v{T[6]}, 287, v0")
    e(f"v_lshlrev_b32 v{T[6]}, 2, v{T[6]}")
    e(f"v_cndmask_b32 v{T[5]}, v{T[5]}, v{T[4]}, vcc")
    e(f"v_add_u32 v{T[6]}, {BIAS}, v{T[6]}")
    e(f"v_mul_f32 v{T[7]}, v{T[7]}, v{T[5]}")
    e(f"v_cmp_gt_u32 vcc, 288, v0")
    e(f"s_and_saveexec_b64 s[54:55], vcc")
    p.ds(f"ds_write_b32 v{T[6]}, v{T[7]}")
    e(f"s_mov_b64 exec, s[54:55]")
    e(f"v_add_f32 v{ACC[1]}, v{ACC[1]}, v{ACC[2]}")
    e(f"v_mov_b32 v{T[0]}, v{ACC[1]}")
    e(f"s_lshl_b32 s{sT}, s{sH}, 3"); e(f"s_add_u32 s{sT}, s{sT}, {STAT}")
    e(f"v_lshlrev_b32 v{T[4]}, 4, v{vROW}")
    e(f"v_permlane32_swap_b32 v{ACC[1]}, v{T[0]}")
    e(f"v_add_u32 v{T[5]}, s{sT}, v{T[4]}")
    e(f"v_mov_b32 v{ACC[0]}, v{SB}")
    e(f"v_add_f32 v{ACC[1]}, v{ACC[1]}, v{T[0]}")
    p.ds(f"ds_write_b64 v{T[5]}, v[{ACC[0]}:{ACC[1]}]")
    e(f"v_add_u32 v{T[4]}, {STAT}, v{T[4]}")
    kgen_piece(3)
    assert kgst[0] == 8
    p.wait(lg_all=True)
    e("s_barrier")
    stamp("statbar")
    p.ds(f"ds_read_b128 {vr(T[8], 4)}, v{T[4]}", tag='st')
    def bias_init(S, tau):
        if tau == 8: return [lambda gg=gg: p.ds(f"ds_read_b128 {vr(S + gg*4, 4)}, v{vBI8} offset:{gg*32}", tag=('bias', tau)) for gg in range(4)]
        return [lambda gg=gg: p.ds(f"ds_read_b128 {vr(S + gg*4, 4)}, v{vBI} offset:{(32+64*tau+8*gg)*4}", tag=('bias', tau)) for gg in range(4)]
    for op in bias_init(SA, 0) + bias_init(SB, 8): op()
    p.wait(lg=['st'])
    inv = 1.0 / 576.0
    b = T[8]
    for s_ in [f"v_add_f32 v{b}, v{b}, v{b+2}", f"v_add_f32 v{b+1}, v{b+1}, v{b+3}",
            f"v_mul_f32 v{b}, {fhex(inv)}, v{b}", f"v_mul_f32 v{b+1}, {fhex(inv)}, v{b+1}",
            f"v_fma_f32 v{b+1}, -v{b}, v{b}, v{b+1}", f"v_max_f32 v{b+1}, 0, v{b+1}",
            f"v_cvt_pk_bf16_f32 v{b+2}, v{b}, v{b+1}", f"v_lshlrev_b32 v{b}, 16, v{b+2}",
            f"v_and_b32 v{b+1}, s{sMASK}, v{b+2}", f"v_add_f32 v{b+1}, {fhex(1e-5)}, v{b+1}",
            f"v_cvt_pk_bf16_f32 v{b+1}, v{b+1}, v{b+1}", f"v_and_b32 v{b+1}, s{sMASK}, v{b+1}",
            f"v_sqrt_f32 v{b+1}, v{b+1}", "s_nop 0", f"v_cvt_pk_bf16_f32 v{b+1}, v{b+1}, v{b+1}",
            f"v_and_b32 v{b+1}, s{sMASK}, v{b+1}", f"v_rcp_f32 v{b+2}, v{b+1}",
            f"v_lshlrev_b32 v{T[4]}, 3, v{vROW}",
            f"v_mul_f32 v{b+3}, -v{b}, v{b+2}", f"v_add_u32 v{T[4]}, {RCT}, v{T[4]}",
            f"v_mul_f32 v{vR}, s{sAL}, v{b+2}", f"v_mul_f32 v{vC}, s{sAL}, v{b+3}"]: e(s_)
    p.ds(f"ds_write_b64 v{T[4]}, v[{b+2}:{b+3}]", tag='w')

    seq = []
    def G(k, areg, imm, d2, mfs, need=()):
        seq.append(dict(kind='G', unit=k, areg=areg, imm=imm, d2=d2, mf=mfs, need=list(need)))
    def BAR(bg=(), pre=()):
        seq.append(dict(kind='BAR', bg=list(bg), first=list(pre)))
    def p1_group(tau, S, Dk, own, j, need=()):
        k = uloc[('B', tau, 2*Dk)][0]; slot = k % 4
        q = Q(12*Dk + 6*own + j)
        G(k, vA[('n', own, slot >> 1)], (slot & 1) * 24576 + j * 2048, 512,
          [lambda wf: f"v_mfma_f32_32x32x16_bf16 {vr(S,16)}, {vr(wf,4)}, {vr(q,4)}, {vr(S,16)}"], need)
    def b8_group(Dk, j, need=()):
        k, half = uloc[('8', Dk)]; slot = k % 4
        assert slot < 2
        q = Q(12*Dk + j)
        G(k, vA['8'], slot * 24576 + half * 12288 + j * 2048, 512,
          [lambda wf: f"v_mfma_f32_32x32x16_bf16 {vr(SB,16)}, {vr(wf,4)}, {vr(q,4)}, {vr(SB,16)}"], need)
    def norm_ops(slot0, buf):
        ops = []
        for sg in range(2):
            q = Q(slot0 + sg)
            tt = [TMP + 8*sg + i for i in range(8)]
            for d in range(4):
                ops.append(lambda d=d, q=q, tt=tt: e(f"v_lshlrev_b32 v{tt[2*d]}, 16, v{q+d}"))
                ops.append(lambda d=d, q=q, tt=tt: e(f"v_and_b32 v{tt[2*d+1]}, s{sMASK}, v{q+d}"))
            for d in range(8):
                ops.append(lambda d=d, tt=tt: e(f"v_fma_f32 v{tt[d]}, v{tt[d]}, v{vR}, v{vC}"))
            for d in range(4):
                ops.append(lambda d=d, q=q, tt=tt: e(f"v_cvt_pk_bf16_f32 v{q+d}, v{tt[2*d]}, v{tt[2*d+1]}"))
            ops.append(lambda q=q, sg=sg: p.ds(f"ds_write_b128 v{vPW}, {vr(q,4)} offset:{buf*16384+sg*1024}", tag='w'))
        return ops
    def gelu_ops(regs4, dst2, tbase):
        ops = []
        tt = [tbase + i for i in range(4)]
        for i in range(4): ops.append(lambda i=i: e(f"v_fmaak_f32 v{tt[i]}, v{regs4+i}, v{regs4+i}, {fhex(CA)}"))
        for i in range(4): ops.append(lambda i=i: e(f"v_mul_f32 v{tt[i]}, v{regs4+i}, v{tt[i]}"))
        for i in range(4): ops.append(lambda i=i: e(f"v_exp_f32 v{tt[i]}, -v{tt[i]}"))
        for i in range(4): ops.append(lambda i=i: e(f"v_fma_f32 v{tt[i]}, v{tt[i]}, s{sAL}, s{sAL}"))
        for i in range(4): ops.append(lambda i=i: e(f"v_rcp_f32 v{tt[i]}, v{tt[i]}"))
        for i in range(4): ops.append(lambda i=i: e(f"v_mul_f32 v{tt[i]}, v{regs4+i}, v{tt[i]}"))
        for i in range(2): ops.append(lambda i=i: e(f"v_cvt_pk_bf16_f32 v{dst2+i}, v{tt[2*i]}, v{tt[2*i+1]}"))
        return ops
    def gelu_block(S, tau):
        ops = []
        slot = (1 + 2*tau) if tau < 3 else 0
        for kap in range(2):
            pw = TMP + 8 + 4*kap
            for t in range(2):
                ops += gelu_ops(S + (kap*2+t)*4, pw + 2*t, TMP + 4*t)
            ops.append(lambda pw=pw, kap=kap: p.ds(f"ds_write_b128 v{vPW}, {vr(pw,4)} offset:{slot*8192+kap*1024}", tag='w'))
        return ops
    def s8_write():
        return [lambda gg=gg: p.ds(f"ds_write_b128 v{vPW}, {vr(SB+4*gg,4)} offset:{24576 + (gg>>1)*16384 + (gg&1)*1024}", tag='w') for gg in range(4)]
    def s8_read():
        ops = []
        for hh in range(2):
            for c in range(2):
                dst = (SC if hh == 0 else vXT) + 4*c
                ops.append(lambda hh=hh, c=c, dst=dst: p.ds(f"ds_read_b128 {vr(dst,4)}, v{v8R} offset:{24576 + hh*8192 + c*1024}", tag='s8'))
        return ops
    def gelu_b8():
        ops = [lambda: p.wait(lg=['s8'])]
        for i in range(8): ops.append(lambda i=i: e(f"v_add_f32 v{SC+i}, v{SC+i}, v{vXT+i}"))
        pw = TMP + 8
        for t in range(2): ops += gelu_ops(SC + 4*t, pw + 2*t, TMP + 4*t)
        ops.append(lambda: p.ds(f"ds_write_b128 v{vP8}, {vr(pw,4)}", tag='w'))
        return ops
    def pread(kk):
        slot = kk if kk < 7 else kk - 7
        return [lambda sg=sg: p.ds(f"ds_read_b128 {vr(Q(2*kk+sg),4)}, v{vPR} offset:{slot*8192+sg*256}", tag=('P', kk)) for sg in range(2)]
    def xt_job():
        L = p.newlabel("K1_XJ")
        e(f"s_cmp_lt_u32 s{sFJ}, 9")
        e(f"s_cbranch_scc0 {L}")
        e(f"s_lshl_b32 s{sT}, s{sFJ}, 6"); e(f"s_and_b32 s{sT4}, s{sW}, 6"); e(f"s_lshl_b32 s{sT4}, s{sT4}, 3")
        e(f"s_add_u32 s{sT}, s{sT}, s{sT4}"); e(f"s_lshl_b32 s{sT}, s{sT}, 12")
        e(f"s_lshl_b32 s{sT4}, s{sMI}, 8"); e(f"s_add_u32 s{sT}, s{sT}, s{sT4}")
        e(f"s_and_b32 s{sT4}, s{sW}, 1"); e(f"s_lshl_b32 s{sT5}, s{sT4}, 7"); e(f"s_add_u32 s{sT}, s{sT}, s{sT5}")
        e(f"s_add_u32 s{sT}, s{sT}, {XNT_OFF}")
        e(f"s_lshl_b32 s{sT4}, s{sT4}, 9"); e(f"s_add_u32 s{sT4}, s{sT4}, {RCT}")
        va, vb, v1_, v2_ = SC, SC+1, SC+2, SC+3
        e(f"v_lshlrev_b32 v{vb}, 5, v{vG}")
        e(f"v_add_u32 v{vb}, s{sT4}, v{vb}")
        e(f"s_add_u32 s{sT5}, s{sXM}, {PREG+40960}")
        e(f"v_lshlrev_b32 v{va}, 4, v{vG}")
        e(f"v_lshl_add_u32 v{va}, v{vI}, 7, v{va}")
        e(f"v_add_u32 v{va}, s{sT5}, v{va}")
        for job in range(2):
            x = vXT + 4*job
            for q in range(4):
                e(f"ds_read_b128 {vr(TMP+4*q,4)}, v{vb} offset:{256*job+128*(q>>1)+16*(q&1)}")
            e("s_waitcnt lgkmcnt(0)")
            for d in range(4):
                e(f"v_lshlrev_b32 v{v1_}, 16, v{x+d}")
                e(f"v_and_b32 v{v2_}, s{sMASK}, v{x+d}")
                e(f"v_fma_f32 v{v1_}, v{v1_}, v{TMP+2*d}, v{TMP+2*d+1}")
                e(f"v_fma_f32 v{v2_}, v{v2_}, v{TMP+8+2*d}, v{TMP+8+2*d+1}")
                e(f"v_cvt_pk_bf16_f32 v{x+d}, v{v1_}, v{v2_}")
            e(f"ds_write_b128 v{va}, {vr(x,4)} offset:{64*job}")
        e(f"v_lshlrev_b32 v{va}, 4, v{vLANE}")
        e(f"v_add_u32 v{va}, s{sT5}, v{va}")
        e(f"v_lshrrev_b32 v{vb}, 3, v{vLANE}")
        e(f"v_lshlrev_b32 v{vb}, 12, v{vb}")
        e(f"v_and_b32 v{v1_}, 7, v{vLANE}")
        e(f"v_lshl_add_u32 v{vb}, v{v1_}, 4, v{vb}")
        e("s_waitcnt lgkmcnt(0)")
        e(f"ds_read_b128 {vr(TMP,4)}, v{va}")
        e(f"ds_read_b128 {vr(TMP+4,4)}, v{va} offset:1024")
        e(f"s_add_u32 s{sT4}, s{sT}, {8*4096}")
        e("s_waitcnt lgkmcnt(0)")
        p.vmem(f"buffer_store_dwordx4 {vr(TMP,4)}, v{vb}, s[{SWS}:{SWS+3}], s{sT} offen {STM}", maybe=True)
        p.vmem(f"buffer_store_dwordx4 {vr(TMP+4,4)}, v{vb}, s[{SWS}:{SWS+3}], s{sT4} offen {STM}", maybe=True)
        e("s_nop 1")
        p.label(L)

    def xt_ops():
        ops = []
        A = lambda s_: ops.append(lambda: e(s_))
        va, vb, v1_, v2_, vc, vd = SC, SC+1, SC+2, SC+3, SC+4, SC+5
        def setup():
            e(f"s_lshl_b32 s51, s{sFJ}, 6"); e(f"s_and_b32 s52, s{sW}, 6"); e(f"s_lshl_b32 s52, s52, 3")
            e(f"s_add_u32 s51, s51, s52"); e(f"s_lshl_b32 s51, s51, 12")
            e(f"s_lshl_b32 s52, s{sMI}, 8"); e(f"s_add_u32 s51, s51, s52")
            e(f"s_and_b32 s52, s{sW}, 1"); e(f"s_lshl_b32 s53, s52, 7"); e(f"s_add_u32 s51, s51, s53")
            e(f"s_add_u32 s51, s51, {XNT_OFF}")
            e(f"s_lshl_b32 s52, s52, 9"); e(f"s_add_u32 s52, s52, {RCT}")
            e(f"v_lshlrev_b32 v{vb}, 5, v{vG}")
            e(f"v_add_u32 v{vb}, s52, v{vb}")
            e(f"s_add_u32 s53, s{sXM}, {PREG+40960}")
            for q in range(4):
                p.ds(f"ds_read_b128 {vr(TMP+4*q,4)}, v{vb} offset:{128*(q>>1)+16*(q&1)}", tag='xr0')
        ops.append(setup)
        A(f"v_lshlrev_b32 v{va}, 4, v{vG}")
        A(f"v_lshl_add_u32 v{va}, v{vI}, 7, v{va}")
        A(f"v_add_u32 v{va}, s53, v{va}")
        A(f"v_lshlrev_b32 v{vc}, 4, v{vLANE}")
        A(f"v_add_u32 v{vc}, s53, v{vc}")
        A(f"v_lshrrev_b32 v{vd}, 3, v{vLANE}")
        A(f"v_lshlrev_b32 v{vd}, 12, v{vd}")
        A(f"v_and_b32 v{v1_}, 7, v{vLANE}")
        A(f"v_lshl_add_u32 v{vd}, v{v1_}, 4, v{vd}")
        A(f"s_cmp_lt_u32 s{sFJ}, 9\n    s_cselect_b32 s52, 0, 0x10000000\n    v_add_u32 v{vd}, s52, v{vd}\n    s_add_u32 s52, s51, {8*4096}")
        for job in range(2):
            x = vXT + 4*job
            ops.append(lambda job=job: p.wait(lg=[f'xr{job}']))
            for d in range(4):
                A(f"v_lshlrev_b32 v{v1_}, 16, v{x+d}")
                A(f"v_and_b32 v{v2_}, s{sMASK}, v{x+d}")
                A(f"v_fma_f32 v{v1_}, v{v1_}, v{TMP+2*d}, v{TMP+2*d+1}")
                A(f"v_fma_f32 v{v2_}, v{v2_}, v{TMP+8+2*d}, v{TMP+8+2*d+1}")
                A(f"v_cvt_pk_bf16_f32 v{x+d}, v{v1_}, v{v2_}")
            def wr(job=job, x=x):
                p.ds(f"ds_write_b128 v{va}, {vr(x,4)} offset:{64*job}")
                if job == 0:
                    for q in range(4):
                        p.ds(f"ds_read_b128 {vr(TMP+4*q,4)}, v{vb} offset:{256+128*(q>>1)+16*(q&1)}", tag='xr1')
                else:
                    p.ds(f"ds_read_b128 {vr(TMP,4)}, v{vc}", tag='xo')
                    p.ds(f"ds_read_b128 {vr(TMP+4,4)}, v{vc} offset:1024", tag='xo')
            ops.append(wr)
        def st():
            p.wait(lg=['xo'])
            p.vmem(f"buffer_store_dwordx4 {vr(TMP,4)}, v{vd}, s[{SWS}:{SWS+3}], s51 offen")
            p.vmem(f"buffer_store_dwordx4 {vr(TMP+4,4)}, v{vd}, s[{SWS}:{SWS+3}], s52 offen")
            e("s_nop 1")
        ops.append(st)
        return ops
    for op in norm_ops(0, 0): op()
    for r in range(9):
        Dk, j = divmod(r, 3)
        pre = [lambda sg=sg, r=r, Dk=Dk, j=j: p.ds(f"ds_read_b128 {vr(Q(12*Dk+6+2*j+sg),4)}, v{vXR} offset:{(r%2)*16384+sg*1024}", tag=('oth', r)) for sg in range(2)]
        bg = []
        if r + 1 < 9:
            Dn, jn = divmod(r + 1, 3)
            bg = norm_ops(12*Dn + 2*jn, (r + 1) % 2)
            if W1T == 2 and r < 3: bg = [lambda wv=2*r: w1_touch(wv), lambda wv=2*r+1: w1_touch(wv)] + bg
            if W1T == 5 and r == 0: bg = [lambda: w1_touch(5)] + bg
            if W1T == 3 and r < 6: bg = [lambda wv=r: w1_touch(wv)] + bg
        else:
            bg = xt_ops() if XI else [xt_job]
        if W2T == 2 and r >= 3: bg = bg[:6] + [lambda wv=r-3: w2_touch(wv)] + bg[6:]
        bg = bg[:8] + touches(r) + bg[8:]
        BAR(bg=bg, pre=pre)
        nd = [('bias', 0), ('bias', 8)] if r == 0 else []
        for sg in range(2):
            b8_group(Dk, 2*j+sg, nd); p1_group(0, SA, Dk, 0, 2*j+sg, nd)
        for sg in range(2): p1_group(0, SA, Dk, 1, 2*j+sg, [('oth', r)])
    Sbuf = {0: SA, 1: SB, 2: SA, 3: SB}
    for tau in (1, 2, 3):
        gl = gelu_block(Sbuf[tau-1], tau-1)
        n3 = (len(gl) + 2) // 3
        for Dk in range(3):
            pre = []
            if tau == 1 and Dk == 0: pre = s8_write() + bias_init(SB, 1)
            bg = gl[Dk*n3:(Dk+1)*n3]
            if W2T == 5 and tau == 1: bg = bg[:6] + [lambda wv=Dk: w2_touch5(wv)] + bg[6:]
            if W2T == 6 and tau == 2: bg = bg[:6] + [lambda wv=Dk: w2_touch5(wv)] + bg[6:]
            if W2T == 1 and tau < 3: bg = bg[:6] + [lambda wv=3*(tau-1)+Dk: w2_touch(wv)] + bg[6:]
            if tau == 1 and Dk == 1: bg = s8_read() + bg
            if tau == 3 and Dk == 0: bg = gelu_b8() + bg
            if Dk == 2 and tau < 3: bg = bg + bias_init(Sbuf[tau+1], tau+1)
            if tau == 3 and Dk == 1: bg = pread(1) + pread(2) + pread(0) + bg
            if tau == 3 and Dk == 2: bg = pread(3) + pread(4) + bg
            bg = bg[:8] + touches(6 + 3*tau + Dk) + bg[8:]
            BAR(bg=bg, pre=pre)
            for own in range(2):
                for j in range(6):
                    p1_group(tau, Sbuf[tau], Dk, own, j, [('bias', tau)] if (Dk == 0 and own == 0 and j == 0) else [])
    OB = {0: Q(18), 1: Q(22)}
    ET = Q(26)
    def epi(j):
        O = OB[j % 2]
        ops = []
        for t in range(2):
            dst = ET + 4*t + 8*(j % 2)
            for sg in range(2):
                for i in range(2):
                    ops.append(lambda t=t, sg=sg, i=i, dst=dst: e(f"v_cvt_pk_bf16_f32 v{dst+2*sg+i}, v{O+(t*2+sg)*4+2*i}, v{O+(t*2+sg)*4+2*i+1}"))
            def st(t=t, dst=dst):
                e(f"s_mov_b32 s{sT}, {(16*j+4*t)*16384}")
                p.vmem(f"buffer_store_dwordx4 {vr(dst,4)}, v{vOO}, s[{SWS}:{SWS+3}], s{sT} offen {STM if STJ[j] == '1' else ''}")
            if not NOST: ops.append(st)
        return ops
    gl3 = gelu_block(SB, 3)
    for i, u in enumerate(p2):
        _, j, k = u
        kd, half = uloc[u]
        if half == 0:
            bg = []; pre = []
            if i == 0: pre = pread(5) + pread(6); bg = gl3[:len(gl3)//2]
            if i == 2: bg = gl3[len(gl3)//2:]
            if i == 4: pre = pread(7) + pread(8) + [lambda t=t: e(f"v_add_u32 v{vA[('p',t,2)]}, 0x18000, v{vA[('p',t,0)]}") for t in (0, 1)]
            BAR(bg=bg, pre=pre)
        slot = slot_of(kd)
        O = OB[j % 2]
        for jj in range(3):
            kk = 3*k + jj
            for t in range(2):
                first = (kk == 0)
                mfs = [lambda wf, t=t, sg=sg, kk=kk, first=first, O=O: f"v_mfma_f32_16x16x32_bf16 {vr(O+(t*2+sg)*4,4)}, {vr(wf,4)}, {vr(Q(2*kk+sg),4)}, " + ("0" if first else vr(O+(t*2+sg)*4,4)) for sg in range(2)]
                G(kd, vA[('p', t, slot >> 1)], (slot & 1) * 24576 + half * 12288 + jj * 4096, 2048, mfs, [('P', kk)])
        if k == 2:
            seq.append(dict(kind='EPI', ops=epi(j)))
    gidx = [i for i, s in enumerate(seq) if s['kind'] == 'G']
    pos_of_g = {g: n for n, g in enumerate(gidx)}
    bars = [i for i, s in enumerate(seq) if s['kind'] == 'BAR']
    first_read_pos = {}; last_use = {}
    for n, g in enumerate(gidx):
        k = seq[g]['unit']
        rp = gidx[n - RA] if n - RA >= 0 else -1
        first_read_pos.setdefault(k, rp)
        last_use[k] = g
    land = {}; rel = {}
    for k in first_read_pos:
        prev = [b for b in bars if b < first_read_pos[k]]
        land.setdefault(prev[-1] if prev else bars[0], []).append(k)
        nxt = [b for b in bars if b > last_use[k]]
        if nxt and k + 4 < len(D) and not (R6 and k + 4 in ISS6): rel.setdefault(nxt[0], []).append(k + 4)
    if R6:
        assert len(D) == 28 and len(bars) == 32 and D[14][0][0] == 'E' and D[13][0][0] == 'B'
        assert rel[bars[21]] == [20]
        for k in sorted(ISS6): rel.setdefault(bars[ISS6[k]], []).append(k)
    if DL:
        rel.setdefault(bars[0], []).append(2)
        rel.setdefault(bars[DL-1], []).append(3)
    wf_of = {}
    def issue_reads(n):
        if n >= len(gidx): return
        s = seq[gidx[n]]
        wf = WF + 4 * (n % NWF)
        wf_of[n] = wf
        if NOREAD: return
        p.ds(f"ds_read_b64_tr_b16 {vr(wf,2)}, v{s['areg']} offset:{s['imm']}", tag=('wf', n))
        p.ds(f"ds_read_b64_tr_b16 {vr(wf+2,2)}, v{s['areg']} offset:{s['imm']+s['d2']}", tag=('wf', n))
    bgq = []
    def groups_left(i):
        c = 0
        for s in seq[i:]:
            if s['kind'] == 'BAR': break
            if s['kind'] == 'G': c += 1
        return c
    delay = []
    for i, s in enumerate(seq):
        if s['kind'] == 'EPI':
            delay.append([3, s['ops']])
        elif s['kind'] == 'BAR':
            for op in bgq: op()
            p.wait(vm=[('u', k) for k in land.get(i, [])], lg=['w'])
            if not NOBAR: e("s_barrier")
            bi = bars.index(i)
            if bi in ((0, 3, 6, 9, 12, 15, 18, 21, 24, 27, 30) if PRO else (0, 9, 18)): stamp(f"bar{bi}")
            if i == bars[0]:
                for n in range(RA): issue_reads(n)
            if bi == 9: e("s_nop 7")
            for op in s['first']: op()
            dm = []
            for k in rel.get(i, []):
                if not NODMA: dm += dma_double(k)
            bgq = []
            b = [] if NOBG else list(s['bg'])
            step = max(1, len(b) // (len(dm) + 1)) if dm else 0
            while dm or b:
                if dm: bgq.append(dm.pop(0))
                take = b[:step] if dm else b
                bgq += take; b = b[len(take):]
        else:
            n = pos_of_g[i]
            left = groups_left(i)
            if seq[i-1]['kind'] == 'BAR': segn = left
            done = segn - left
            if PRIO and (done == 0 or (done * 4) // segn != ((done - 1) * 4) // segn):
                e(f"s_setprio {3 - (done * 4) // segn}")
            left = max(left - FRONT, 1)
            for dl in delay: dl[0] -= 1
            while delay and delay[0][0] <= 0: bgq += delay.pop(0)[1]
            k = -(-len(bgq) // left)
            p.wait(lg=[('wf', n)] + s['need'])
            nm = len(s['mf'])
            for mi_, mf in enumerate(s['mf']):
                e(mf(wf_of[n]))
                if mi_ == 0: issue_reads(n + RA)
                lo = (k * mi_) // nm; hi = (k * (mi_ + 1)) // nm
                for op in bgq[lo:hi]: op()
            bgq = bgq[k:]
    e("s_nop 7")
    for op in bgq: op()
    for dl in delay:
        for op in dl[1]: op()
    if DIAG:
        stamp("lastissue")
        e("s_waitcnt vmcnt(0)")
        stamp("end")
        e("s_memrealtime s[100:101]")
        e("s_waitcnt lgkmcnt(0)")
        e(f"v_writelane_b32 v{TMP}, s100, 40")
        for i in range(len(stamps)):
            e(f"s_sub_u32 s{sT}, s{56+2*i}, s56")
            e(f"v_writelane_b32 v{TMP}, s{sT}, {i}")
        e(f"s_lshl_b32 s{sT}, s2, 3"); e(f"s_add_u32 s{sT}, s{sT}, s{sW}"); e(f"s_lshl_b32 s{sT}, s{sT}, 8")
        e(f"s_add_u32 s{sT}, s{sT}, 0x4000000")
        e(f"v_lshlrev_b32 v{TMP+1}, 2, v{vLANE}")
        e(f"buffer_store_dword v{TMP}, v{TMP+1}, s[{SWS}:{SWS+3}], s{sT} offen")
        open("stamps.txt", "w").write(" ".join(stamps))
    p.label("K1_END")
    e("s_endpgm")
    return p.text()
```

```python
from asmlib import *
import math, os
DIAG = int(os.environ.get("DIAG", "0")); PRO = int(os.environ.get("PRO", "0"))
NODMA = int(os.environ.get("NODMA", "0")); NOREAD = int(os.environ.get("NOREAD", "0")); NOST = int(os.environ.get("NOST", "0"))
NOBAR = int(os.environ.get("NOBAR", "0")); NOBG = int(os.environ.get("NOBG", "0"))
PRIO = int(os.environ.get("PRIO", "1")); FRONT = int(os.environ.get("FRONT", "1")); MAP = 1
RA = int(os.environ.get("RA", "4"))

PART_OFF = 0
X4_OFF = 37748736
XNT_OFF = 40108032
KT_OFF = 42467328
KSPL = [int(c) for c in os.environ.get('KSPL', '8000')]
LOG2E = math.log2(math.e)
TW = int(os.environ.get("TW", "0"))
T1S = int(os.environ.get("T1S", "0")); T2S = int(os.environ.get("T2S", "4")); T2N = int(os.environ.get("T2N", "12"))
STM = os.environ.get("STM", "sc1")
KB = int(os.environ.get("KB", "1"))
R6 = int(os.environ.get("R6", "1"))
SLOT6 = {21: 4, 22: 1, 23: 5, 24: 2, 25: 3, 26: 0, 27: 4}
ISS6 = {21: 21, 22: 22, 23: 22, 24: 23, 25: 24, 26: 25, 27: 26}
def slot_of(k): return SLOT6[k] if (R6 and k in SLOT6) else k % 4
STJ = os.environ.get("STJ", "111111111")
DL = int(os.environ.get("DL", "0")); XI = int(os.environ.get("XI", "0"))
W1T = int(os.environ.get("W1T", "1")); W2T = int(os.environ.get("W2T", "1"))
RING = 0; PREG = 98304; STAT = 155648; RCT = 157696; BIAS = 158720
SX, SW1, SW2, SWS, SB1 = 4, 8, 12, 16, 20
sW, sH, sQI, sFJ, sMI = 24, 25, 26, 27, 28
sRP1, sRP1X, sRP8, sRP8X, sRP2, sRP2K0, sRP2X, sM0W, sM0X, sT = 29, 30, 31, 32, 33, 34, 35, 36, 37, 38
sT2, sXS, sXM, sT3, sONE, sMASK, sT4, sT5, sAL = 39, 40, 41, 42, 43, 44, 45, 46, 47
sRP1H, sRP8H, sM0H = 48, 49, 50
vLANE, vG, vI = 1, 2, 3
vA = {}
n = 4
for own in (0, 1):
    for hi in (0, 1):
        vA[('n', own, hi)] = n; n += 1
vA['8'] = 8
for t in (0, 1):
    for hi in (0, 1):
        vA[('p', t, hi)] = 9 + 2*t + hi
vA[('p', 0, 2)] = 4; vA[('p', 1, 2)] = 5
vOW1, vOW8, vOW2 = 13, 14, 15
vPW, vPR, vBI, vBI8, vOO, vXR, vR, vC, v8R, vP8 = 16, 17, 18, 19, 20, 21, 22, 23, 24, 25
vXT = 26
TMP = 34
WF = 50
NWF = 5
vROW, vXTA = 70, 71
SB = 72; SC = 88; SA = 96
QB = 112
def Q(slot): return QB + slot * 4
C0 = -2.0 * 0.7978845608028654 * math.log2(math.e)
C1 = C0 * 0.044715
ALPHA = (-C1) ** (1.0 / 3.0)
CA = -C0 / ALPHA

def gen():
    p = Prog()
    e = p.emit
    stamps = []
    def stamp(name):
        if DIAG and len(stamps) < 13:
            e(f"s_memtime s[{56+2*len(stamps)}:{57+2*len(stamps)}]")
            stamps.append(name)
    T = [TMP + i for i in range(16)]
    e("s_cmp_ge_u32 s2, 256")
    e("s_cbranch_scc1 K1_END")
    stamp("start")
    e("s_load_dwordx2 s[4:5], s[0:1], 0")
    e("s_load_dwordx4 s[48:51], s[0:1], 80")
    e("s_load_dwordx2 s[12:13], s[0:1], 96")
    e("s_load_dwordx2 s[16:17], s[0:1], 128")
    e("s_load_dwordx16 s[84:99], s[0:1], 8")
    e(f"v_lshrrev_b32 v{T[0]}, 6, v0")
    e(f"v_and_b32 v{vLANE}, 63, v0")
    e(f"v_readfirstlane_b32 s{sW}, v{T[0]}")
    e(f"v_lshrrev_b32 v{vG}, 4, v{vLANE}")
    e(f"v_and_b32 v{vI}, 15, v{vLANE}")
    nb = 1 + MAP
    e("s_and_b32 s3, s2, 7")
    e(f"s_lshr_b32 s{sMI}, s2, 3")
    e(f"s_and_b32 s{sFJ}, s{sMI}, {(1<<nb)-1}")
    e(f"s_lshr_b32 s{sT}, s3, {MAP}")
    e(f"s_lshl_b32 s{sT}, s{sT}, {nb}")
    e(f"s_add_u32 s{sFJ}, s{sFJ}, s{sT}")
    e(f"s_lshr_b32 s{sMI}, s{sMI}, {nb}")
    e(f"s_and_b32 s3, s3, {(1<<MAP)-1}")
    e(f"s_lshl_b32 s3, s3, {4-MAP}")
    e(f"s_add_u32 s{sMI}, s{sMI}, s3")
    e(f"s_lshr_b32 s{sH}, s{sW}, 2")
    e(f"s_and_b32 s{sQI}, s{sW}, 3")
    e(f"s_mov_b32 s{sONE}, 0x3f803f80")
    e(f"s_mov_b32 s{sMASK}, 0xffff0000")
    e(f"s_mov_b32 s{sAL}, {fhex(ALPHA)}")
    e(f"v_lshrrev_b32 v{T[2]}, 3, v{vLANE}")
    e(f"v_and_b32 v{T[3]}, 7, v{vLANE}")
    e(f"v_xor_b32 v{T[4]}, v{vG}, v{T[3]}")
    e(f"v_mul_u32_u24 v{T[5]}, 2304, v{T[2]}")
    e(f"v_lshl_add_u32 v{T[0]}, v{T[4]}, 4, v{T[5]}")
    e(f"v_xor_b32 v{T[1]}, 64, v{T[0]}")
    e(f"s_lshl_b32 s{sXS}, s{sMI}, 7")
    e(f"s_lshr_b32 s{sT}, s{sW}, 1"); e(f"s_lshl_b32 s{sT}, s{sT}, 5"); e(f"s_add_u32 s{sXS}, s{sXS}, s{sT}")
    e(f"s_and_b32 s{sT}, s{sW}, 1"); e(f"s_add_u32 s{sXS}, s{sXS}, s{sT}")
    e(f"s_mul_i32 s{sXS}, s{sXS}, 1152")
    e(f"s_lshl_b32 s{sXM}, s{sW}, 11")
    e(f"v_subrev_u32 v{T[9]}, 192, v0")
    e(f"v_min_u32 v{T[9]}, 287, v{T[9]}")
    e(f"v_lshlrev_b32 v{T[9]}, 7, v{T[9]}")
    e(f"s_and_b32 s{sT4}, s{sFJ}, 3"); e(f"s_mul_i32 s{sT4}, s{sT4}, {288*128}")
    e(f"s_mul_i32 s{sT5}, s{sMI}, {128*1152}"); e(f"s_add_u32 s{sT4}, s{sT4}, s{sT5}")
    e(f"s_getpc_b64 s[52:53]")
    e(f"s_lshl_b32 s{sT5}, s{sH}, 6")
    e(f"v_add_u32 v{T[10]}, s{sT5}, v{vLANE}")
    e("s_waitcnt lgkmcnt(0)")
    if PRO: stamp("karg")
    e("s_mov_b32 s6, 2359296"); e("s_mov_b32 s7, 0x00020000")
    e("s_mov_b32 s8, s48"); e("s_mov_b32 s9, s49"); e("s_mov_b32 s10, 5308416"); e("s_mov_b32 s11, 0x00020000")
    e("s_mov_b32 s14, 5308416"); e("s_mov_b32 s15, 0x00020000")
    e("s_mov_b32 s18, 268435456"); e("s_mov_b32 s19, 0x00020000")
    e("s_mov_b32 s20, s50"); e("s_mov_b32 s21, s51"); e("s_mov_b32 s22, 9216"); e("s_mov_b32 s23, 0x00020000")
    KACC = Q(6); KP = Q(6)+16; KFR = Q(18); HR = KFR+16; HC = KFR+17; KRAW = KFR+18; KT = Q(30)
    e(f"s_lshl_b32 s83, s{sMI}, 4"); e(f"s_add_u32 s83, s83, s{sFJ}"); e("s_mul_i32 s83, s83, 3"); e(f"s_add_u32 s83, s83, s{sW}")
    e(f"s_cmp_lt_u32 s{sMI}, 12"); e("s_cselect_b32 s82, 1, 0")
    e(f"s_sub_u32 s3, s{sW}, 4"); e("s_cmp_lt_u32 s3, 3"); e("s_cselect_b32 s55, s82, 0")
    e(f"s_cmp_lt_u32 s{sW}, 3"); e("s_cselect_b32 s82, s82, 0")
    e("s_cmp_eq_u32 s82, 0"); e("s_cbranch_scc1 K1_KG0")
    e("s_lshl_b32 s3, s83, 8")
    e(f"v_lshlrev_b32 v{KT}, 2, v{vLANE}"); e(f"v_add_u32 v{KT}, s3, v{KT}")
    for a in range(6):
        p.vmem(f"global_load_dword v{KRAW+a}, v{KT}, s[{84+2*a}:{85+2*a}]", tag='kp', maybe=True)
    e("s_lshr_b32 s3, s83, 1"); e("s_lshl_b32 s3, s3, 2")
    e("s_load_dword s100, s[96:97], s3"); e("s_load_dword s101, s[98:99], s3")
    p.label("K1_KG0")
    if KB: e("s_barrier")
    kgst = [0]
    def kgen_piece(pi):
        n = KSPL[pi]
        if n == 0: return
        L = p.newlabel("K1_KG")
        e("s_cmp_eq_u32 s82, 0"); e(f"s_cbranch_scc1 {L}")
        wr, wi, t0, t1, t2, t3, t4, t5, t6, t7, t8, t9 = range(KT, KT+12)
        DP = "row_mask:0xf bank_mask:0xf"
        RA1, RA2, CB1, CB2 = KFR, KFR+4, KFR+8, KFR+12
        if kgst[0] == 0:
            e(f"v_lshlrev_b32 v{t0}, 1, v{vI}"); e(f"v_add_u32 v{t0}, 240, v{t0}")
            e(f"v_cmp_gt_u32 vcc, 8, v{vI}")
            e(f"s_mov_b32 s84, {hex(512 | 128 << 16)}"); e(f"s_mov_b32 s85, {hex(1280 | 1536 << 16)}")
            e(f"v_lshlrev_b32 v{t1}, 4, v{vI}")
            e(f"v_cndmask_b32 v{t0}, v{t0}, v{vI}, vcc")
            e(f"v_lshrrev_b64 {vr(t2,2)}, v{t1}, s[84:85]")
            e(f"v_cmp_le_u32 vcc, 12, v{vI}")
            e(f"v_and_b32 v{t2}, 0xffff, v{t2}")
            e(f"v_lshlrev_b32 v{t1}, 3, v{vI}")
            e(f"v_cndmask_b32 v{t0}, v{t0}, v{t2}, vcc")
            e(f"v_cvt_f32_u32 v{HC}, v{t1}"); e(f"v_cvt_f32_u32 v{HR}, v{t0}")
            e("s_waitcnt lgkmcnt(0)")
            e("s_and_b32 s3, s83, 1"); e("s_lshl_b32 s3, s3, 4")
            e("s_lshr_b32 s100, s100, s3"); e("s_lshl_b32 s100, s100, 16")
            e("s_lshr_b32 s101, s101, s3"); e("s_lshl_b32 s101, s101, 16")
            e(f"v_mov_b32 v{t0}, {fhex(LOG2E)}"); e(f"v_mul_f32 v{t0}, s100, v{t0}"); e(f"v_exp_f32 v{t0}, v{t0}"); e("s_nop 0")
            e(f"v_cvt_pk_bf16_f32 v{t0}, v{t0}, v{t0}"); e(f"v_and_b32 v{t0}, s{sMASK}, v{t0}")
            e(f"v_mul_f32 v{t1}, {fhex(LOG2E)}, v{t0}"); e(f"v_mul_f32 v{t2}, {fhex(1/(2*math.pi))}, v{t0}")
            stamp("kpre")
            e("s_waitcnt vmcnt(0)")
            stamp("kp")
            for hs in range(2):
                for a in range(6):
                    if hs: e(f"v_and_b32 v{t3+a}, s{sMASK}, v{KRAW+a}")
                    else: e(f"v_lshlrev_b32 v{t3+a}, 16, v{KRAW+a}")
                A2, B2, WR, WI = [KP + 4*hs + i for i in range(4)]
                e(f"v_mul_f32 v{A2}, v{t1}, v{t3}"); e(f"v_mul_f32 v{B2}, v{t2}, v{t4}")
                e(f"v_mul_f32 v{t5}, v{t0}, v{t5}"); e(f"v_mul_f32 v{t6}, v{t0}, v{t6}")
                e(f"v_rndne_f32 v{t9}, v{B2}")
                e(f"v_mul_f32 v{WR}, v{t7}, v{t5}"); e(f"v_mul_f32 v{WI}, v{t7}, v{t6}")
                e(f"v_sub_f32 v{B2}, v{B2}, v{t9}")
                e(f"v_fma_f32 v{WR}, -v{t8}, v{t6}, v{WR}"); e(f"v_fmac_f32 v{WI}, v{t8}, v{t5}")
            e("s_nop 1")
        for ks in range(kgst[0], kgst[0] + n):
            A2, B2, WR, WI = [KP + 4*(ks >> 2) + i for i in range(4)]
            s_ = ks & 3
            for nn in range(4):
                BC = f"row_newbcast:{4*s_+nn} {DP}"
                e(f"v_mul_f32_dpp v{t1}, v{B2}, v{HR} {BC}"); e(f"v_mul_f32_dpp v{t0}, v{A2}, v{HR} {BC}")
                e(f"v_mul_f32_dpp v{t4}, v{B2}, v{HC} {BC}"); e(f"v_mul_f32_dpp v{t3}, v{A2}, v{HC} {BC}")
                e(f"v_fract_f32 v{t1}, v{t1}"); e(f"v_exp_f32 v{t0}, v{t0}")
                e(f"v_cos_f32 v{t2}, v{t1}"); e(f"v_sin_f32 v{t1}, v{t1}")
                e(f"v_exp_f32 v{t3}, v{t3}")
                e(f"v_mul_f32 v{t2}, v{t0}, v{t2}")
                e(f"v_cos_f32 v{t5}, v{t4}")
                e(f"v_mul_f32 v{t1}, v{t0}, v{t1}")
                e(f"v_sin_f32 v{t4}, v{t4}")
                e(f"v_mul_f32_dpp v{wr}, v{WR}, v{t3} {BC}"); e(f"v_mul_f32_dpp v{wi}, v{WI}, v{t3} {BC}")
                e(f"v_cvt_pk_bf16_f32 v{RA1+nn}, v{t2}, v{t1}")
                e(f"v_mul_f32_dpp v{t6}, v{t2}, v{t2} row_newbcast:12 {DP}")
                e(f"v_mul_f32_dpp v{t7}, v{t1}, v{t2} row_newbcast:12 {DP}")
                e(f"v_mul_f32 v{t8}, v{wr}, v{t5}"); e(f"v_mul_f32 v{t9}, v{wr}, v{t4}")
                e(f"v_fmac_f32_dpp v{t6}, -v{t1}, v{t1} row_newbcast:12 {DP}")
                e(f"v_fmac_f32_dpp v{t7}, v{t2}, v{t1} row_newbcast:12 {DP}")
                e(f"v_fma_f32 v{t8}, -v{wi}, v{t4}, v{t8}"); e(f"v_fmac_f32 v{t9}, v{wi}, v{t5}")
                e(f"v_cvt_pk_bf16_f32 v{RA2+nn}, v{t6}, v{t7}")
                e(f"v_mul_f32_dpp v{t0}, v{t2}, v{t8} row_newbcast:13 {DP}")
                e(f"v_mul_f32_dpp v{t3}, v{t1}, v{t8} row_newbcast:13 {DP}")
                e(f"v_cvt_pk_bf16_f32 v{CB1+nn}, v{t8}, -v{t9}")
                e(f"v_fmac_f32_dpp v{t0}, -v{t1}, v{t9} row_newbcast:13 {DP}")
                e(f"v_fmac_f32_dpp v{t3}, v{t2}, v{t9} row_newbcast:13 {DP}")
                e(f"v_cvt_pk_bf16_f32 v{CB2+nn}, v{t0}, -v{t3}")
            e("s_nop 1")
            for a in range(2):
                for b in range(2):
                    d = KACC + 4*(2*a+b)
                    c = "0" if ks == 0 else vr(d, 4)
                    e(f"v_mfma_f32_16x16x32_bf16 {vr(d,4)}, {vr((RA1,RA2)[a],4)}, {vr((CB1,CB2)[b],4)}, {c}")
        kgst[0] += n
        if kgst[0] == 8:
            e(f"v_cmp_eq_u32 vcc, 0, v{vLANE}")
            e(f"v_mov_b32 v{t8}, s101"); e(f"v_lshlrev_b32 v{t9}, 4, v{vLANE}")
            e(f"v_cndmask_b32 v{t8}, 0, v{t8}, vcc")
            e("s_lshl_b32 s3, s83, 11"); e(f"s_add_u32 s3, s3, {KT_OFF}")
            e("s_nop 7"); e("s_nop 3")
            e(f"v_add_f32 v{KACC}, v{KACC}, v{t8}")
            for q in range(8): e(f"v_cvt_pk_bf16_f32 v{KT+q}, v{KACC+2*q}, v{KACC+2*q+1}")
            for a in range(2):
                p.vmem(f"buffer_store_dwordx4 {vr(KT+4*a,4)}, v{t9}, s[{SWS}:{SWS+3}], s3 offen offset:{1024*a} {STM}", maybe=True)
        p.label(L)
    Lc = p.newlabel("K1_PF"); Ld = p.newlabel("K1_PF")
    e(f"s_cmp_lt_u32 s{sW}, 3"); e(f"s_cbranch_scc1 {Ld}")
    e(f"s_cmp_eq_u32 s{sQI}, 3"); e(f"s_cbranch_scc0 {Lc}")
    for q in range(3):
        e(f"v_add_u32 v{T[11]}, {128*q}, v{T[10]}")
        e(f"v_min_u32 v{T[11]}, K1_CODE_LINES, v{T[11]}")
        e(f"v_lshlrev_b32 v{T[12+q]}, 7, v{T[11]}")
        e(f"global_load_dword v{T[8]}, v{T[12+q]}, s[52:53]")
    p.label(Lc)
    p.vmem(f"buffer_load_dword v{T[8]}, v{T[9]}, s[{SX}:{SX+3}], s{sT4} offen", tag='pf')
    if TW:
        e(f"s_cmp_lg_u32 s{sW}, 7"); e(f"s_cbranch_scc1 {Ld}")
        e(f"v_min_u32 v{T[11]}, 3, v{vLANE}")
        e(f"v_mul_u32_u24 v{T[12]}, {191*9216}, v{T[11]}")
        e(f"s_mul_i32 s{sT3}, s{sFJ}, 576")
        e(f"buffer_load_dword v{T[8]}, v{T[12]}, s[{SW1}:{SW1+3}], s{sT3} offen")
        e(f"v_mul_u32_u24 v{T[13]}, 110548, v{T[11]}")
        e(f"s_mul_i32 s{sT3}, s{sFJ}, 331776")
        e(f"buffer_load_dword v{T[8]}, v{T[13]}, s[{SW2}:{SW2+3}], s{sT3} offen")
        e(f"v_mul_u32_u24 v{T[14]}, 786400, v{T[11]}")
        e(f"s_mul_i32 s{sT3}, s{sFJ}, 2359296")
        e(f"buffer_load_dword v{T[8]}, v{T[14]}, s[{SWS}:{SWS+3}], s{sT3} offen")
        e(f"v_mul_u32_u24 v{T[15]}, 1572800, v{T[11]}")
        e(f"s_mov_b32 s{sT3}, {X4_OFF}")
        e(f"buffer_load_dword v{T[8]}, v{T[15]}, s[{SWS}:{SWS+3}], s{sT3} offen")
    p.label(Ld)
    def xdma1(c, extra):
        for nn in range(2):
            e(f"s_add_u32 m0, s{sXM}, {16384*c + 1024*nn + (-8192 if extra else 0)}")
            e(f"s_add_u32 s{sT}, s{sXS}, {128*c + nn*16*1152 + (-64*1152 if extra else 0)}")
            p.vmem(f"buffer_load_dwordx4 v{T[nn]}, s[{SX}:{SX+3}], s{sT} offen lds", tag=('x', c), maybe=extra)
    def xdma3(c0):
        L1 = p.newlabel("K1_XD"); L2 = p.newlabel("K1_XD")
        e("s_cmp_eq_u32 s55, 0"); e(f"s_cbranch_scc1 {L1}")
        for c in range(c0, c0+3): xdma1(c, True)
        p.label(L1)
        e("s_cmp_eq_u32 s82, 1"); e(f"s_cbranch_scc1 {L2}")
        for c in range(c0, c0+3): xdma1(c, False)
        p.label(L2)
    e("s_setprio 3")
    xdma3(0)
    e("s_setprio 0")
    e(f"s_and_b32 s{sT2}, s{sFJ}, 1")
    e(f"s_mul_i32 s{sT3}, s{sFJ}, 576")
    e(f"s_add_u32 s{sT5}, s{sQI}, 8")
    e(f"s_mul_i32 s{sRP1}, s{sW}, {8*9216}"); e(f"s_mul_i32 s{sRP1X}, s{sT5}, {8*9216}")
    e(f"s_lshl_b32 s{sT4}, s{sT2}, 6"); e(f"s_add_u32 s{sT4}, s{sT4}, s{sT3}")
    e(f"s_lshl_b32 s{sT}, s{sT2}, 9"); e(f"s_sub_u32 s{sT}, 512, s{sT}"); e(f"s_add_u32 s{sT}, s{sT}, s{sT3}")
    e(f"s_add_u32 s{sRP8}, s{sRP1}, s{sT}"); e(f"s_add_u32 s{sRP8X}, s{sRP1X}, s{sT}")
    e(f"s_add_u32 s{sRP1}, s{sRP1}, s{sT4}"); e(f"s_add_u32 s{sRP1X}, s{sRP1X}, s{sT4}")
    e(f"s_mul_i32 s{sT}, s{sH}, {96*9216}"); e(f"s_add_u32 s{sRP1H}, s{sRP1X}, s{sT}")
    e(f"s_mul_i32 s{sT}, s{sH}, {192*9216}"); e(f"s_add_u32 s{sRP8H}, s{sRP8X}, s{sT}")
    def rowperm(dst, nreg, tmp):
        e(f"s_lshr_b32 s{dst}, s{nreg}, 2"); e(f"s_lshl_b32 s{dst}, s{dst}, 5")
        e(f"s_and_b32 s{tmp}, s{nreg}, 1"); e(f"s_lshl_b32 s{tmp}, s{tmp}, 4"); e(f"s_add_u32 s{dst}, s{dst}, s{tmp}")
        e(f"s_and_b32 s{tmp}, s{nreg}, 2"); e(f"s_lshl_b32 s{tmp}, s{tmp}, 2"); e(f"s_add_u32 s{dst}, s{dst}, s{tmp}")
    rowperm(sRP2, sW, sT4); rowperm(sRP2X, sT5, sT4)
    e(f"s_mul_i32 s{sT}, s{sFJ}, 288"); e(f"s_lshl_b32 s{sT4}, s{sT2}, 5"); e(f"s_add_u32 s{sT}, s{sT}, s{sT4}"); e(f"s_sub_u32 s{sT}, s{sT}, 32")
    e(f"s_add_u32 s{sRP2}, s{sRP2}, s{sT}"); e(f"s_add_u32 s{sRP2X}, s{sRP2X}, s{sT}")
    e(f"s_or_b32 s{sT4}, s{sT2}, s{sH}"); e(f"s_cmp_eq_u32 s{sT4}, 0"); e(f"s_cselect_b32 s{sT4}, 288, 0")
    e(f"s_add_u32 s{sRP2K0}, s{sRP2}, s{sT4}")
    e(f"s_mul_i32 s{sRP2}, s{sRP2}, 1152"); e(f"s_mul_i32 s{sRP2X}, s{sRP2X}, 1152"); e(f"s_mul_i32 s{sRP2K0}, s{sRP2K0}, 1152")
    e(f"s_lshl_b32 s{sM0W}, s{sW}, 10"); e(f"s_lshl_b32 s{sM0X}, s{sT5}, 10")
    e(f"s_mul_i32 s{sT}, s{sH}, 12288"); e(f"s_add_u32 s{sM0H}, s{sM0X}, s{sT}")
    e("s_setprio 2")
    xdma3(3)
    e("s_setprio 0")
    e(f"v_and_b32 v{T[4]}, 1, v{vG}")
    e(f"v_lshlrev_b32 v{T[4]}, 2, v{T[4]}")
    e(f"v_xor_b32 v{T[4]}, v{T[4]}, v{T[3]}")
    e(f"v_mul_u32_u24 v{T[10]}, 9216, v{T[2]}")
    e(f"v_lshl_add_u32 v{vOW1}, v{T[4]}, 4, v{T[10]}")
    e(f"v_lshrrev_b32 v{T[11]}, 2, v{T[4]}")
    e(f"v_mul_u32_u24 v{T[11]}, {96*9216}, v{T[11]}")
    e(f"v_and_b32 v{T[4]}, 3, v{T[4]}")
    e(f"v_lshlrev_b32 v{T[4]}, 4, v{T[4]}")
    e(f"v_add3_u32 v{vOW8}, v{T[4]}, v{T[10]}, v{T[11]}")
    e(f"v_lshlrev_b32 v{T[4]}, 1, v{vG}")
    e(f"v_xor_b32 v{T[4]}, v{T[4]}, v{T[3]}")
    e(f"v_mul_u32_u24 v{T[10]}, 1152, v{T[2]}")
    e(f"v_lshl_add_u32 v{vOW2}, v{T[4]}, 4, v{T[10]}")
    e(f"v_lshrrev_b32 v{T[4]}, 2, v{vI}")
    e(f"v_and_b32 v{T[10]}, 3, v{vLANE}")
    e(f"v_lshlrev_b32 v{T[10]}, 3, v{T[10]}")
    e(f"v_lshrrev_b32 v{T[5]}, 1, v{vG}")
    e(f"v_lshl_add_u32 v{T[9]}, v{T[5]}, 3, v{T[4]}")
    e(f"v_lshl_add_u32 v{T[9]}, v{T[9]}, 7, v{T[10]}")
    e(f"v_lshrrev_b32 v{T[11]}, 1, v{T[4]}")
    e(f"v_xor_b32 v{T[11]}, s{sH}, v{T[11]}")
    e(f"v_lshl_add_u32 v{T[9]}, v{T[11]}, 6, v{T[9]}")
    e(f"v_and_b32 v{T[11]}, 1, v{vG}")
    e(f"v_lshl_add_u32 v{vA['8']}, v{T[11]}, 5, v{T[9]}")
    e(f"s_mul_i32 s{sT4}, s{sH}, 12288"); e(f"s_sub_u32 s{sT5}, 12288, s{sT4}")
    e(f"v_add_u32 v{vA[('n',0,0)]}, s{sT4}, v{vA['8']}"); e(f"v_add_u32 v{vA[('n',1,0)]}, s{sT5}, v{vA['8']}")
    e(f"v_add_u32 v{vA[('n',0,1)]}, 49152, v{vA[('n',0,0)]}"); e(f"v_add_u32 v{vA[('n',1,1)]}, 49152, v{vA[('n',1,0)]}")
    e(f"v_lshl_add_u32 v{T[9]}, v{vG}, 2, v{T[4]}")
    e(f"v_lshl_add_u32 v{T[10]}, v{T[9]}, 7, v{T[10]}")
    e(f"v_bfe_u32 v{T[9]}, v{T[9]}, 1, 2")
    e(f"s_lshl_b32 s{sT}, s{sH}, 1")
    e(f"v_xor_b32 v{T[9]}, s{sT}, v{T[9]}")
    e(f"v_lshl_add_u32 v{vA[('p',0,0)]}, v{T[9]}, 5, v{T[10]}")
    e(f"v_xor_b32 v{vA[('p',1,0)]}, 32, v{vA[('p',0,0)]}")
    for t in (0, 1): e(f"v_add_u32 v{vA[('p',t,1)]}, 49152, v{vA[('p',t,0)]}")
    e(f"s_lshl_b32 s{sT}, s{sQI}, 11"); e(f"s_add_u32 s{sT}, s{sT}, {PREG}")
    e(f"v_lshlrev_b32 v{T[11]}, 4, v{vLANE}")
    e(f"v_add_u32 v{T[11]}, s{sT}, v{T[11]}")
    e(f"s_lshl_b32 s{sT4}, s{sH}, 13"); e(f"v_add_u32 v{vPW}, s{sT4}, v{T[11]}")
    e(f"v_xor_b32 v{vXR}, 8192, v{vPW}")
    e(f"s_lshl_b32 s{sT4}, s{sH}, 10"); e(f"v_add_u32 v{vP8}, s{sT4}, v{T[11]}")
    e(f"s_lshl_b32 s{sT4}, s{sH}, 14"); e(f"v_add_u32 v{v8R}, s{sT4}, v{T[11]}")
    e(f"v_lshlrev_b32 v{T[9]}, 9, v{vG}")
    e(f"v_lshl_add_u32 v{T[9]}, v{vI}, 4, v{T[9]}")
    e(f"v_add_u32 v{vPR}, s{sT}, v{T[9]}")
    e(f"v_lshlrev_b32 v{T[9]}, 4, v{T[5]}")
    e(f"v_add_u32 v{vBI8}, {BIAS}, v{T[9]}")
    e(f"s_lshl_b32 s{sT4}, s{sH}, 7"); e(f"v_add_u32 v{vBI}, s{sT4}, v{vBI8}")
    e(f"s_mul_i32 s{sT}, s{sFJ}, 144"); e(f"s_lshl_b32 s{sT4}, s{sH}, 3"); e(f"s_add_u32 s{sT}, s{sT}, s{sT4}")
    e(f"s_lshl_b32 s{sT}, s{sT}, 14")
    e(f"s_lshl_b32 s{sT4}, s{sMI}, 10"); e(f"s_add_u32 s{sT}, s{sT}, s{sT4}")
    e(f"s_lshl_b32 s{sT4}, s{sQI}, 8"); e(f"s_add_u32 s{sT}, s{sT}, s{sT4}")
    e(f"v_lshlrev_b32 v{vOO}, 14, v{vG}")
    e(f"v_lshl_add_u32 v{vOO}, v{vI}, 4, v{vOO}")
    e(f"v_add_u32 v{vOO}, s{sT}, v{vOO}")
    e("s_setprio 1")
    xdma3(6)
    e("s_setprio 0")
    if PRO: stamp("xissued")
    kgen_piece(0)
    stamp("kpost")
    e(f"v_cmp_gt_u32 vcc, 32, v0")
    e(f"v_mov_b32 v{T[6]}, -32")
    e(f"v_mov_b32 v{T[7]}, 256")
    e(f"v_cndmask_b32 v{T[6]}, v{T[6]}, v{T[7]}, vcc")
    e(f"s_sub_u32 s{sT4}, s{sT2}, 1")
    e(f"v_and_b32 v{T[6]}, s{sT4}, v{T[6]}")
    e(f"v_add_u32 v{T[6]}, v{T[6]}, v0")
    e(f"v_min_u32 v{T[6]}, 287, v{T[6]}")
    e(f"v_lshlrev_b32 v{T[6]}, 1, v{T[6]}")
    p.vmem(f"buffer_load_ushort v{T[7]}, v{T[6]}, s[{SB1}:{SB1+3}], s{sT3} offen", tag='bias')
    if W1T >= 5:
        e(f"v_subrev_u32 v{T[9]}, 192, v0")
        e(f"v_min_u32 v{T[9]}, 359, v{T[9]}")
    else: e(f"v_min_u32 v{T[9]}, 359, v0")
    e(f"v_mul_u32_u24 v{T[10]}, 205, v{T[9]}")
    e(f"v_lshrrev_b32 v{T[10]}, 10, v{T[10]}")
    e(f"v_mul_u32_u24 v{T[11]}, 5, v{T[10]}")
    e(f"v_sub_u32 v{T[9]}, v{T[9]}, v{T[11]}")
    e(f"v_mul_u32_u24 v{T[10]}, 9216, v{T[10]}")
    e(f"v_lshl_add_u32 v{T[9]}, v{T[9]}, 7, v{T[10]}")
    e(f"s_and_b32 s{sT5}, s{sMI}, 7")
    e(f"s_mul_i32 s{sT}, s{sT5}, {72*9216}")
    e(f"s_and_b32 s{sT4}, s{sT3}, 0xffffff80")
    e(f"s_add_u32 s{sT}, s{sT}, s{sT4}")
    if W1T == 1: p.vmem(f"buffer_load_dword v255, v{T[9]}, s[{SW1}:{SW1+3}], s{sT} offen", tag='pf')
    if W1T >= 5:
        e(f"s_cmp_lt_u32 s{sW}, 3"); e("s_cbranch_scc1 K1_W1T")
        p.vmem(f"buffer_load_dword v255, v{T[9]}, s[{SW1}:{SW1+3}], s{sT} offen", maybe=True)
        p.label("K1_W1T")
    def w2_touch(wv):
        L = p.newlabel("K1_T")
        e(f"s_cmp_eq_u32 s{sW}, {wv}")
        e(f"s_cbranch_scc0 {L}")
        e(f"v_min_u32 v{vXTA}, 323, v0")
        e(f"v_lshlrev_b32 v{vXTA}, 7, v{vXTA}")
        e(f"s_and_b32 s{sT5}, s{sMI}, 7")
        e(f"s_mul_i32 s{sT}, s{sFJ}, {288*1152}")
        e(f"s_mul_i32 s{sT4}, s{sT5}, {324*128}")
        e(f"s_add_u32 s{sT}, s{sT}, s{sT4}")
        p.vmem(f"buffer_load_dword v{vROW}, v{vXTA}, s[{SW2}:{SW2+3}], s{sT} offen", maybe=True)
        p.label(L)
    def w2_touch5(wv):
        L = p.newlabel("K1_T")
        e(f"s_cmp_eq_u32 s{sW}, {wv}")
        e(f"s_cbranch_scc0 {L}")
        e(f"v_min_u32 v{vXTA}, 179, v0")
        e(f"v_mul_u32_u24 v{vC}, 205, v{vXTA}")
        e(f"v_lshrrev_b32 v{vC}, 10, v{vC}")
        e(f"v_lshlrev_b32 v{vXTA}, 7, v{vXTA}")
        e(f"v_lshl_add_u32 v{vXTA}, v{vC}, 9, v{vXTA}")
        e(f"s_and_b32 s{sT5}, s{sMI}, 7")
        e(f"s_mul_i32 s{sT}, s{sFJ}, {288*1152}")
        e(f"s_mul_i32 s{sT4}, s{sT5}, {324*128}")
        e(f"s_add_u32 s{sT}, s{sT}, s{sT4}")
        p.vmem(f"buffer_load_dword v{vROW}, v{vXTA}, s[{SW2}:{SW2+3}], s{sT} offen", maybe=True)
        p.label(L)
    def w1_touch(wv):
        L = p.newlabel("K1_T")
        e(f"s_cmp_eq_u32 s{sW}, {wv}")
        e(f"s_cbranch_scc0 {L}")
        e(f"v_min_u32 v{vXTA}, 359, v0")
        e(f"v_mul_u32_u24 v{vROW}, 205, v{vXTA}")
        e(f"v_lshrrev_b32 v{vROW}, 10, v{vROW}")
        e(f"v_lshlrev_b32 v{vXTA}, 7, v{vXTA}")
        e(f"v_mul_u32_u24 v{vROW}, {9216-640}, v{vROW}")
        e(f"v_add_u32 v{vXTA}, v{vXTA}, v{vROW}")
        e(f"s_and_b32 s{sT5}, s{sMI}, 7")
        e(f"s_mul_i32 s{sT}, s{sT5}, {72*9216}")
        e(f"s_and_b32 s{sT4}, s{sT3}, 0xffffff80")
        e(f"s_add_u32 s{sT}, s{sT}, s{sT4}")
        p.vmem(f"buffer_load_dword v{vROW}, v{vXTA}, s[{SW1}:{SW1+3}], s{sT} offen", maybe=True)
        p.label(L)
    def touch(wv, which, tau, start, count):
        L = p.newlabel("K1_T")
        e(f"s_cmp_eq_u32 s{sW}, {wv}")
        e(f"s_cbranch_scc0 {L}")
        e(f"v_min_u32 v{vXTA}, {count-1}, v{vLANE}")
        e(f"s_and_b32 s{sT5}, s{sMI}, 7")
        if which == 1:
            e(f"v_mul_u32_u24 v{vXTA}, 9216, v{vXTA}")
            e(f"s_mul_i32 s{sT}, s{sT5}, {72*9216}")
            e(f"s_lshl_b32 s{sT4}, s{sT2}, 6"); e(f"s_add_u32 s{sT4}, s{sT4}, s{sT3}")
            e(f"s_add_u32 s{sT}, s{sT}, s{sT4}"); e(f"s_add_u32 s{sT}, s{sT}, {128*tau + start*9216}")
        else:
            e(f"v_lshlrev_b32 v{vXTA}, 7, v{vXTA}")
            e(f"s_mul_i32 s{sT}, s{sFJ}, {288*1152}")
            e(f"s_mul_i32 s{sT4}, s{sT5}, {324*128}")
            e(f"s_add_u32 s{sT}, s{sT}, s{sT4}"); e(f"s_add_u32 s{sT}, s{sT}, {128*start}")
        srd = SW1 if which == 1 else SW2
        p.vmem(f"buffer_load_dword v{vROW}, v{vXTA}, s[{srd}:{srd+3}], s{sT} offen", maybe=True)
        p.label(L)
    def touches(seg):
        o = []
        if W1T == 4 and T1S <= seg < T1S + 12:
            q = seg - T1S
            o.append(lambda: touch(seg % 8, 1, 1 + q // 4, 18 * (q % 4), 18))
        if W2T == 4 and T2S <= seg < T2S + T2N:
            c = 324 // T2N
            o.append(lambda: touch((seg + 4) % 8, 2, 0, c * (seg - T2S), c))
        return o
    e(f"v_bfe_u32 v{T[12]}, v{vLANE}, 1, 3")
    e(f"v_xor_b32 v{T[12]}, s{sW}, v{T[12]}")
    e(f"v_lshlrev_b32 v{T[12]}, 4, v{T[12]}")
    e(f"v_lshl_add_u32 v{T[12]}, v{vI}, 7, v{T[12]}")
    e(f"v_lshl_add_u32 v{T[12]}, v{vG}, 12, v{T[12]}")
    e(f"s_sub_u32 s51, s{sFJ}, 7")
    e(f"s_lshl_b32 s{sT}, s51, 14")
    e(f"v_add_u32 v{T[12]}, s{sT}, v{T[12]}")
    e(f"v_add_u32 v{T[13]}, 8, v{T[12]}")
    e(f"v_lshlrev_b32 v{T[14]}, 4, v{vLANE}")
    e(f"s_lshl_b32 s52, s51, 18"); e(f"s_lshl_b32 s{sT}, s{sW}, 15"); e(f"s_add_u32 s52, s52, s{sT}")
    e(f"s_lshl_b32 s{sT}, s{sMI}, 10"); e(f"s_add_u32 s52, s52, s{sT}"); e(f"s_add_u32 s52, s52, {X4_OFF}")
    e(f"s_add_u32 s53, s52, 16384")
    def w2_prefetch():
        e(f"v_min_u32 v{T[9]}, 323, v0")
        e(f"v_lshlrev_b32 v{T[9]}, 7, v{T[9]}")
        e(f"s_and_b32 s{sT5}, s{sMI}, 7")
        e(f"s_mul_i32 s{sT}, s{sFJ}, {288*1152}")
        e(f"s_mul_i32 s{sT4}, s{sT5}, {324*128}")
        e(f"s_add_u32 s{sT}, s{sT}, s{sT4}")
        p.vmem(f"buffer_load_dword v254, v{T[9]}, s[{SW2}:{SW2+3}], s{sT} offen", tag='pf')
    XA = lambda j: SA + j
    e(f"v_and_b32 v{T[10]}, 31, v{vLANE}")
    e(f"v_bfe_u32 v{T[9]}, v{vLANE}, 1, 3")
    e(f"v_xor_b32 v{T[9]}, v{T[9]}, v{T[5]}")
    e(f"s_lshl_b32 s{sT}, s{sQI}, 5")
    e(f"v_add_u32 v{vROW}, s{sT}, v{T[10]}")
    e(f"v_lshlrev_b32 v{T[10]}, 7, v{vROW}")
    for j in range(6):
        e(f"s_mul_i32 s{sT}, s{sH}, 6"); e(f"s_add_u32 s{sT}, s{sT}, {j}")
        e(f"s_and_b32 s{sT4}, s{sT}, 3"); e(f"s_lshl_b32 s{sT4}, s{sT4}, 1")
        e(f"s_lshr_b32 s{sT}, s{sT}, 2"); e(f"s_lshl_b32 s{sT}, s{sT}, 14")
        e(f"v_xor_b32 v{T[11]}, s{sT4}, v{T[9]}")
        e(f"v_lshl_add_u32 v{T[11]}, v{T[11]}, 4, v{T[10]}")
        e(f"v_add_u32 v{XA(j)}, s{sT}, v{T[11]}")
    e(f"v_lshrrev_b32 v{T[9]}, 1, v{T[4]}")
    e(f"v_lshl_add_u32 v{T[9]}, v{vG}, 2, v{T[9]}")
    e(f"v_and_b32 v{T[10]}, 1, v{T[4]}")
    e(f"v_lshl_add_u32 v{T[9]}, v{T[10]}, 4, v{T[9]}")
    e(f"v_bfe_u32 v{T[10]}, v{vLANE}, 1, 1")
    e(f"s_and_b32 s{sT}, s{sW}, 6")
    e(f"v_or_b32 v{T[10]}, s{sT}, v{T[10]}")
    e(f"v_lshlrev_b32 v{T[11]}, 1, v{vG}")
    e(f"v_xor_b32 v{T[10]}, v{T[10]}, v{T[11]}")
    e(f"v_lshlrev_b32 v{T[9]}, 7, v{T[9]}")
    e(f"v_and_b32 v{T[11]}, 1, v{vLANE}")
    e(f"v_lshl_add_u32 v{T[9]}, v{T[11]}, 3, v{T[9]}")
    e(f"s_and_b32 s{sT}, s{sW}, 1"); e(f"s_lshl_b32 s{sT}, s{sT}, 13")
    e(f"s_lshl_b32 s{sT4}, s{sFJ}, 14"); e(f"s_add_u32 s{sT}, s{sT}, s{sT4}")
    e(f"v_add_u32 v{T[9]}, s{sT}, v{T[9]}")
    e(f"v_lshl_add_u32 v{vXTA}, v{T[10]}, 4, v{T[9]}")
    vXTB = SA + 6
    e(f"v_xor_b32 v{vXTB}, 16, v{vXTA}")
    ACC = [SA + 8, SA + 9, SA + 10]
    for a in ACC: e(f"v_mov_b32 v{a}, 0")
    for i in range(4): e(f"v_mov_b32 v{WF+i}, s{sONE}")

    D = [(('B', 0, 0), ('B', 0, 1)), (('8', 0), ('8', 1)), (('B', 0, 2), ('B', 0, 3)), (('B', 0, 4), ('B', 0, 5)), (('8', 2), None)]
    for tau in (1, 2, 3):
        for k in range(3): D.append((('B', tau, 2*k), ('B', tau, 2*k+1)))
    p2 = [('E', 0, 0), ('E', 0, 1), ('E', 1, 0), ('E', 1, 1), ('E', 0, 2), ('E', 1, 2)]
    for j in range(2, 9): p2 += [('E', j, k) for k in range(3)]
    for i in range(0, len(p2), 2): D.append((p2[i], p2[i+1] if i + 1 < len(p2) else None))
    uloc = {}
    for k, (a, b) in enumerate(D):
        uloc[a] = (k, 0)
        if b: uloc[b] = (k, 1)
    def uparams(u):
        if u[0] == 'B': return SW1, vOW1, 96 * u[2] * 9216 + 128 * u[1], sRP1, sRP1X, sRP1H
        if u[0] == '8': return SW1, vOW8, 192 * u[1] * 9216, sRP8, sRP8X, sRP8H
        return SW2, vOW2, 96 * u[2] * 1152 + 128 * u[1], (sRP2K0 if u[2] == 0 else sRP2), sRP2X, None
    def dma_double(k):
        ops = []
        lds0 = slot_of(k) * 24576
        def one(m0r, m0i, sr_, base, srd, vo, maybe=False):
            e(f"s_add_u32 m0, s{m0r}, {m0i}")
            e(f"s_add_u32 s{sT}, s{sr_}, {base}")
            p.vmem(f"buffer_load_dwordx4 v{vo}, s[{srd}:{srd+3}], s{sT} offen lds", tag=('u', k), maybe=maybe)
        for half, u in enumerate(D[k]):
            if not u: continue
            srd, vo, base, r, rx, rh = uparams(u)
            ops.append(lambda srd=srd, vo=vo, base=base, r=r, half=half: one(sM0W, lds0 + half*12288, r, base, srd, vo))
        a, b = D[k]
        if b and a[0] != 'E':
            srd, vo, base, r, rx, rh = uparams(a)
            ops.append(lambda: one(sM0H, lds0, rh, base, srd, vo))
        else:
            for half, u in enumerate(D[k]):
                if not u: continue
                srd, vo, base, r, rx, rh = uparams(u)
                def extra(srd=srd, vo=vo, base=base, rx=rx, half=half):
                    L = p.newlabel("K1_X")
                    e(f"s_cmp_eq_u32 s{sH}, {half}")
                    e(f"s_cbranch_scc0 {L}")
                    one(sM0X, lds0 + half*12288, rx, base, srd, vo, maybe=True)
                    p.label(L)
                ops.append(extra)
        return ops

    if PRO: stamp("setup")
    for R in range(3):
        if R: kgen_piece(R)
        p.wait(vm=[('x', 3*R+2)], lg_all=True)
        e("s_barrier")
        stamp(f"xround{R}")
        for j in range(6):
            p.ds(f"ds_read_b128 {vr(Q(12*R+j), 4)}, v{XA(j)}", tag=('raw', R, j))
        if R == 1 or (R == 2 and not DL):
            for k in (2*(R-1), 2*(R-1)+1):
                for op in dma_double(k): op()
        if R < 2:
            for j in range(6): e(f"v_add_u32 v{XA(j)}, 49152, v{XA(j)}")
        L = p.newlabel("K1_XT")
        e(f"s_sub_u32 s{sT}, s{sFJ}, {3*R}")
        e(f"s_cmp_lt_u32 s{sT}, 3")
        e(f"s_cbranch_scc0 {L}")
        for job in range(2):
            e(f"ds_read_b64_tr_b16 {vr(vXT+4*job, 2)}, v{vXTA} offset:{4096*job}")
            e(f"ds_read_b64_tr_b16 {vr(vXT+4*job+2, 2)}, v{vXTB} offset:{4096*job+256}")
        e("s_waitcnt lgkmcnt(0)")
        p.label(L)
        L = p.newlabel("K1_X4")
        e(f"s_sub_u32 s{sT}, s51, {3*R}")
        e(f"s_cmp_lt_u32 s{sT}, 3")
        e(f"s_cbranch_scc0 {L}")
        e(f"ds_read2st64_b64 {vr(SC,4)}, v{T[12]} offset0:0 offset1:4")
        e(f"ds_read2st64_b64 {vr(SC+4,4)}, v{T[13]} offset0:0 offset1:4")
        e("s_waitcnt lgkmcnt(0)")
        p.vmem(f"buffer_store_dwordx4 {vr(SC,4)}, v{T[14]}, s[{SWS}:{SWS+3}], s52 offen {STM}", maybe=True)
        p.vmem(f"buffer_store_dwordx4 {vr(SC+4,4)}, v{T[14]}, s[{SWS}:{SWS+3}], s53 offen {STM}", maybe=True)
        p.label(L)
        for j in range(6):
            p.wait(lg=[('raw', R, j)])
            first = (R == 0 and j == 0)
            e(f"v_mfma_f32_32x32x16_bf16 {vr(SB,16)}, {vr(WF,4)}, {vr(Q(12*R+j),4)}, " + ("0" if first else vr(SB,16)))
            for d in range(4):
                x = Q(12*R+j) + d
                e(f"v_dot2_f32_bf16 v{ACC[1+(d&1)]}, v{x}, v{x}, v{ACC[1+(d&1)]}")
        if (R == 1 and W2T == 0) or (R == 2 and W2T == 7): w2_prefetch()
    p.wait(vm=['bias'])
    e(f"v_lshlrev_b32 v{T[7]}, 16, v{T[7]}")
    e(f"v_mov_b32 v{T[5]}, {fhex(ALPHA)}")
    e(f"v_mov_b32 v{T[4]}, {fhex(ALPHA*0.5)}")
    e(f"v_cmp_gt_u32 vcc, 32, v0")
    e(f"v_min_u32 v{T[6]}, 287, v0")
    e(f"v_lshlrev_b32 v{T[6]}, 2, v{T[6]}")
    e(f"v_cndmask_b32 v{T[5]}, v{T[5]}, v{T[4]}, vcc")
    e(f"v_add_u32 v{T[6]}, {BIAS}, v{T[6]}")
    e(f"v_mul_f32 v{T[7]}, v{T[7]}, v{T[5]}")
    e(f"v_cmp_gt_u32 vcc, 288, v0")
    e(f"s_and_saveexec_b64 s[54:55], vcc")
    p.ds(f"ds_write_b32 v{T[6]}, v{T[7]}")
    e(f"s_mov_b64 exec, s[54:55]")
    e(f"v_add_f32 v{ACC[1]}, v{ACC[1]}, v{ACC[2]}")
    e(f"v_mov_b32 v{T[0]}, v{ACC[1]}")
    e(f"s_lshl_b32 s{sT}, s{sH}, 3"); e(f"s_add_u32 s{sT}, s{sT}, {STAT}")
    e(f"v_lshlrev_b32 v{T[4]}, 4, v{vROW}")
    e(f"v_permlane32_swap_b32 v{ACC[1]}, v{T[0]}")
    e(f"v_add_u32 v{T[5]}, s{sT}, v{T[4]}")
    e(f"v_mov_b32 v{ACC[0]}, v{SB}")
    e(f"v_add_f32 v{ACC[1]}, v{ACC[1]}, v{T[0]}")
    p.ds(f"ds_write_b64 v{T[5]}, v[{ACC[0]}:{ACC[1]}]")
    e(f"v_add_u32 v{T[4]}, {STAT}, v{T[4]}")
    kgen_piece(3)
    assert kgst[0] == 8
    p.wait(lg_all=True)
    e("s_barrier")
    stamp("statbar")
    p.ds(f"ds_read_b128 {vr(T[8], 4)}, v{T[4]}", tag='st')
    def bias_init(S, tau):
        if tau == 8: return [lambda gg=gg: p.ds(f"ds_read_b128 {vr(S + gg*4, 4)}, v{vBI8} offset:{gg*32}", tag=('bias', tau)) for gg in range(4)]
        return [lambda gg=gg: p.ds(f"ds_read_b128 {vr(S + gg*4, 4)}, v{vBI} offset:{(32+64*tau+8*gg)*4}", tag=('bias', tau)) for gg in range(4)]
    for op in bias_init(SA, 0) + bias_init(SB, 8): op()
    p.wait(lg=['st'])
    inv = 1.0 / 576.0
    b = T[8]
    for s_ in [f"v_add_f32 v{b}, v{b}, v{b+2}", f"v_add_f32 v{b+1}, v{b+1}, v{b+3}",
            f"v_mul_f32 v{b}, {fhex(inv)}, v{b}", f"v_mul_f32 v{b+1}, {fhex(inv)}, v{b+1}",
            f"v_fma_f32 v{b+1}, -v{b}, v{b}, v{b+1}", f"v_max_f32 v{b+1}, 0, v{b+1}",
            f"v_cvt_pk_bf16_f32 v{b+2}, v{b}, v{b+1}", f"v_lshlrev_b32 v{b}, 16, v{b+2}",
            f"v_and_b32 v{b+1}, s{sMASK}, v{b+2}", f"v_add_f32 v{b+1}, {fhex(1e-5)}, v{b+1}",
            f"v_cvt_pk_bf16_f32 v{b+1}, v{b+1}, v{b+1}", f"v_and_b32 v{b+1}, s{sMASK}, v{b+1}",
            f"v_sqrt_f32 v{b+1}, v{b+1}", "s_nop 0", f"v_cvt_pk_bf16_f32 v{b+1}, v{b+1}, v{b+1}",
            f"v_and_b32 v{b+1}, s{sMASK}, v{b+1}", f"v_rcp_f32 v{b+2}, v{b+1}",
            f"v_lshlrev_b32 v{T[4]}, 3, v{vROW}",
            f"v_mul_f32 v{b+3}, -v{b}, v{b+2}", f"v_add_u32 v{T[4]}, {RCT}, v{T[4]}",
            f"v_mul_f32 v{vR}, s{sAL}, v{b+2}", f"v_mul_f32 v{vC}, s{sAL}, v{b+3}"]: e(s_)
    p.ds(f"ds_write_b64 v{T[4]}, v[{b+2}:{b+3}]", tag='w')

    seq = []
    def G(k, areg, imm, d2, mfs, need=()):
        seq.append(dict(kind='G', unit=k, areg=areg, imm=imm, d2=d2, mf=mfs, need=list(need)))
    def BAR(bg=(), pre=()):
        seq.append(dict(kind='BAR', bg=list(bg), first=list(pre)))
    def p1_group(tau, S, Dk, own, j, need=()):
        k = uloc[('B', tau, 2*Dk)][0]; slot = k % 4
        q = Q(12*Dk + 6*own + j)
        G(k, vA[('n', own, slot >> 1)], (slot & 1) * 24576 + j * 2048, 512,
          [lambda wf: f"v_mfma_f32_32x32x16_bf16 {vr(S,16)}, {vr(wf,4)}, {vr(q,4)}, {vr(S,16)}"], need)
    def b8_group(Dk, j, need=()):
        k, half = uloc[('8', Dk)]; slot = k % 4
        assert slot < 2
        q = Q(12*Dk + j)
        G(k, vA['8'], slot * 24576 + half * 12288 + j * 2048, 512,
          [lambda wf: f"v_mfma_f32_32x32x16_bf16 {vr(SB,16)}, {vr(wf,4)}, {vr(q,4)}, {vr(SB,16)}"], need)
    def norm_ops(slot0, buf):
        ops = []
        for sg in range(2):
            q = Q(slot0 + sg)
            tt = [TMP + 8*sg + i for i in range(8)]
            for d in range(4):
                ops.append(lambda d=d, q=q, tt=tt: e(f"v_lshlrev_b32 v{tt[2*d]}, 16, v{q+d}"))
                ops.append(lambda d=d, q=q, tt=tt: e(f"v_and_b32 v{tt[2*d+1]}, s{sMASK}, v{q+d}"))
            for d in range(8):
                ops.append(lambda d=d, tt=tt: e(f"v_fma_f32 v{tt[d]}, v{tt[d]}, v{vR}, v{vC}"))
            for d in range(4):
                ops.append(lambda d=d, q=q, tt=tt: e(f"v_cvt_pk_bf16_f32 v{q+d}, v{tt[2*d]}, v{tt[2*d+1]}"))
            ops.append(lambda q=q, sg=sg: p.ds(f"ds_write_b128 v{vPW}, {vr(q,4)} offset:{buf*16384+sg*1024}", tag='w'))
        return ops
    def gelu_ops(regs4, dst2, tbase):
        ops = []
        tt = [tbase + i for i in range(4)]
        for i in range(4): ops.append(lambda i=i: e(f"v_fmaak_f32 v{tt[i]}, v{regs4+i}, v{regs4+i}, {fhex(CA)}"))
        for i in range(4): ops.append(lambda i=i: e(f"v_mul_f32 v{tt[i]}, v{regs4+i}, v{tt[i]}"))
        for i in range(4): ops.append(lambda i=i: e(f"v_exp_f32 v{tt[i]}, -v{tt[i]}"))
        for i in range(4): ops.append(lambda i=i: e(f"v_fma_f32 v{tt[i]}, v{tt[i]}, s{sAL}, s{sAL}"))
        for i in range(4): ops.append(lambda i=i: e(f"v_rcp_f32 v{tt[i]}, v{tt[i]}"))
        for i in range(4): ops.append(lambda i=i: e(f"v_mul_f32 v{tt[i]}, v{regs4+i}, v{tt[i]}"))
        for i in range(2): ops.append(lambda i=i: e(f"v_cvt_pk_bf16_f32 v{dst2+i}, v{tt[2*i]}, v{tt[2*i+1]}"))
        return ops
    def gelu_block(S, tau):
        ops = []
        slot = (1 + 2*tau) if tau < 3 else 0
        for kap in range(2):
            pw = TMP + 8 + 4*kap
            for t in range(2):
                ops += gelu_ops(S + (kap*2+t)*4, pw + 2*t, TMP + 4*t)
            ops.append(lambda pw=pw, kap=kap: p.ds(f"ds_write_b128 v{vPW}, {vr(pw,4)} offset:{slot*8192+kap*1024}", tag='w'))
        return ops
    def s8_write():
        return [lambda gg=gg: p.ds(f"ds_write_b128 v{vPW}, {vr(SB+4*gg,4)} offset:{24576 + (gg>>1)*16384 + (gg&1)*1024}", tag='w') for gg in range(4)]
    def s8_read():
        ops = []
        for hh in range(2):
            for c in range(2):
                dst = (SC if hh == 0 else vXT) + 4*c
                ops.append(lambda hh=hh, c=c, dst=dst: p.ds(f"ds_read_b128 {vr(dst,4)}, v{v8R} offset:{24576 + hh*8192 + c*1024}", tag='s8'))
        return ops
    def gelu_b8():
        ops = [lambda: p.wait(lg=['s8'])]
        for i in range(8): ops.append(lambda i=i: e(f"v_add_f32 v{SC+i}, v{SC+i}, v{vXT+i}"))
        pw = TMP + 8
        for t in range(2): ops += gelu_ops(SC + 4*t, pw + 2*t, TMP + 4*t)
        ops.append(lambda: p.ds(f"ds_write_b128 v{vP8}, {vr(pw,4)}", tag='w'))
        return ops
    def pread(kk):
        slot = kk if kk < 7 else kk - 7
        return [lambda sg=sg: p.ds(f"ds_read_b128 {vr(Q(2*kk+sg),4)}, v{vPR} offset:{slot*8192+sg*256}", tag=('P', kk)) for sg in range(2)]
    def xt_job():
        L = p.newlabel("K1_XJ")
        e(f"s_cmp_lt_u32 s{sFJ}, 9")
        e(f"s_cbranch_scc0 {L}")
        e(f"s_lshl_b32 s{sT}, s{sFJ}, 6"); e(f"s_and_b32 s{sT4}, s{sW}, 6"); e(f"s_lshl_b32 s{sT4}, s{sT4}, 3")
        e(f"s_add_u32 s{sT}, s{sT}, s{sT4}"); e(f"s_lshl_b32 s{sT}, s{sT}, 12")
        e(f"s_lshl_b32 s{sT4}, s{sMI}, 8"); e(f"s_add_u32 s{sT}, s{sT}, s{sT4}")
        e(f"s_and_b32 s{sT4}, s{sW}, 1"); e(f"s_lshl_b32 s{sT5}, s{sT4}, 7"); e(f"s_add_u32 s{sT}, s{sT}, s{sT5}")
        e(f"s_add_u32 s{sT}, s{sT}, {XNT_OFF}")
        e(f"s_lshl_b32 s{sT4}, s{sT4}, 9"); e(f"s_add_u32 s{sT4}, s{sT4}, {RCT}")
        va, vb, v1_, v2_ = SC, SC+1, SC+2, SC+3
        e(f"v_lshlrev_b32 v{vb}, 5, v{vG}")
        e(f"v_add_u32 v{vb}, s{sT4}, v{vb}")
        e(f"s_add_u32 s{sT5}, s{sXM}, {PREG+40960}")
        e(f"v_lshlrev_b32 v{va}, 4, v{vG}")
        e(f"v_lshl_add_u32 v{va}, v{vI}, 7, v{va}")
        e(f"v_add_u32 v{va}, s{sT5}, v{va}")
        for job in range(2):
            x = vXT + 4*job
            for q in range(4):
                e(f"ds_read_b128 {vr(TMP+4*q,4)}, v{vb} offset:{256*job+128*(q>>1)+16*(q&1)}")
            e("s_waitcnt lgkmcnt(0)")
            for d in range(4):
                e(f"v_lshlrev_b32 v{v1_}, 16, v{x+d}")
                e(f"v_and_b32 v{v2_}, s{sMASK}, v{x+d}")
                e(f"v_fma_f32 v{v1_}, v{v1_}, v{TMP+2*d}, v{TMP+2*d+1}")
                e(f"v_fma_f32 v{v2_}, v{v2_}, v{TMP+8+2*d}, v{TMP+8+2*d+1}")
                e(f"v_cvt_pk_bf16_f32 v{x+d}, v{v1_}, v{v2_}")
            e(f"ds_write_b128 v{va}, {vr(x,4)} offset:{64*job}")
        e(f"v_lshlrev_b32 v{va}, 4, v{vLANE}")
        e(f"v_add_u32 v{va}, s{sT5}, v{va}")
        e(f"v_lshrrev_b32 v{vb}, 3, v{vLANE}")
        e(f"v_lshlrev_b32 v{vb}, 12, v{vb}")
        e(f"v_and_b32 v{v1_}, 7, v{vLANE}")
        e(f"v_lshl_add_u32 v{vb}, v{v1_}, 4, v{vb}")
        e("s_waitcnt lgkmcnt(0)")
        e(f"ds_read_b128 {vr(TMP,4)}, v{va}")
        e(f"ds_read_b128 {vr(TMP+4,4)}, v{va} offset:1024")
        e(f"s_add_u32 s{sT4}, s{sT}, {8*4096}")
        e("s_waitcnt lgkmcnt(0)")
        p.vmem(f"buffer_store_dwordx4 {vr(TMP,4)}, v{vb}, s[{SWS}:{SWS+3}], s{sT} offen {STM}", maybe=True)
        p.vmem(f"buffer_store_dwordx4 {vr(TMP+4,4)}, v{vb}, s[{SWS}:{SWS+3}], s{sT4} offen {STM}", maybe=True)
        e("s_nop 1")
        p.label(L)

    def xt_ops():
        ops = []
        A = lambda s_: ops.append(lambda: e(s_))
        va, vb, v1_, v2_, vc, vd = SC, SC+1, SC+2, SC+3, SC+4, SC+5
        def setup():
            e(f"s_lshl_b32 s51, s{sFJ}, 6"); e(f"s_and_b32 s52, s{sW}, 6"); e(f"s_lshl_b32 s52, s52, 3")
            e(f"s_add_u32 s51, s51, s52"); e(f"s_lshl_b32 s51, s51, 12")
            e(f"s_lshl_b32 s52, s{sMI}, 8"); e(f"s_add_u32 s51, s51, s52")
            e(f"s_and_b32 s52, s{sW}, 1"); e(f"s_lshl_b32 s53, s52, 7"); e(f"s_add_u32 s51, s51, s53")
            e(f"s_add_u32 s51, s51, {XNT_OFF}")
            e(f"s_lshl_b32 s52, s52, 9"); e(f"s_add_u32 s52, s52, {RCT}")
            e(f"v_lshlrev_b32 v{vb}, 5, v{vG}")
            e(f"v_add_u32 v{vb}, s52, v{vb}")
            e(f"s_add_u32 s53, s{sXM}, {PREG+40960}")
            for q in range(4):
                p.ds(f"ds_read_b128 {vr(TMP+4*q,4)}, v{vb} offset:{128*(q>>1)+16*(q&1)}", tag='xr0')
        ops.append(setup)
        A(f"v_lshlrev_b32 v{va}, 4, v{vG}")
        A(f"v_lshl_add_u32 v{va}, v{vI}, 7, v{va}")
        A(f"v_add_u32 v{va}, s53, v{va}")
        A(f"v_lshlrev_b32 v{vc}, 4, v{vLANE}")
        A(f"v_add_u32 v{vc}, s53, v{vc}")
        A(f"v_lshrrev_b32 v{vd}, 3, v{vLANE}")
        A(f"v_lshlrev_b32 v{vd}, 12, v{vd}")
        A(f"v_and_b32 v{v1_}, 7, v{vLANE}")
        A(f"v_lshl_add_u32 v{vd}, v{v1_}, 4, v{vd}")
        A(f"s_cmp_lt_u32 s{sFJ}, 9\n    s_cselect_b32 s52, 0, 0x10000000\n    v_add_u32 v{vd}, s52, v{vd}\n    s_add_u32 s52, s51, {8*4096}")
        for job in range(2):
            x = vXT + 4*job
            ops.append(lambda job=job: p.wait(lg=[f'xr{job}']))
            for d in range(4):
                A(f"v_lshlrev_b32 v{v1_}, 16, v{x+d}")
                A(f"v_and_b32 v{v2_}, s{sMASK}, v{x+d}")
                A(f"v_fma_f32 v{v1_}, v{v1_}, v{TMP+2*d}, v{TMP+2*d+1}")
                A(f"v_fma_f32 v{v2_}, v{v2_}, v{TMP+8+2*d}, v{TMP+8+2*d+1}")
                A(f"v_cvt_pk_bf16_f32 v{x+d}, v{v1_}, v{v2_}")
            def wr(job=job, x=x):
                p.ds(f"ds_write_b128 v{va}, {vr(x,4)} offset:{64*job}")
                if job == 0:
                    for q in range(4):
                        p.ds(f"ds_read_b128 {vr(TMP+4*q,4)}, v{vb} offset:{256+128*(q>>1)+16*(q&1)}", tag='xr1')
                else:
                    p.ds(f"ds_read_b128 {vr(TMP,4)}, v{vc}", tag='xo')
                    p.ds(f"ds_read_b128 {vr(TMP+4,4)}, v{vc} offset:1024", tag='xo')
            ops.append(wr)
        def st():
            p.wait(lg=['xo'])
            p.vmem(f"buffer_store_dwordx4 {vr(TMP,4)}, v{vd}, s[{SWS}:{SWS+3}], s51 offen")
            p.vmem(f"buffer_store_dwordx4 {vr(TMP+4,4)}, v{vd}, s[{SWS}:{SWS+3}], s52 offen")
            e("s_nop 1")
        ops.append(st)
        return ops
    for op in norm_ops(0, 0): op()
    for r in range(9):
        Dk, j = divmod(r, 3)
        pre = [lambda sg=sg, r=r, Dk=Dk, j=j: p.ds(f"ds_read_b128 {vr(Q(12*Dk+6+2*j+sg),4)}, v{vXR} offset:{(r%2)*16384+sg*1024}", tag=('oth', r)) for sg in range(2)]
        bg = []
        if r + 1 < 9:
            Dn, jn = divmod(r + 1, 3)
            bg = norm_ops(12*Dn + 2*jn, (r + 1) % 2)
            if W1T == 2 and r < 3: bg = [lambda wv=2*r: w1_touch(wv), lambda wv=2*r+1: w1_touch(wv)] + bg
            if W1T == 5 and r == 0: bg = [lambda: w1_touch(5)] + bg
            if W1T == 3 and r < 6: bg = [lambda wv=r: w1_touch(wv)] + bg
        else:
            bg = xt_ops() if XI else [xt_job]
        if W2T == 2 and r >= 3: bg = bg[:6] + [lambda wv=r-3: w2_touch(wv)] + bg[6:]
        bg = bg[:8] + touches(r) + bg[8:]
        BAR(bg=bg, pre=pre)
        nd = [('bias', 0), ('bias', 8)] if r == 0 else []
        for sg in range(2):
            b8_group(Dk, 2*j+sg, nd); p1_group(0, SA, Dk, 0, 2*j+sg, nd)
        for sg in range(2): p1_group(0, SA, Dk, 1, 2*j+sg, [('oth', r)])
    Sbuf = {0: SA, 1: SB, 2: SA, 3: SB}
    for tau in (1, 2, 3):
        gl = gelu_block(Sbuf[tau-1], tau-1)
        n3 = (len(gl) + 2) // 3
        for Dk in range(3):
            pre = []
            if tau == 1 and Dk == 0: pre = s8_write() + bias_init(SB, 1)
            bg = gl[Dk*n3:(Dk+1)*n3]
            if W2T == 5 and tau == 1: bg = bg[:6] + [lambda wv=Dk: w2_touch5(wv)] + bg[6:]
            if W2T == 6 and tau == 2: bg = bg[:6] + [lambda wv=Dk: w2_touch5(wv)] + bg[6:]
            if W2T == 1 and tau < 3: bg = bg[:6] + [lambda wv=3*(tau-1)+Dk: w2_touch(wv)] + bg[6:]
            if tau == 1 and Dk == 1: bg = s8_read() + bg
            if tau == 3 and Dk == 0: bg = gelu_b8() + bg
            if Dk == 2 and tau < 3: bg = bg + bias_init(Sbuf[tau+1], tau+1)
            if tau == 3 and Dk == 1: bg = pread(1) + pread(2) + pread(0) + bg
            if tau == 3 and Dk == 2: bg = pread(3) + pread(4) + bg
            bg = bg[:8] + touches(6 + 3*tau + Dk) + bg[8:]
            BAR(bg=bg, pre=pre)
            for own in range(2):
                for j in range(6):
                    p1_group(tau, Sbuf[tau], Dk, own, j, [('bias', tau)] if (Dk == 0 and own == 0 and j == 0) else [])
    OB = {0: Q(18), 1: Q(22)}
    ET = Q(26)
    def epi(j):
        O = OB[j % 2]
        ops = []
        for t in range(2):
            dst = ET + 4*t + 8*(j % 2)
            for sg in range(2):
                for i in range(2):
                    ops.append(lambda t=t, sg=sg, i=i, dst=dst: e(f"v_cvt_pk_bf16_f32 v{dst+2*sg+i}, v{O+(t*2+sg)*4+2*i}, v{O+(t*2+sg)*4+2*i+1}"))
            def st(t=t, dst=dst):
                e(f"s_mov_b32 s{sT}, {(16*j+4*t)*16384}")
                p.vmem(f"buffer_store_dwordx4 {vr(dst,4)}, v{vOO}, s[{SWS}:{SWS+3}], s{sT} offen {STM if STJ[j] == '1' else ''}")
            if not NOST: ops.append(st)
        return ops
    gl3 = gelu_block(SB, 3)
    for i, u in enumerate(p2):
        _, j, k = u
        kd, half = uloc[u]
        if half == 0:
            bg = []; pre = []
            if i == 0: pre = pread(5) + pread(6); bg = gl3[:len(gl3)//2]
            if i == 2: bg = gl3[len(gl3)//2:]
            if i == 4: pre = pread(7) + pread(8) + [lambda t=t: e(f"v_add_u32 v{vA[('p',t,2)]}, 0x18000, v{vA[('p',t,0)]}") for t in (0, 1)]
            BAR(bg=bg, pre=pre)
        slot = slot_of(kd)
        O = OB[j % 2]
        for jj in range(3):
            kk = 3*k + jj
            for t in range(2):
                first = (kk == 0)
                mfs = [lambda wf, t=t, sg=sg, kk=kk, first=first, O=O: f"v_mfma_f32_16x16x32_bf16 {vr(O+(t*2+sg)*4,4)}, {vr(wf,4)}, {vr(Q(2*kk+sg),4)}, " + ("0" if first else vr(O+(t*2+sg)*4,4)) for sg in range(2)]
                G(kd, vA[('p', t, slot >> 1)], (slot & 1) * 24576 + half * 12288 + jj * 4096, 2048, mfs, [('P', kk)])
        if k == 2:
            seq.append(dict(kind='EPI', ops=epi(j)))
    gidx = [i for i, s in enumerate(seq) if s['kind'] == 'G']
    pos_of_g = {g: n for n, g in enumerate(gidx)}
    bars = [i for i, s in enumerate(seq) if s['kind'] == 'BAR']
    first_read_pos = {}; last_use = {}
    for n, g in enumerate(gidx):
        k = seq[g]['unit']
        rp = gidx[n - RA] if n - RA >= 0 else -1
        first_read_pos.setdefault(k, rp)
        last_use[k] = g
    land = {}; rel = {}
    for k in first_read_pos:
        prev = [b for b in bars if b < first_read_pos[k]]
        land.setdefault(prev[-1] if prev else bars[0], []).append(k)
        nxt = [b for b in bars if b > last_use[k]]
        if nxt and k + 4 < len(D) and not (R6 and k + 4 in ISS6): rel.setdefault(nxt[0], []).append(k + 4)
    if R6:
        assert len(D) == 28 and len(bars) == 32 and D[14][0][0] == 'E' and D[13][0][0] == 'B'
        assert rel[bars[21]] == [20]
        for k in sorted(ISS6): rel.setdefault(bars[ISS6[k]], []).append(k)
    if DL:
        rel.setdefault(bars[0], []).append(2)
        rel.setdefault(bars[DL-1], []).append(3)
    wf_of = {}
    def issue_reads(n):
        if n >= len(gidx): return
        s = seq[gidx[n]]
        wf = WF + 4 * (n % NWF)
        wf_of[n] = wf
        if NOREAD: return
        p.ds(f"ds_read_b64_tr_b16 {vr(wf,2)}, v{s['areg']} offset:{s['imm']}", tag=('wf', n))
        p.ds(f"ds_read_b64_tr_b16 {vr(wf+2,2)}, v{s['areg']} offset:{s['imm']+s['d2']}", tag=('wf', n))
    bgq = []
    def groups_left(i):
        c = 0
        for s in seq[i:]:
            if s['kind'] == 'BAR': break
            if s['kind'] == 'G': c += 1
        return c
    delay = []
    for i, s in enumerate(seq):
        if s['kind'] == 'EPI':
            delay.append([3, s['ops']])
        elif s['kind'] == 'BAR':
            for op in bgq: op()
            p.wait(vm=[('u', k) for k in land.get(i, [])], lg=['w'])
            if not NOBAR: e("s_barrier")
            bi = bars.index(i)
            if bi in ((0, 3, 6, 9, 12, 15, 18, 21, 24, 27, 30) if PRO else (0, 9, 18)): stamp(f"bar{bi}")
            if i == bars[0]:
                for n in range(RA): issue_reads(n)
            if bi == 9: e("s_nop 7")
            for op in s['first']: op()
            dm = []
            for k in rel.get(i, []):
                if not NODMA: dm += dma_double(k)
            bgq = []
            b = [] if NOBG else list(s['bg'])
            step = max(1, len(b) // (len(dm) + 1)) if dm else 0
            while dm or b:
                if dm: bgq.append(dm.pop(0))
                take = b[:step] if dm else b
                bgq += take; b = b[len(take):]
        else:
            n = pos_of_g[i]
            left = groups_left(i)
            if seq[i-1]['kind'] == 'BAR': segn = left
            done = segn - left
            if PRIO and (done == 0 or (done * 4) // segn != ((done - 1) * 4) // segn):
                e(f"s_setprio {3 - (done * 4) // segn}")
            left = max(left - FRONT, 1)
            for dl in delay: dl[0] -= 1
            while delay and delay[0][0] <= 0: bgq += delay.pop(0)[1]
            k = -(-len(bgq) // left)
            p.wait(lg=[('wf', n)] + s['need'])
            nm = len(s['mf'])
            for mi_, mf in enumerate(s['mf']):
                e(mf(wf_of[n]))
                if mi_ == 0: issue_reads(n + RA)
                lo = (k * mi_) // nm; hi = (k * (mi_ + 1)) // nm
                for op in bgq[lo:hi]: op()
            bgq = bgq[k:]
    e("s_nop 7")
    for op in bgq: op()
    for dl in delay:
        for op in dl[1]: op()
    if DIAG:
        stamp("lastissue")
        e("s_waitcnt vmcnt(0)")
        stamp("end")
        e("s_memrealtime s[100:101]")
        e("s_waitcnt lgkmcnt(0)")
        e(f"v_writelane_b32 v{TMP}, s100, 40")
        for i in range(len(stamps)):
            e(f"s_sub_u32 s{sT}, s{56+2*i}, s56")
            e(f"v_writelane_b32 v{TMP}, s{sT}, {i}")
        e(f"s_lshl_b32 s{sT}, s2, 3"); e(f"s_add_u32 s{sT}, s{sT}, s{sW}"); e(f"s_lshl_b32 s{sT}, s{sT}, 8")
        e(f"s_add_u32 s{sT}, s{sT}, 0x4000000")
        e(f"v_lshlrev_b32 v{TMP+1}, 2, v{vLANE}")
        e(f"buffer_store_dword v{TMP}, v{TMP+1}, s[{SWS}:{SWS+3}], s{sT} offen")
        open("stamps.txt", "w").write(" ".join(stamps))
    p.label("K1_END")
    e("s_endpgm")
    return p.text()
```

```python
from asmlib import *
import math, os
DIAG = int(os.environ.get("DIAG", "0")); PRO = int(os.environ.get("PRO", "0"))
NODMA = int(os.environ.get("NODMA", "0")); NOREAD = int(os.environ.get("NOREAD", "0")); NOST = int(os.environ.get("NOST", "0"))
NOBAR = int(os.environ.get("NOBAR", "0")); NOBG = int(os.environ.get("NOBG", "0"))
PRIO = int(os.environ.get("PRIO", "1")); FRONT = int(os.environ.get("FRONT", "1")); MAP = 1
RA = int(os.environ.get("RA", "4"))

PART_OFF = 0
X4_OFF = 37748736
XNT_OFF = 40108032
KT_OFF = 42467328
KSPL = [int(c) for c in os.environ.get('KSPL', '8000')]
LOG2E = math.log2(math.e)
TW = int(os.environ.get("TW", "0"))
T1S = int(os.environ.get("T1S", "0")); T2S = int(os.environ.get("T2S", "4")); T2N = int(os.environ.get("T2N", "12"))
STM = os.environ.get("STM", "sc1")
KB = int(os.environ.get("KB", "1"))
R6 = int(os.environ.get("R6", "1"))
SLOT6 = {21: 4, 22: 1, 23: 5, 24: 2, 25: 3, 26: 0, 27: 4}
ISS6 = {21: 21, 22: 22, 23: 22, 24: 23, 25: 24, 26: 25, 27: 26}
def slot_of(k): return SLOT6[k] if (R6 and k in SLOT6) else k % 4
STJ = os.environ.get("STJ", "111111111")
DL = int(os.environ.get("DL", "0")); XI = int(os.environ.get("XI", "0"))
W1T = int(os.environ.get("W1T", "1")); W2T = int(os.environ.get("W2T", "7"))
RING = 0; PREG = 98304; STAT = 155648; RCT = 157696; BIAS = 158720
SX, SW1, SW2, SWS, SB1 = 4, 8, 12, 16, 20
sW, sH, sQI, sFJ, sMI = 24, 25, 26, 27, 28
sRP1, sRP1X, sRP8, sRP8X, sRP2, sRP2K0, sRP2X, sM0W, sM0X, sT = 29, 30, 31, 32, 33, 34, 35, 36, 37, 38
sT2, sXS, sXM, sT3, sONE, sMASK, sT4, sT5, sAL = 39, 40, 41, 42, 43, 44, 45, 46, 47
sRP1H, sRP8H, sM0H = 48, 49, 50
vLANE, vG, vI = 1, 2, 3
vA = {}
n = 4
for own in (0, 1):
    for hi in (0, 1):
        vA[('n', own, hi)] = n; n += 1
vA['8'] = 8
for t in (0, 1):
    for hi in (0, 1):
        vA[('p', t, hi)] = 9 + 2*t + hi
vA[('p', 0, 2)] = 4; vA[('p', 1, 2)] = 5
vOW1, vOW8, vOW2 = 13, 14, 15
vPW, vPR, vBI, vBI8, vOO, vXR, vR, vC, v8R, vP8 = 16, 17, 18, 19, 20, 21, 22, 23, 24, 25
vXT = 26
TMP = 34
WF = 50
NWF = 5
vROW, vXTA = 70, 71
SB = 72; SC = 88; SA = 96
QB = 112
def Q(slot): return QB + slot * 4
C0 = -2.0 * 0.7978845608028654 * math.log2(math.e)
C1 = C0 * 0.044715
ALPHA = (-C1) ** (1.0 / 3.0)
CA = -C0 / ALPHA

def gen():
    p = Prog()
    e = p.emit
    stamps = []
    def stamp(name):
        if DIAG and len(stamps) < 13:
            e(f"s_memtime s[{56+2*len(stamps)}:{57+2*len(stamps)}]")
            stamps.append(name)
    T = [TMP + i for i in range(16)]
    e("s_cmp_ge_u32 s2, 256")
    e("s_cbranch_scc1 K1_END")
    stamp("start")
    e("s_load_dwordx2 s[4:5], s[0:1], 0")
    e("s_load_dwordx4 s[48:51], s[0:1], 80")
    e("s_load_dwordx2 s[12:13], s[0:1], 96")
    e("s_load_dwordx2 s[16:17], s[0:1], 128")
    e("s_load_dwordx16 s[84:99], s[0:1], 8")
    e(f"v_lshrrev_b32 v{T[0]}, 6, v0")
    e(f"v_and_b32 v{vLANE}, 63, v0")
    e(f"v_readfirstlane_b32 s{sW}, v{T[0]}")
    e(f"v_lshrrev_b32 v{vG}, 4, v{vLANE}")
    e(f"v_and_b32 v{vI}, 15, v{vLANE}")
    nb = 1 + MAP
    e("s_and_b32 s3, s2, 7")
    e(f"s_lshr_b32 s{sMI}, s2, 3")
    e(f"s_and_b32 s{sFJ}, s{sMI}, {(1<<nb)-1}")
    e(f"s_lshr_b32 s{sT}, s3, {MAP}")
    e(f"s_lshl_b32 s{sT}, s{sT}, {nb}")
    e(f"s_add_u32 s{sFJ}, s{sFJ}, s{sT}")
    e(f"s_lshr_b32 s{sMI}, s{sMI}, {nb}")
    e(f"s_and_b32 s3, s3, {(1<<MAP)-1}")
    e(f"s_lshl_b32 s3, s3, {4-MAP}")
    e(f"s_add_u32 s{sMI}, s{sMI}, s3")
    e(f"s_lshr_b32 s{sH}, s{sW}, 2")
    e(f"s_and_b32 s{sQI}, s{sW}, 3")
    e(f"s_mov_b32 s{sONE}, 0x3f803f80")
    e(f"s_mov_b32 s{sMASK}, 0xffff0000")
    e(f"s_mov_b32 s{sAL}, {fhex(ALPHA)}")
    e(f"v_lshrrev_b32 v{T[2]}, 3, v{vLANE}")
    e(f"v_and_b32 v{T[3]}, 7, v{vLANE}")
    e(f"v_xor_b32 v{T[4]}, v{vG}, v{T[3]}")
    e(f"v_mul_u32_u24 v{T[5]}, 2304, v{T[2]}")
    e(f"v_lshl_add_u32 v{T[0]}, v{T[4]}, 4, v{T[5]}")
    e(f"v_xor_b32 v{T[1]}, 64, v{T[0]}")
    e(f"s_lshl_b32 s{sXS}, s{sMI}, 7")
    e(f"s_lshr_b32 s{sT}, s{sW}, 1"); e(f"s_lshl_b32 s{sT}, s{sT}, 5"); e(f"s_add_u32 s{sXS}, s{sXS}, s{sT}")
    e(f"s_and_b32 s{sT}, s{sW}, 1"); e(f"s_add_u32 s{sXS}, s{sXS}, s{sT}")
    e(f"s_mul_i32 s{sXS}, s{sXS}, 1152")
    e(f"s_lshl_b32 s{sXM}, s{sW}, 11")
    e(f"v_subrev_u32 v{T[9]}, 192, v0")
    e(f"v_min_u32 v{T[9]}, 287, v{T[9]}")
    e(f"v_lshlrev_b32 v{T[9]}, 7, v{T[9]}")
    e(f"s_and_b32 s{sT4}, s{sFJ}, 3"); e(f"s_mul_i32 s{sT4}, s{sT4}, {288*128}")
    e(f"s_mul_i32 s{sT5}, s{sMI}, {128*1152}"); e(f"s_add_u32 s{sT4}, s{sT4}, s{sT5}")
    e(f"s_getpc_b64 s[52:53]")
    e(f"s_lshl_b32 s{sT5}, s{sH}, 6")
    e(f"v_add_u32 v{T[10]}, s{sT5}, v{vLANE}")
    e("s_waitcnt lgkmcnt(0)")
    if PRO: stamp("karg")
    e("s_mov_b32 s6, 2359296"); e("s_mov_b32 s7, 0x00020000")
    e("s_mov_b32 s8, s48"); e("s_mov_b32 s9, s49"); e("s_mov_b32 s10, 5308416"); e("s_mov_b32 s11, 0x00020000")
    e("s_mov_b32 s14, 5308416"); e("s_mov_b32 s15, 0x00020000")
    e("s_mov_b32 s18, 268435456"); e("s_mov_b32 s19, 0x00020000")
    e("s_mov_b32 s20, s50"); e("s_mov_b32 s21, s51"); e("s_mov_b32 s22, 9216"); e("s_mov_b32 s23, 0x00020000")
    KACC = Q(6); KP = Q(6)+16; KFR = Q(18); HR = KFR+16; HC = KFR+17; KRAW = KFR+18; KT = Q(30)
    e(f"s_lshl_b32 s83, s{sMI}, 4"); e(f"s_add_u32 s83, s83, s{sFJ}"); e("s_mul_i32 s83, s83, 3"); e(f"s_add_u32 s83, s83, s{sW}")
    e(f"s_cmp_lt_u32 s{sMI}, 12"); e("s_cselect_b32 s82, 1, 0")
    e(f"s_sub_u32 s3, s{sW}, 4"); e("s_cmp_lt_u32 s3, 3"); e("s_cselect_b32 s55, s82, 0")
    e(f"s_cmp_lt_u32 s{sW}, 3"); e("s_cselect_b32 s82, s82, 0")
    e("s_cmp_eq_u32 s82, 0"); e("s_cbranch_scc1 K1_KG0")
    e("s_lshl_b32 s3, s83, 8")
    e(f"v_lshlrev_b32 v{KT}, 2, v{vLANE}"); e(f"v_add_u32 v{KT}, s3, v{KT}")
    for a in range(6):
        p.vmem(f"global_load_dword v{KRAW+a}, v{KT}, s[{84+2*a}:{85+2*a}]", tag='kp', maybe=True)
    e("s_lshr_b32 s3, s83, 1"); e("s_lshl_b32 s3, s3, 2")
    e("s_load_dword s100, s[96:97], s3"); e("s_load_dword s101, s[98:99], s3")
    p.label("K1_KG0")
    if KB: e("s_barrier")
    kgst = [0]
    def kgen_piece(pi):
        n = KSPL[pi]
        if n == 0: return
        L = p.newlabel("K1_KG")
        e("s_cmp_eq_u32 s82, 0"); e(f"s_cbranch_scc1 {L}")
        wr, wi, t0, t1, t2, t3, t4, t5, t6, t7, t8, t9 = range(KT, KT+12)
        DP = "row_mask:0xf bank_mask:0xf"
        RA1, RA2, CB1, CB2 = KFR, KFR+4, KFR+8, KFR+12
        if kgst[0] == 0:
            e(f"v_lshlrev_b32 v{t0}, 1, v{vI}"); e(f"v_add_u32 v{t0}, 240, v{t0}")
            e(f"v_cmp_gt_u32 vcc, 8, v{vI}")
            e(f"s_mov_b32 s84, {hex(512 | 128 << 16)}"); e(f"s_mov_b32 s85, {hex(1280 | 1536 << 16)}")
            e(f"v_lshlrev_b32 v{t1}, 4, v{vI}")
            e(f"v_cndmask_b32 v{t0}, v{t0}, v{vI}, vcc")
            e(f"v_lshrrev_b64 {vr(t2,2)}, v{t1}, s[84:85]")
            e(f"v_cmp_le_u32 vcc, 12, v{vI}")
            e(f"v_and_b32 v{t2}, 0xffff, v{t2}")
            e(f"v_lshlrev_b32 v{t1}, 3, v{vI}")
            e(f"v_cndmask_b32 v{t0}, v{t0}, v{t2}, vcc")
            e(f"v_cvt_f32_u32 v{HC}, v{t1}"); e(f"v_cvt_f32_u32 v{HR}, v{t0}")
            e("s_waitcnt lgkmcnt(0)")
            e("s_and_b32 s3, s83, 1"); e("s_lshl_b32 s3, s3, 4")
            e("s_lshr_b32 s100, s100, s3"); e("s_lshl_b32 s100, s100, 16")
            e("s_lshr_b32 s101, s101, s3"); e("s_lshl_b32 s101, s101, 16")
            e(f"v_mov_b32 v{t0}, {fhex(LOG2E)}"); e(f"v_mul_f32 v{t0}, s100, v{t0}"); e(f"v_exp_f32 v{t0}, v{t0}"); e("s_nop 0")
            e(f"v_cvt_pk_bf16_f32 v{t0}, v{t0}, v{t0}"); e(f"v_and_b32 v{t0}, s{sMASK}, v{t0}")
            e(f"v_mul_f32 v{t1}, {fhex(LOG2E)}, v{t0}"); e(f"v_mul_f32 v{t2}, {fhex(1/(2*math.pi))}, v{t0}")
            stamp("kpre")
            e("s_waitcnt vmcnt(0)")
            stamp("kp")
            for hs in range(2):
                for a in range(6):
                    if hs: e(f"v_and_b32 v{t3+a}, s{sMASK}, v{KRAW+a}")
                    else: e(f"v_lshlrev_b32 v{t3+a}, 16, v{KRAW+a}")
                A2, B2, WR, WI = [KP + 4*hs + i for i in range(4)]
                e(f"v_mul_f32 v{A2}, v{t1}, v{t3}"); e(f"v_mul_f32 v{B2}, v{t2}, v{t4}")
                e(f"v_mul_f32 v{t5}, v{t0}, v{t5}"); e(f"v_mul_f32 v{t6}, v{t0}, v{t6}")
                e(f"v_rndne_f32 v{t9}, v{B2}")
                e(f"v_mul_f32 v{WR}, v{t7}, v{t5}"); e(f"v_mul_f32 v{WI}, v{t7}, v{t6}")
                e(f"v_sub_f32 v{B2}, v{B2}, v{t9}")
                e(f"v_fma_f32 v{WR}, -v{t8}, v{t6}, v{WR}"); e(f"v_fmac_f32 v{WI}, v{t8}, v{t5}")
            e("s_nop 1")
        for ks in range(kgst[0], kgst[0] + n):
            A2, B2, WR, WI = [KP + 4*(ks >> 2) + i for i in range(4)]
            s_ = ks & 3
            for nn in range(4):
                BC = f"row_newbcast:{4*s_+nn} {DP}"
                e(f"v_mul_f32_dpp v{t1}, v{B2}, v{HR} {BC}"); e(f"v_mul_f32_dpp v{t0}, v{A2}, v{HR} {BC}")
                e(f"v_mul_f32_dpp v{t4}, v{B2}, v{HC} {BC}"); e(f"v_mul_f32_dpp v{t3}, v{A2}, v{HC} {BC}")
                e(f"v_fract_f32 v{t1}, v{t1}"); e(f"v_exp_f32 v{t0}, v{t0}")
                e(f"v_cos_f32 v{t2}, v{t1}"); e(f"v_sin_f32 v{t1}, v{t1}")
                e(f"v_exp_f32 v{t3}, v{t3}")
                e(f"v_mul_f32 v{t2}, v{t0}, v{t2}")
                e(f"v_cos_f32 v{t5}, v{t4}")
                e(f"v_mul_f32 v{t1}, v{t0}, v{t1}")
                e(f"v_sin_f32 v{t4}, v{t4}")
                e(f"v_mul_f32_dpp v{wr}, v{WR}, v{t3} {BC}"); e(f"v_mul_f32_dpp v{wi}, v{WI}, v{t3} {BC}")
                e(f"v_cvt_pk_bf16_f32 v{RA1+nn}, v{t2}, v{t1}")
                e(f"v_mul_f32_dpp v{t6}, v{t2}, v{t2} row_newbcast:12 {DP}")
                e(f"v_mul_f32_dpp v{t7}, v{t1}, v{t2} row_newbcast:12 {DP}")
                e(f"v_mul_f32 v{t8}, v{wr}, v{t5}"); e(f"v_mul_f32 v{t9}, v{wr}, v{t4}")
                e(f"v_fmac_f32_dpp v{t6}, -v{t1}, v{t1} row_newbcast:12 {DP}")
                e(f"v_fmac_f32_dpp v{t7}, v{t2}, v{t1} row_newbcast:12 {DP}")
                e(f"v_fma_f32 v{t8}, -v{wi}, v{t4}, v{t8}"); e(f"v_fmac_f32 v{t9}, v{wi}, v{t5}")
                e(f"v_cvt_pk_bf16_f32 v{RA2+nn}, v{t6}, v{t7}")
                e(f"v_mul_f32_dpp v{t0}, v{t2}, v{t8} row_newbcast:13 {DP}")
                e(f"v_mul_f32_dpp v{t3}, v{t1}, v{t8} row_newbcast:13 {DP}")
                e(f"v_cvt_pk_bf16_f32 v{CB1+nn}, v{t8}, -v{t9}")
                e(f"v_fmac_f32_dpp v{t0}, -v{t1}, v{t9} row_newbcast:13 {DP}")
                e(f"v_fmac_f32_dpp v{t3}, v{t2}, v{t9} row_newbcast:13 {DP}")
                e(f"v_cvt_pk_bf16_f32 v{CB2+nn}, v{t0}, -v{t3}")
            e("s_nop 1")
            for a in range(2):
                for b in range(2):
                    d = KACC + 4*(2*a+b)
                    c = "0" if ks == 0 else vr(d, 4)
                    e(f"v_mfma_f32_16x16x32_bf16 {vr(d,4)}, {vr((RA1,RA2)[a],4)}, {vr((CB1,CB2)[b],4)}, {c}")
        kgst[0] += n
        if kgst[0] == 8:
            e(f"v_cmp_eq_u32 vcc, 0, v{vLANE}")
            e(f"v_mov_b32 v{t8}, s101"); e(f"v_lshlrev_b32 v{t9}, 4, v{vLANE}")
            e(f"v_cndmask_b32 v{t8}, 0, v{t8}, vcc")
            e("s_lshl_b32 s3, s83, 11"); e(f"s_add_u32 s3, s3, {KT_OFF}")
            e("s_nop 7"); e("s_nop 3")
            e(f"v_add_f32 v{KACC}, v{KACC}, v{t8}")
            for q in range(8): e(f"v_cvt_pk_bf16_f32 v{KT+q}, v{KACC+2*q}, v{KACC+2*q+1}")
            for a in range(2):
                p.vmem(f"buffer_store_dwordx4 {vr(KT+4*a,4)}, v{t9}, s[{SWS}:{SWS+3}], s3 offen offset:{1024*a} {STM}", maybe=True)
        p.label(L)
    Lc = p.newlabel("K1_PF"); Ld = p.newlabel("K1_PF")
    e(f"s_cmp_lt_u32 s{sW}, 3"); e(f"s_cbranch_scc1 {Ld}")
    e(f"s_cmp_eq_u32 s{sQI}, 3"); e(f"s_cbranch_scc0 {Lc}")
    for q in range(3):
        e(f"v_add_u32 v{T[11]}, {128*q}, v{T[10]}")
        e(f"v_min_u32 v{T[11]}, K1_CODE_LINES, v{T[11]}")
        e(f"v_lshlrev_b32 v{T[12+q]}, 7, v{T[11]}")
        e(f"global_load_dword v{T[8]}, v{T[12+q]}, s[52:53]")
    p.label(Lc)
    p.vmem(f"buffer_load_dword v{T[8]}, v{T[9]}, s[{SX}:{SX+3}], s{sT4} offen", tag='pf')
    if TW:
        e(f"s_cmp_lg_u32 s{sW}, 7"); e(f"s_cbranch_scc1 {Ld}")
        e(f"v_min_u32 v{T[11]}, 3, v{vLANE}")
        e(f"v_mul_u32_u24 v{T[12]}, {191*9216}, v{T[11]}")
        e(f"s_mul_i32 s{sT3}, s{sFJ}, 576")
        e(f"buffer_load_dword v{T[8]}, v{T[12]}, s[{SW1}:{SW1+3}], s{sT3} offen")
        e(f"v_mul_u32_u24 v{T[13]}, 110548, v{T[11]}")
        e(f"s_mul_i32 s{sT3}, s{sFJ}, 331776")
        e(f"buffer_load_dword v{T[8]}, v{T[13]}, s[{SW2}:{SW2+3}], s{sT3} offen")
        e(f"v_mul_u32_u24 v{T[14]}, 786400, v{T[11]}")
        e(f"s_mul_i32 s{sT3}, s{sFJ}, 2359296")
        e(f"buffer_load_dword v{T[8]}, v{T[14]}, s[{SWS}:{SWS+3}], s{sT3} offen")
        e(f"v_mul_u32_u24 v{T[15]}, 1572800, v{T[11]}")
        e(f"s_mov_b32 s{sT3}, {X4_OFF}")
        e(f"buffer_load_dword v{T[8]}, v{T[15]}, s[{SWS}:{SWS+3}], s{sT3} offen")
    p.label(Ld)
    def xdma1(c, extra):
        for nn in range(2):
            e(f"s_add_u32 m0, s{sXM}, {16384*c + 1024*nn + (-8192 if extra else 0)}")
            e(f"s_add_u32 s{sT}, s{sXS}, {128*c + nn*16*1152 + (-64*1152 if extra else 0)}")
            p.vmem(f"buffer_load_dwordx4 v{T[nn]}, s[{SX}:{SX+3}], s{sT} offen lds", tag=('x', c), maybe=extra)
    def xdma3(c0):
        L1 = p.newlabel("K1_XD"); L2 = p.newlabel("K1_XD")
        e("s_cmp_eq_u32 s55, 0"); e(f"s_cbranch_scc1 {L1}")
        for c in range(c0, c0+3): xdma1(c, True)
        p.label(L1)
        e("s_cmp_eq_u32 s82, 1"); e(f"s_cbranch_scc1 {L2}")
        for c in range(c0, c0+3): xdma1(c, False)
        p.label(L2)
    e("s_setprio 3")
    xdma3(0)
    e("s_setprio 0")
    e(f"s_and_b32 s{sT2}, s{sFJ}, 1")
    e(f"s_mul_i32 s{sT3}, s{sFJ}, 576")
    e(f"s_add_u32 s{sT5}, s{sQI}, 8")
    e(f"s_mul_i32 s{sRP1}, s{sW}, {8*9216}"); e(f"s_mul_i32 s{sRP1X}, s{sT5}, {8*9216}")
    e(f"s_lshl_b32 s{sT4}, s{sT2}, 6"); e(f"s_add_u32 s{sT4}, s{sT4}, s{sT3}")
    e(f"s_lshl_b32 s{sT}, s{sT2}, 9"); e(f"s_sub_u32 s{sT}, 512, s{sT}"); e(f"s_add_u32 s{sT}, s{sT}, s{sT3}")
    e(f"s_add_u32 s{sRP8}, s{sRP1}, s{sT}"); e(f"s_add_u32 s{sRP8X}, s{sRP1X}, s{sT}")
    e(f"s_add_u32 s{sRP1}, s{sRP1}, s{sT4}"); e(f"s_add_u32 s{sRP1X}, s{sRP1X}, s{sT4}")
    e(f"s_mul_i32 s{sT}, s{sH}, {96*9216}"); e(f"s_add_u32 s{sRP1H}, s{sRP1X}, s{sT}")
    e(f"s_mul_i32 s{sT}, s{sH}, {192*9216}"); e(f"s_add_u32 s{sRP8H}, s{sRP8X}, s{sT}")
    def rowperm(dst, nreg, tmp):
        e(f"s_lshr_b32 s{dst}, s{nreg}, 2"); e(f"s_lshl_b32 s{dst}, s{dst}, 5")
        e(f"s_and_b32 s{tmp}, s{nreg}, 1"); e(f"s_lshl_b32 s{tmp}, s{tmp}, 4"); e(f"s_add_u32 s{dst}, s{dst}, s{tmp}")
        e(f"s_and_b32 s{tmp}, s{nreg}, 2"); e(f"s_lshl_b32 s{tmp}, s{tmp}, 2"); e(f"s_add_u32 s{dst}, s{dst}, s{tmp}")
    rowperm(sRP2, sW, sT4); rowperm(sRP2X, sT5, sT4)
    e(f"s_mul_i32 s{sT}, s{sFJ}, 288"); e(f"s_lshl_b32 s{sT4}, s{sT2}, 5"); e(f"s_add_u32 s{sT}, s{sT}, s{sT4}"); e(f"s_sub_u32 s{sT}, s{sT}, 32")
    e(f"s_add_u32 s{sRP2}, s{sRP2}, s{sT}"); e(f"s_add_u32 s{sRP2X}, s{sRP2X}, s{sT}")
    e(f"s_or_b32 s{sT4}, s{sT2}, s{sH}"); e(f"s_cmp_eq_u32 s{sT4}, 0"); e(f"s_cselect_b32 s{sT4}, 288, 0")
    e(f"s_add_u32 s{sRP2K0}, s{sRP2}, s{sT4}")
    e(f"s_mul_i32 s{sRP2}, s{sRP2}, 1152"); e(f"s_mul_i32 s{sRP2X}, s{sRP2X}, 1152"); e(f"s_mul_i32 s{sRP2K0}, s{sRP2K0}, 1152")
    e(f"s_lshl_b32 s{sM0W}, s{sW}, 10"); e(f"s_lshl_b32 s{sM0X}, s{sT5}, 10")
    e(f"s_mul_i32 s{sT}, s{sH}, 12288"); e(f"s_add_u32 s{sM0H}, s{sM0X}, s{sT}")
    e("s_setprio 2")
    xdma3(3)
    e("s_setprio 0")
    e(f"v_and_b32 v{T[4]}, 1, v{vG}")
    e(f"v_lshlrev_b32 v{T[4]}, 2, v{T[4]}")
    e(f"v_xor_b32 v{T[4]}, v{T[4]}, v{T[3]}")
    e(f"v_mul_u32_u24 v{T[10]}, 9216, v{T[2]}")
    e(f"v_lshl_add_u32 v{vOW1}, v{T[4]}, 4, v{T[10]}")
    e(f"v_lshrrev_b32 v{T[11]}, 2, v{T[4]}")
    e(f"v_mul_u32_u24 v{T[11]}, {96*9216}, v{T[11]}")
    e(f"v_and_b32 v{T[4]}, 3, v{T[4]}")
    e(f"v_lshlrev_b32 v{T[4]}, 4, v{T[4]}")
    e(f"v_add3_u32 v{vOW8}, v{T[4]}, v{T[10]}, v{T[11]}")
    e(f"v_lshlrev_b32 v{T[4]}, 1, v{vG}")
    e(f"v_xor_b32 v{T[4]}, v{T[4]}, v{T[3]}")
    e(f"v_mul_u32_u24 v{T[10]}, 1152, v{T[2]}")
    e(f"v_lshl_add_u32 v{vOW2}, v{T[4]}, 4, v{T[10]}")
    e(f"v_lshrrev_b32 v{T[4]}, 2, v{vI}")
    e(f"v_and_b32 v{T[10]}, 3, v{vLANE}")
    e(f"v_lshlrev_b32 v{T[10]}, 3, v{T[10]}")
    e(f"v_lshrrev_b32 v{T[5]}, 1, v{vG}")
    e(f"v_lshl_add_u32 v{T[9]}, v{T[5]}, 3, v{T[4]}")
    e(f"v_lshl_add_u32 v{T[9]}, v{T[9]}, 7, v{T[10]}")
    e(f"v_lshrrev_b32 v{T[11]}, 1, v{T[4]}")
    e(f"v_xor_b32 v{T[11]}, s{sH}, v{T[11]}")
    e(f"v_lshl_add_u32 v{T[9]}, v{T[11]}, 6, v{T[9]}")
    e(f"v_and_b32 v{T[11]}, 1, v{vG}")
    e(f"v_lshl_add_u32 v{vA['8']}, v{T[11]}, 5, v{T[9]}")
    e(f"s_mul_i32 s{sT4}, s{sH}, 12288"); e(f"s_sub_u32 s{sT5}, 12288, s{sT4}")
    e(f"v_add_u32 v{vA[('n',0,0)]}, s{sT4}, v{vA['8']}"); e(f"v_add_u32 v{vA[('n',1,0)]}, s{sT5}, v{vA['8']}")
    e(f"v_add_u32 v{vA[('n',0,1)]}, 49152, v{vA[('n',0,0)]}"); e(f"v_add_u32 v{vA[('n',1,1)]}, 49152, v{vA[('n',1,0)]}")
    e(f"v_lshl_add_u32 v{T[9]}, v{vG}, 2, v{T[4]}")
    e(f"v_lshl_add_u32 v{T[10]}, v{T[9]}, 7, v{T[10]}")
    e(f"v_bfe_u32 v{T[9]}, v{T[9]}, 1, 2")
    e(f"s_lshl_b32 s{sT}, s{sH}, 1")
    e(f"v_xor_b32 v{T[9]}, s{sT}, v{T[9]}")
    e(f"v_lshl_add_u32 v{vA[('p',0,0)]}, v{T[9]}, 5, v{T[10]}")
    e(f"v_xor_b32 v{vA[('p',1,0)]}, 32, v{vA[('p',0,0)]}")
    for t in (0, 1): e(f"v_add_u32 v{vA[('p',t,1)]}, 49152, v{vA[('p',t,0)]}")
    e(f"s_lshl_b32 s{sT}, s{sQI}, 11"); e(f"s_add_u32 s{sT}, s{sT}, {PREG}")
    e(f"v_lshlrev_b32 v{T[11]}, 4, v{vLANE}")
    e(f"v_add_u32 v{T[11]}, s{sT}, v{T[11]}")
    e(f"s_lshl_b32 s{sT4}, s{sH}, 13"); e(f"v_add_u32 v{vPW}, s{sT4}, v{T[11]}")
    e(f"v_xor_b32 v{vXR}, 8192, v{vPW}")
    e(f"s_lshl_b32 s{sT4}, s{sH}, 10"); e(f"v_add_u32 v{vP8}, s{sT4}, v{T[11]}")
    e(f"s_lshl_b32 s{sT4}, s{sH}, 14"); e(f"v_add_u32 v{v8R}, s{sT4}, v{T[11]}")
    e(f"v_lshlrev_b32 v{T[9]}, 9, v{vG}")
    e(f"v_lshl_add_u32 v{T[9]}, v{vI}, 4, v{T[9]}")
    e(f"v_add_u32 v{vPR}, s{sT}, v{T[9]}")
    e(f"v_lshlrev_b32 v{T[9]}, 4, v{T[5]}")
    e(f"v_add_u32 v{vBI8}, {BIAS}, v{T[9]}")
    e(f"s_lshl_b32 s{sT4}, s{sH}, 7"); e(f"v_add_u32 v{vBI}, s{sT4}, v{vBI8}")
    e(f"s_mul_i32 s{sT}, s{sFJ}, 144"); e(f"s_lshl_b32 s{sT4}, s{sH}, 3"); e(f"s_add_u32 s{sT}, s{sT}, s{sT4}")
    e(f"s_lshl_b32 s{sT}, s{sT}, 14")
    e(f"s_lshl_b32 s{sT4}, s{sMI}, 10"); e(f"s_add_u32 s{sT}, s{sT}, s{sT4}")
    e(f"s_lshl_b32 s{sT4}, s{sQI}, 8"); e(f"s_add_u32 s{sT}, s{sT}, s{sT4}")
    e(f"v_lshlrev_b32 v{vOO}, 14, v{vG}")
    e(f"v_lshl_add_u32 v{vOO}, v{vI}, 4, v{vOO}")
    e(f"v_add_u32 v{vOO}, s{sT}, v{vOO}")
    e("s_setprio 1")
    xdma3(6)
    e("s_setprio 0")
    if PRO: stamp("xissued")
    kgen_piece(0)
    stamp("kpost")
    e(f"v_cmp_gt_u32 vcc, 32, v0")
    e(f"v_mov_b32 v{T[6]}, -32")
    e(f"v_mov_b32 v{T[7]}, 256")
    e(f"v_cndmask_b32 v{T[6]}, v{T[6]}, v{T[7]}, vcc")
    e(f"s_sub_u32 s{sT4}, s{sT2}, 1")
    e(f"v_and_b32 v{T[6]}, s{sT4}, v{T[6]}")
    e(f"v_add_u32 v{T[6]}, v{T[6]}, v0")
    e(f"v_min_u32 v{T[6]}, 287, v{T[6]}")
    e(f"v_lshlrev_b32 v{T[6]}, 1, v{T[6]}")
    p.vmem(f"buffer_load_ushort v{T[7]}, v{T[6]}, s[{SB1}:{SB1+3}], s{sT3} offen", tag='bias')
    if W1T >= 5:
        e(f"v_subrev_u32 v{T[9]}, 192, v0")
        e(f"v_min_u32 v{T[9]}, 359, v{T[9]}")
    else: e(f"v_min_u32 v{T[9]}, 359, v0")
    e(f"v_mul_u32_u24 v{T[10]}, 205, v{T[9]}")
    e(f"v_lshrrev_b32 v{T[10]}, 10, v{T[10]}")
    e(f"v_mul_u32_u24 v{T[11]}, 5, v{T[10]}")
    e(f"v_sub_u32 v{T[9]}, v{T[9]}, v{T[11]}")
    e(f"v_mul_u32_u24 v{T[10]}, 9216, v{T[10]}")
    e(f"v_lshl_add_u32 v{T[9]}, v{T[9]}, 7, v{T[10]}")
    e(f"s_and_b32 s{sT5}, s{sMI}, 7")
    e(f"s_mul_i32 s{sT}, s{sT5}, {72*9216}")
    e(f"s_and_b32 s{sT4}, s{sT3}, 0xffffff80")
    e(f"s_add_u32 s{sT}, s{sT}, s{sT4}")
    if W1T == 1: p.vmem(f"buffer_load_dword v255, v{T[9]}, s[{SW1}:{SW1+3}], s{sT} offen", tag='pf')
    if W1T >= 5:
        e(f"s_cmp_lt_u32 s{sW}, 3"); e("s_cbranch_scc1 K1_W1T")
        p.vmem(f"buffer_load_dword v255, v{T[9]}, s[{SW1}:{SW1+3}], s{sT} offen", maybe=True)
        p.label("K1_W1T")
    def w2_touch(wv):
        L = p.newlabel("K1_T")
        e(f"s_cmp_eq_u32 s{sW}, {wv}")
        e(f"s_cbranch_scc0 {L}")
        e(f"v_min_u32 v{vXTA}, 323, v0")
        e(f"v_lshlrev_b32 v{vXTA}, 7, v{vXTA}")
        e(f"s_and_b32 s{sT5}, s{sMI}, 7")
        e(f"s_mul_i32 s{sT}, s{sFJ}, {288*1152}")
        e(f"s_mul_i32 s{sT4}, s{sT5}, {324*128}")
        e(f"s_add_u32 s{sT}, s{sT}, s{sT4}")
        p.vmem(f"buffer_load_dword v{vROW}, v{vXTA}, s[{SW2}:{SW2+3}], s{sT} offen", maybe=True)
        p.label(L)
    def w2_touch5(wv):
        L = p.newlabel("K1_T")
        e(f"s_cmp_eq_u32 s{sW}, {wv}")
        e(f"s_cbranch_scc0 {L}")
        e(f"v_min_u32 v{vXTA}, 179, v0")
        e(f"v_mul_u32_u24 v{vC}, 205, v{vXTA}")
        e(f"v_lshrrev_b32 v{vC}, 10, v{vC}")
        e(f"v_lshlrev_b32 v{vXTA}, 7, v{vXTA}")
        e(f"v_lshl_add_u32 v{vXTA}, v{vC}, 9, v{vXTA}")
        e(f"s_and_b32 s{sT5}, s{sMI}, 7")
        e(f"s_mul_i32 s{sT}, s{sFJ}, {288*1152}")
        e(f"s_mul_i32 s{sT4}, s{sT5}, {324*128}")
        e(f"s_add_u32 s{sT}, s{sT}, s{sT4}")
        p.vmem(f"buffer_load_dword v{vROW}, v{vXTA}, s[{SW2}:{SW2+3}], s{sT} offen", maybe=True)
        p.label(L)
    def w1_touch(wv):
        L = p.newlabel("K1_T")
        e(f"s_cmp_eq_u32 s{sW}, {wv}")
        e(f"s_cbranch_scc0 {L}")
        e(f"v_min_u32 v{vXTA}, 359, v0")
        e(f"v_mul_u32_u24 v{vROW}, 205, v{vXTA}")
        e(f"v_lshrrev_b32 v{vROW}, 10, v{vROW}")
        e(f"v_lshlrev_b32 v{vXTA}, 7, v{vXTA}")
        e(f"v_mul_u32_u24 v{vROW}, {9216-640}, v{vROW}")
        e(f"v_add_u32 v{vXTA}, v{vXTA}, v{vROW}")
        e(f"s_and_b32 s{sT5}, s{sMI}, 7")
        e(f"s_mul_i32 s{sT}, s{sT5}, {72*9216}")
        e(f"s_and_b32 s{sT4}, s{sT3}, 0xffffff80")
        e(f"s_add_u32 s{sT}, s{sT}, s{sT4}")
        p.vmem(f"buffer_load_dword v{vROW}, v{vXTA}, s[{SW1}:{SW1+3}], s{sT} offen", maybe=True)
        p.label(L)
    def touch(wv, which, tau, start, count):
        L = p.newlabel("K1_T")
        e(f"s_cmp_eq_u32 s{sW}, {wv}")
        e(f"s_cbranch_scc0 {L}")
        e(f"v_min_u32 v{vXTA}, {count-1}, v{vLANE}")
        e(f"s_and_b32 s{sT5}, s{sMI}, 7")
        if which == 1:
            e(f"v_mul_u32_u24 v{vXTA}, 9216, v{vXTA}")
            e(f"s_mul_i32 s{sT}, s{sT5}, {72*9216}")
            e(f"s_lshl_b32 s{sT4}, s{sT2}, 6"); e(f"s_add_u32 s{sT4}, s{sT4}, s{sT3}")
            e(f"s_add_u32 s{sT}, s{sT}, s{sT4}"); e(f"s_add_u32 s{sT}, s{sT}, {128*tau + start*9216}")
        else:
            e(f"v_lshlrev_b32 v{vXTA}, 7, v{vXTA}")
            e(f"s_mul_i32 s{sT}, s{sFJ}, {288*1152}")
            e(f"s_mul_i32 s{sT4}, s{sT5}, {324*128}")
            e(f"s_add_u32 s{sT}, s{sT}, s{sT4}"); e(f"s_add_u32 s{sT}, s{sT}, {128*start}")
        srd = SW1 if which == 1 else SW2
        p.vmem(f"buffer_load_dword v{vROW}, v{vXTA}, s[{srd}:{srd+3}], s{sT} offen", maybe=True)
        p.label(L)
    def touches(seg):
        o = []
        if W1T == 4 and T1S <= seg < T1S + 12:
            q = seg - T1S
            o.append(lambda: touch(seg % 8, 1, 1 + q // 4, 18 * (q % 4), 18))
        if W2T == 4 and T2S <= seg < T2S + T2N:
            c = 324 // T2N
            o.append(lambda: touch((seg + 4) % 8, 2, 0, c * (seg - T2S), c))
        return o
    e(f"v_bfe_u32 v{T[12]}, v{vLANE}, 1, 3")
    e(f"v_xor_b32 v{T[12]}, s{sW}, v{T[12]}")
    e(f"v_lshlrev_b32 v{T[12]}, 4, v{T[12]}")
    e(f"v_lshl_add_u32 v{T[12]}, v{vI}, 7, v{T[12]}")
    e(f"v_lshl_add_u32 v{T[12]}, v{vG}, 12, v{T[12]}")
    e(f"s_sub_u32 s51, s{sFJ}, 7")
    e(f"s_lshl_b32 s{sT}, s51, 14")
    e(f"v_add_u32 v{T[12]}, s{sT}, v{T[12]}")
    e(f"v_add_u32 v{T[13]}, 8, v{T[12]}")
    e(f"v_lshlrev_b32 v{T[14]}, 4, v{vLANE}")
    e(f"s_lshl_b32 s52, s51, 18"); e(f"s_lshl_b32 s{sT}, s{sW}, 15"); e(f"s_add_u32 s52, s52, s{sT}")
    e(f"s_lshl_b32 s{sT}, s{sMI}, 10"); e(f"s_add_u32 s52, s52, s{sT}"); e(f"s_add_u32 s52, s52, {X4_OFF}")
    e(f"s_add_u32 s53, s52, 16384")
    def w2_prefetch():
        e(f"v_min_u32 v{T[9]}, 323, v0")
        e(f"v_lshlrev_b32 v{T[9]}, 7, v{T[9]}")
        e(f"s_and_b32 s{sT5}, s{sMI}, 7")
        e(f"s_mul_i32 s{sT}, s{sFJ}, {288*1152}")
        e(f"s_mul_i32 s{sT4}, s{sT5}, {324*128}")
        e(f"s_add_u32 s{sT}, s{sT}, s{sT4}")
        p.vmem(f"buffer_load_dword v254, v{T[9]}, s[{SW2}:{SW2+3}], s{sT} offen", tag='pf')
    XA = lambda j: SA + j
    e(f"v_and_b32 v{T[10]}, 31, v{vLANE}")
    e(f"v_bfe_u32 v{T[9]}, v{vLANE}, 1, 3")
    e(f"v_xor_b32 v{T[9]}, v{T[9]}, v{T[5]}")
    e(f"s_lshl_b32 s{sT}, s{sQI}, 5")
    e(f"v_add_u32 v{vROW}, s{sT}, v{T[10]}")
    e(f"v_lshlrev_b32 v{T[10]}, 7, v{vROW}")
    for j in range(6):
        e(f"s_mul_i32 s{sT}, s{sH}, 6"); e(f"s_add_u32 s{sT}, s{sT}, {j}")
        e(f"s_and_b32 s{sT4}, s{sT}, 3"); e(f"s_lshl_b32 s{sT4}, s{sT4}, 1")
        e(f"s_lshr_b32 s{sT}, s{sT}, 2"); e(f"s_lshl_b32 s{sT}, s{sT}, 14")
        e(f"v_xor_b32 v{T[11]}, s{sT4}, v{T[9]}")
        e(f"v_lshl_add_u32 v{T[11]}, v{T[11]}, 4, v{T[10]}")
        e(f"v_add_u32 v{XA(j)}, s{sT}, v{T[11]}")
    e(f"v_lshrrev_b32 v{T[9]}, 1, v{T[4]}")
    e(f"v_lshl_add_u32 v{T[9]}, v{vG}, 2, v{T[9]}")
    e(f"v_and_b32 v{T[10]}, 1, v{T[4]}")
    e(f"v_lshl_add_u32 v{T[9]}, v{T[10]}, 4, v{T[9]}")
    e(f"v_bfe_u32 v{T[10]}, v{vLANE}, 1, 1")
    e(f"s_and_b32 s{sT}, s{sW}, 6")
    e(f"v_or_b32 v{T[10]}, s{sT}, v{T[10]}")
    e(f"v_lshlrev_b32 v{T[11]}, 1, v{vG}")
    e(f"v_xor_b32 v{T[10]}, v{T[10]}, v{T[11]}")
    e(f"v_lshlrev_b32 v{T[9]}, 7, v{T[9]}")
    e(f"v_and_b32 v{T[11]}, 1, v{vLANE}")
    e(f"v_lshl_add_u32 v{T[9]}, v{T[11]}, 3, v{T[9]}")
    e(f"s_and_b32 s{sT}, s{sW}, 1"); e(f"s_lshl_b32 s{sT}, s{sT}, 13")
    e(f"s_lshl_b32 s{sT4}, s{sFJ}, 14"); e(f"s_add_u32 s{sT}, s{sT}, s{sT4}")
    e(f"v_add_u32 v{T[9]}, s{sT}, v{T[9]}")
    e(f"v_lshl_add_u32 v{vXTA}, v{T[10]}, 4, v{T[9]}")
    vXTB = SA + 6
    e(f"v_xor_b32 v{vXTB}, 16, v{vXTA}")
    ACC = [SA + 8, SA + 9, SA + 10]
    for a in ACC: e(f"v_mov_b32 v{a}, 0")
    for i in range(4): e(f"v_mov_b32 v{WF+i}, s{sONE}")

    D = [(('B', 0, 0), ('B', 0, 1)), (('8', 0), ('8', 1)), (('B', 0, 2), ('B', 0, 3)), (('B', 0, 4), ('B', 0, 5)), (('8', 2), None)]
    for tau in (1, 2, 3):
        for k in range(3): D.append((('B', tau, 2*k), ('B', tau, 2*k+1)))
    p2 = [('E', 0, 0), ('E', 0, 1), ('E', 1, 0), ('E', 1, 1), ('E', 0, 2), ('E', 1, 2)]
    for j in range(2, 9): p2 += [('E', j, k) for k in range(3)]
    for i in range(0, len(p2), 2): D.append((p2[i], p2[i+1] if i + 1 < len(p2) else None))
    uloc = {}
    for k, (a, b) in enumerate(D):
        uloc[a] = (k, 0)
        if b: uloc[b] = (k, 1)
    def uparams(u):
        if u[0] == 'B': return SW1, vOW1, 96 * u[2] * 9216 + 128 * u[1], sRP1, sRP1X, sRP1H
        if u[0] == '8': return SW1, vOW8, 192 * u[1] * 9216, sRP8, sRP8X, sRP8H
        return SW2, vOW2, 96 * u[2] * 1152 + 128 * u[1], (sRP2K0 if u[2] == 0 else sRP2), sRP2X, None
    def dma_double(k):
        ops = []
        lds0 = slot_of(k) * 24576
        def one(m0r, m0i, sr_, base, srd, vo, maybe=False):
            e(f"s_add_u32 m0, s{m0r}, {m0i}")
            e(f"s_add_u32 s{sT}, s{sr_}, {base}")
            p.vmem(f"buffer_load_dwordx4 v{vo}, s[{srd}:{srd+3}], s{sT} offen lds", tag=('u', k), maybe=maybe)
        for half, u in enumerate(D[k]):
            if not u: continue
            srd, vo, base, r, rx, rh = uparams(u)
            ops.append(lambda srd=srd, vo=vo, base=base, r=r, half=half: one(sM0W, lds0 + half*12288, r, base, srd, vo))
        a, b = D[k]
        if b and a[0] != 'E':
            srd, vo, base, r, rx, rh = uparams(a)
            ops.append(lambda: one(sM0H, lds0, rh, base, srd, vo))
        else:
            for half, u in enumerate(D[k]):
                if not u: continue
                srd, vo, base, r, rx, rh = uparams(u)
                def extra(srd=srd, vo=vo, base=base, rx=rx, half=half):
                    L = p.newlabel("K1_X")
                    e(f"s_cmp_eq_u32 s{sH}, {half}")
                    e(f"s_cbranch_scc0 {L}")
                    one(sM0X, lds0 + half*12288, rx, base, srd, vo, maybe=True)
                    p.label(L)
                ops.append(extra)
        return ops

    if PRO: stamp("setup")
    for R in range(3):
        if R: kgen_piece(R)
        p.wait(vm=[('x', 3*R+2)], lg_all=True)
        e("s_barrier")
        stamp(f"xround{R}")
        for j in range(6):
            p.ds(f"ds_read_b128 {vr(Q(12*R+j), 4)}, v{XA(j)}", tag=('raw', R, j))
        if R == 1 or (R == 2 and not DL):
            for k in (2*(R-1), 2*(R-1)+1):
                for op in dma_double(k): op()
        if R < 2:
            for j in range(6): e(f"v_add_u32 v{XA(j)}, 49152, v{XA(j)}")
        L = p.newlabel("K1_XT")
        e(f"s_sub_u32 s{sT}, s{sFJ}, {3*R}")
        e(f"s_cmp_lt_u32 s{sT}, 3")
        e(f"s_cbranch_scc0 {L}")
        for job in range(2):
            e(f"ds_read_b64_tr_b16 {vr(vXT+4*job, 2)}, v{vXTA} offset:{4096*job}")
            e(f"ds_read_b64_tr_b16 {vr(vXT+4*job+2, 2)}, v{vXTB} offset:{4096*job+256}")
        e("s_waitcnt lgkmcnt(0)")
        p.label(L)
        L = p.newlabel("K1_X4")
        e(f"s_sub_u32 s{sT}, s51, {3*R}")
        e(f"s_cmp_lt_u32 s{sT}, 3")
        e(f"s_cbranch_scc0 {L}")
        e(f"ds_read2st64_b64 {vr(SC,4)}, v{T[12]} offset0:0 offset1:4")
        e(f"ds_read2st64_b64 {vr(SC+4,4)}, v{T[13]} offset0:0 offset1:4")
        e("s_waitcnt lgkmcnt(0)")
        p.vmem(f"buffer_store_dwordx4 {vr(SC,4)}, v{T[14]}, s[{SWS}:{SWS+3}], s52 offen {STM}", maybe=True)
        p.vmem(f"buffer_store_dwordx4 {vr(SC+4,4)}, v{T[14]}, s[{SWS}:{SWS+3}], s53 offen {STM}", maybe=True)
        p.label(L)
        for j in range(6):
            p.wait(lg=[('raw', R, j)])
            first = (R == 0 and j == 0)
            e(f"v_mfma_f32_32x32x16_bf16 {vr(SB,16)}, {vr(WF,4)}, {vr(Q(12*R+j),4)}, " + ("0" if first else vr(SB,16)))
            for d in range(4):
                x = Q(12*R+j) + d
                e(f"v_dot2_f32_bf16 v{ACC[1+(d&1)]}, v{x}, v{x}, v{ACC[1+(d&1)]}")
        if (R == 1 and W2T == 0) or (R == 2 and W2T == 7): w2_prefetch()
    p.wait(vm=['bias'])
    e(f"v_lshlrev_b32 v{T[7]}, 16, v{T[7]}")
    e(f"v_mov_b32 v{T[5]}, {fhex(ALPHA)}")
    e(f"v_mov_b32 v{T[4]}, {fhex(ALPHA*0.5)}")
    e(f"v_cmp_gt_u32 vcc, 32, v0")
    e(f"v_min_u32 v{T[6]}, 287, v0")
    e(f"v_lshlrev_b32 v{T[6]}, 2, v{T[6]}")
    e(f"v_cndmask_b32 v{T[5]}, v{T[5]}, v{T[4]}, vcc")
    e(f"v_add_u32 v{T[6]}, {BIAS}, v{T[6]}")
    e(f"v_mul_f32 v{T[7]}, v{T[7]}, v{T[5]}")
    e(f"v_cmp_gt_u32 vcc, 288, v0")
    e(f"s_and_saveexec_b64 s[54:55], vcc")
    p.ds(f"ds_write_b32 v{T[6]}, v{T[7]}")
    e(f"s_mov_b64 exec, s[54:55]")
    e(f"v_add_f32 v{ACC[1]}, v{ACC[1]}, v{ACC[2]}")
    e(f"v_mov_b32 v{T[0]}, v{ACC[1]}")
    e(f"s_lshl_b32 s{sT}, s{sH}, 3"); e(f"s_add_u32 s{sT}, s{sT}, {STAT}")
    e(f"v_lshlrev_b32 v{T[4]}, 4, v{vROW}")
    e(f"v_permlane32_swap_b32 v{ACC[1]}, v{T[0]}")
    e(f"v_add_u32 v{T[5]}, s{sT}, v{T[4]}")
    e(f"v_mov_b32 v{ACC[0]}, v{SB}")
    e(f"v_add_f32 v{ACC[1]}, v{ACC[1]}, v{T[0]}")
    p.ds(f"ds_write_b64 v{T[5]}, v[{ACC[0]}:{ACC[1]}]")
    e(f"v_add_u32 v{T[4]}, {STAT}, v{T[4]}")
    kgen_piece(3)
    assert kgst[0] == 8
    p.wait(lg_all=True)
    e("s_barrier")
    stamp("statbar")
    p.ds(f"ds_read_b128 {vr(T[8], 4)}, v{T[4]}", tag='st')
    def bias_init(S, tau):
        if tau == 8: return [lambda gg=gg: p.ds(f"ds_read_b128 {vr(S + gg*4, 4)}, v{vBI8} offset:{gg*32}", tag=('bias', tau)) for gg in range(4)]
        return [lambda gg=gg: p.ds(f"ds_read_b128 {vr(S + gg*4, 4)}, v{vBI} offset:{(32+64*tau+8*gg)*4}", tag=('bias', tau)) for gg in range(4)]
    for op in bias_init(SA, 0) + bias_init(SB, 8): op()
    p.wait(lg=['st'])
    inv = 1.0 / 576.0
    b = T[8]
    for s_ in [f"v_add_f32 v{b}, v{b}, v{b+2}", f"v_add_f32 v{b+1}, v{b+1}, v{b+3}",
            f"v_mul_f32 v{b}, {fhex(inv)}, v{b}", f"v_mul_f32 v{b+1}, {fhex(inv)}, v{b+1}",
            f"v_fma_f32 v{b+1}, -v{b}, v{b}, v{b+1}", f"v_max_f32 v{b+1}, 0, v{b+1}",
            f"v_cvt_pk_bf16_f32 v{b+2}, v{b}, v{b+1}", f"v_lshlrev_b32 v{b}, 16, v{b+2}",
            f"v_and_b32 v{b+1}, s{sMASK}, v{b+2}", f"v_add_f32 v{b+1}, {fhex(1e-5)}, v{b+1}",
            f"v_cvt_pk_bf16_f32 v{b+1}, v{b+1}, v{b+1}", f"v_and_b32 v{b+1}, s{sMASK}, v{b+1}",
            f"v_sqrt_f32 v{b+1}, v{b+1}", "s_nop 0", f"v_cvt_pk_bf16_f32 v{b+1}, v{b+1}, v{b+1}",
            f"v_and_b32 v{b+1}, s{sMASK}, v{b+1}", f"v_rcp_f32 v{b+2}, v{b+1}",
            f"v_lshlrev_b32 v{T[4]}, 3, v{vROW}",
            f"v_mul_f32 v{b+3}, -v{b}, v{b+2}", f"v_add_u32 v{T[4]}, {RCT}, v{T[4]}",
            f"v_mul_f32 v{vR}, s{sAL}, v{b+2}", f"v_mul_f32 v{vC}, s{sAL}, v{b+3}"]: e(s_)
    p.ds(f"ds_write_b64 v{T[4]}, v[{b+2}:{b+3}]", tag='w')

    seq = []
    def G(k, areg, imm, d2, mfs, need=()):
        seq.append(dict(kind='G', unit=k, areg=areg, imm=imm, d2=d2, mf=mfs, need=list(need)))
    def BAR(bg=(), pre=()):
        seq.append(dict(kind='BAR', bg=list(bg), first=list(pre)))
    def p1_group(tau, S, Dk, own, j, need=()):
        k = uloc[('B', tau, 2*Dk)][0]; slot = k % 4
        q = Q(12*Dk + 6*own + j)
        G(k, vA[('n', own, slot >> 1)], (slot & 1) * 24576 + j * 2048, 512,
          [lambda wf: f"v_mfma_f32_32x32x16_bf16 {vr(S,16)}, {vr(wf,4)}, {vr(q,4)}, {vr(S,16)}"], need)
    def b8_group(Dk, j, need=()):
        k, half = uloc[('8', Dk)]; slot = k % 4
        assert slot < 2
        q = Q(12*Dk + j)
        G(k, vA['8'], slot * 24576 + half * 12288 + j * 2048, 512,
          [lambda wf: f"v_mfma_f32_32x32x16_bf16 {vr(SB,16)}, {vr(wf,4)}, {vr(q,4)}, {vr(SB,16)}"], need)
    def norm_ops(slot0, buf):
        ops = []
        for sg in range(2):
            q = Q(slot0 + sg)
            tt = [TMP + 8*sg + i for i in range(8)]
            for d in range(4):
                ops.append(lambda d=d, q=q, tt=tt: e(f"v_lshlrev_b32 v{tt[2*d]}, 16, v{q+d}"))
                ops.append(lambda d=d, q=q, tt=tt: e(f"v_and_b32 v{tt[2*d+1]}, s{sMASK}, v{q+d}"))
            for d in range(8):
                ops.append(lambda d=d, tt=tt: e(f"v_fma_f32 v{tt[d]}, v{tt[d]}, v{vR}, v{vC}"))
            for d in range(4):
                ops.append(lambda d=d, q=q, tt=tt: e(f"v_cvt_pk_bf16_f32 v{q+d}, v{tt[2*d]}, v{tt[2*d+1]}"))
            ops.append(lambda q=q, sg=sg: p.ds(f"ds_write_b128 v{vPW}, {vr(q,4)} offset:{buf*16384+sg*1024}", tag='w'))
        return ops
    def gelu_ops(regs4, dst2, tbase):
        ops = []
        tt = [tbase + i for i in range(4)]
        for i in range(4): ops.append(lambda i=i: e(f"v_fmaak_f32 v{tt[i]}, v{regs4+i}, v{regs4+i}, {fhex(CA)}"))
        for i in range(4): ops.append(lambda i=i: e(f"v_mul_f32 v{tt[i]}, v{regs4+i}, v{tt[i]}"))
        for i in range(4): ops.append(lambda i=i: e(f"v_exp_f32 v{tt[i]}, -v{tt[i]}"))
        for i in range(4): ops.append(lambda i=i: e(f"v_fma_f32 v{tt[i]}, v{tt[i]}, s{sAL}, s{sAL}"))
        for i in range(4): ops.append(lambda i=i: e(f"v_rcp_f32 v{tt[i]}, v{tt[i]}"))
        for i in range(4): ops.append(lambda i=i: e(f"v_mul_f32 v{tt[i]}, v{regs4+i}, v{tt[i]}"))
        for i in range(2): ops.append(lambda i=i: e(f"v_cvt_pk_bf16_f32 v{dst2+i}, v{tt[2*i]}, v{tt[2*i+1]}"))
        return ops
    def gelu_block(S, tau):
        ops = []
        slot = (1 + 2*tau) if tau < 3 else 0
        for kap in range(2):
            pw = TMP + 8 + 4*kap
            for t in range(2):
                ops += gelu_ops(S + (kap*2+t)*4, pw + 2*t, TMP + 4*t)
            ops.append(lambda pw=pw, kap=kap: p.ds(f"ds_write_b128 v{vPW}, {vr(pw,4)} offset:{slot*8192+kap*1024}", tag='w'))
        return ops
    def s8_write():
        return [lambda gg=gg: p.ds(f"ds_write_b128 v{vPW}, {vr(SB+4*gg,4)} offset:{24576 + (gg>>1)*16384 + (gg&1)*1024}", tag='w') for gg in range(4)]
    def s8_read():
        ops = []
        for hh in range(2):
            for c in range(2):
                dst = (SC if hh == 0 else vXT) + 4*c
                ops.append(lambda hh=hh, c=c, dst=dst: p.ds(f"ds_read_b128 {vr(dst,4)}, v{v8R} offset:{24576 + hh*8192 + c*1024}", tag='s8'))
        return ops
    def gelu_b8():
        ops = [lambda: p.wait(lg=['s8'])]
        for i in range(8): ops.append(lambda i=i: e(f"v_add_f32 v{SC+i}, v{SC+i}, v{vXT+i}"))
        pw = TMP + 8
        for t in range(2): ops += gelu_ops(SC + 4*t, pw + 2*t, TMP + 4*t)
        ops.append(lambda: p.ds(f"ds_write_b128 v{vP8}, {vr(pw,4)}", tag='w'))
        return ops
    def pread(kk):
        slot = kk if kk < 7 else kk - 7
        return [lambda sg=sg: p.ds(f"ds_read_b128 {vr(Q(2*kk+sg),4)}, v{vPR} offset:{slot*8192+sg*256}", tag=('P', kk)) for sg in range(2)]
    def xt_job():
        L = p.newlabel("K1_XJ")
        e(f"s_cmp_lt_u32 s{sFJ}, 9")
        e(f"s_cbranch_scc0 {L}")
        e(f"s_lshl_b32 s{sT}, s{sFJ}, 6"); e(f"s_and_b32 s{sT4}, s{sW}, 6"); e(f"s_lshl_b32 s{sT4}, s{sT4}, 3")
        e(f"s_add_u32 s{sT}, s{sT}, s{sT4}"); e(f"s_lshl_b32 s{sT}, s{sT}, 12")
        e(f"s_lshl_b32 s{sT4}, s{sMI}, 8"); e(f"s_add_u32 s{sT}, s{sT}, s{sT4}")
        e(f"s_and_b32 s{sT4}, s{sW}, 1"); e(f"s_lshl_b32 s{sT5}, s{sT4}, 7"); e(f"s_add_u32 s{sT}, s{sT}, s{sT5}")
        e(f"s_add_u32 s{sT}, s{sT}, {XNT_OFF}")
        e(f"s_lshl_b32 s{sT4}, s{sT4}, 9"); e(f"s_add_u32 s{sT4}, s{sT4}, {RCT}")
        va, vb, v1_, v2_ = SC, SC+1, SC+2, SC+3
        e(f"v_lshlrev_b32 v{vb}, 5, v{vG}")
        e(f"v_add_u32 v{vb}, s{sT4}, v{vb}")
        e(f"s_add_u32 s{sT5}, s{sXM}, {PREG+40960}")
        e(f"v_lshlrev_b32 v{va}, 4, v{vG}")
        e(f"v_lshl_add_u32 v{va}, v{vI}, 7, v{va}")
        e(f"v_add_u32 v{va}, s{sT5}, v{va}")
        for job in range(2):
            x = vXT + 4*job
            for q in range(4):
                e(f"ds_read_b128 {vr(TMP+4*q,4)}, v{vb} offset:{256*job+128*(q>>1)+16*(q&1)}")
            e("s_waitcnt lgkmcnt(0)")
            for d in range(4):
                e(f"v_lshlrev_b32 v{v1_}, 16, v{x+d}")
                e(f"v_and_b32 v{v2_}, s{sMASK}, v{x+d}")
                e(f"v_fma_f32 v{v1_}, v{v1_}, v{TMP+2*d}, v{TMP+2*d+1}")
                e(f"v_fma_f32 v{v2_}, v{v2_}, v{TMP+8+2*d}, v{TMP+8+2*d+1}")
                e(f"v_cvt_pk_bf16_f32 v{x+d}, v{v1_}, v{v2_}")
            e(f"ds_write_b128 v{va}, {vr(x,4)} offset:{64*job}")
        e(f"v_lshlrev_b32 v{va}, 4, v{vLANE}")
        e(f"v_add_u32 v{va}, s{sT5}, v{va}")
        e(f"v_lshrrev_b32 v{vb}, 3, v{vLANE}")
        e(f"v_lshlrev_b32 v{vb}, 12, v{vb}")
        e(f"v_and_b32 v{v1_}, 7, v{vLANE}")
        e(f"v_lshl_add_u32 v{vb}, v{v1_}, 4, v{vb}")
        e("s_waitcnt lgkmcnt(0)")
        e(f"ds_read_b128 {vr(TMP,4)}, v{va}")
        e(f"ds_read_b128 {vr(TMP+4,4)}, v{va} offset:1024")
        e(f"s_add_u32 s{sT4}, s{sT}, {8*4096}")
        e("s_waitcnt lgkmcnt(0)")
        p.vmem(f"buffer_store_dwordx4 {vr(TMP,4)}, v{vb}, s[{SWS}:{SWS+3}], s{sT} offen {STM}", maybe=True)
        p.vmem(f"buffer_store_dwordx4 {vr(TMP+4,4)}, v{vb}, s[{SWS}:{SWS+3}], s{sT4} offen {STM}", maybe=True)
        e("s_nop 1")
        p.label(L)

    def xt_ops():
        ops = []
        A = lambda s_: ops.append(lambda: e(s_))
        va, vb, v1_, v2_, vc, vd = SC, SC+1, SC+2, SC+3, SC+4, SC+5
        def setup():
            e(f"s_lshl_b32 s51, s{sFJ}, 6"); e(f"s_and_b32 s52, s{sW}, 6"); e(f"s_lshl_b32 s52, s52, 3")
            e(f"s_add_u32 s51, s51, s52"); e(f"s_lshl_b32 s51, s51, 12")
            e(f"s_lshl_b32 s52, s{sMI}, 8"); e(f"s_add_u32 s51, s51, s52")
            e(f"s_and_b32 s52, s{sW}, 1"); e(f"s_lshl_b32 s53, s52, 7"); e(f"s_add_u32 s51, s51, s53")
            e(f"s_add_u32 s51, s51, {XNT_OFF}")
            e(f"s_lshl_b32 s52, s52, 9"); e(f"s_add_u32 s52, s52, {RCT}")
            e(f"v_lshlrev_b32 v{vb}, 5, v{vG}")
            e(f"v_add_u32 v{vb}, s52, v{vb}")
            e(f"s_add_u32 s53, s{sXM}, {PREG+40960}")
            for q in range(4):
                p.ds(f"ds_read_b128 {vr(TMP+4*q,4)}, v{vb} offset:{128*(q>>1)+16*(q&1)}", tag='xr0')
        ops.append(setup)
        A(f"v_lshlrev_b32 v{va}, 4, v{vG}")
        A(f"v_lshl_add_u32 v{va}, v{vI}, 7, v{va}")
        A(f"v_add_u32 v{va}, s53, v{va}")
        A(f"v_lshlrev_b32 v{vc}, 4, v{vLANE}")
        A(f"v_add_u32 v{vc}, s53, v{vc}")
        A(f"v_lshrrev_b32 v{vd}, 3, v{vLANE}")
        A(f"v_lshlrev_b32 v{vd}, 12, v{vd}")
        A(f"v_and_b32 v{v1_}, 7, v{vLANE}")
        A(f"v_lshl_add_u32 v{vd}, v{v1_}, 4, v{vd}")
        A(f"s_cmp_lt_u32 s{sFJ}, 9\n    s_cselect_b32 s52, 0, 0x10000000\n    v_add_u32 v{vd}, s52, v{vd}\n    s_add_u32 s52, s51, {8*4096}")
        for job in range(2):
            x = vXT + 4*job
            ops.append(lambda job=job: p.wait(lg=[f'xr{job}']))
            for d in range(4):
                A(f"v_lshlrev_b32 v{v1_}, 16, v{x+d}")
                A(f"v_and_b32 v{v2_}, s{sMASK}, v{x+d}")
                A(f"v_fma_f32 v{v1_}, v{v1_}, v{TMP+2*d}, v{TMP+2*d+1}")
                A(f"v_fma_f32 v{v2_}, v{v2_}, v{TMP+8+2*d}, v{TMP+8+2*d+1}")
                A(f"v_cvt_pk_bf16_f32 v{x+d}, v{v1_}, v{v2_}")
            def wr(job=job, x=x):
                p.ds(f"ds_write_b128 v{va}, {vr(x,4)} offset:{64*job}")
                if job == 0:
                    for q in range(4):
                        p.ds(f"ds_read_b128 {vr(TMP+4*q,4)}, v{vb} offset:{256+128*(q>>1)+16*(q&1)}", tag='xr1')
                else:
                    p.ds(f"ds_read_b128 {vr(TMP,4)}, v{vc}", tag='xo')
                    p.ds(f"ds_read_b128 {vr(TMP+4,4)}, v{vc} offset:1024", tag='xo')
            ops.append(wr)
        def st():
            p.wait(lg=['xo'])
            p.vmem(f"buffer_store_dwordx4 {vr(TMP,4)}, v{vd}, s[{SWS}:{SWS+3}], s51 offen")
            p.vmem(f"buffer_store_dwordx4 {vr(TMP+4,4)}, v{vd}, s[{SWS}:{SWS+3}], s52 offen")
            e("s_nop 1")
        ops.append(st)
        return ops
    for op in norm_ops(0, 0): op()
    if W2T == 8:
        for wv in range(6): w2_touch(wv)
    for r in range(9):
        Dk, j = divmod(r, 3)
        pre = [lambda sg=sg, r=r, Dk=Dk, j=j: p.ds(f"ds_read_b128 {vr(Q(12*Dk+6+2*j+sg),4)}, v{vXR} offset:{(r%2)*16384+sg*1024}", tag=('oth', r)) for sg in range(2)]
        bg = []
        if r + 1 < 9:
            Dn, jn = divmod(r + 1, 3)
            bg = norm_ops(12*Dn + 2*jn, (r + 1) % 2)
            if W1T == 2 and r < 3: bg = [lambda wv=2*r: w1_touch(wv), lambda wv=2*r+1: w1_touch(wv)] + bg
            if W2T == 9 and r == 0: bg = bg + [lambda wv=wv: w2_touch(wv) for wv in range(6)]
            if W1T == 5 and r == 0: bg = [lambda: w1_touch(5)] + bg
            if W1T == 3 and r < 6: bg = [lambda wv=r: w1_touch(wv)] + bg
        else:
            bg = xt_ops() if XI else [xt_job]
        if W2T == 2 and r >= 3: bg = bg[:6] + [lambda wv=r-3: w2_touch(wv)] + bg[6:]
        bg = bg[:8] + touches(r) + bg[8:]
        BAR(bg=bg, pre=pre)
        nd = [('bias', 0), ('bias', 8)] if r == 0 else []
        for sg in range(2):
            b8_group(Dk, 2*j+sg, nd); p1_group(0, SA, Dk, 0, 2*j+sg, nd)
        for sg in range(2): p1_group(0, SA, Dk, 1, 2*j+sg, [('oth', r)])
    Sbuf = {0: SA, 1: SB, 2: SA, 3: SB}
    for tau in (1, 2, 3):
        gl = gelu_block(Sbuf[tau-1], tau-1)
        n3 = (len(gl) + 2) // 3
        for Dk in range(3):
            pre = []
            if tau == 1 and Dk == 0: pre = s8_write() + bias_init(SB, 1)
            bg = gl[Dk*n3:(Dk+1)*n3]
            if W2T == 5 and tau == 1: bg = bg[:6] + [lambda wv=Dk: w2_touch5(wv)] + bg[6:]
            if W2T == 6 and tau == 2: bg = bg[:6] + [lambda wv=Dk: w2_touch5(wv)] + bg[6:]
            if W2T == 1 and tau < 3: bg = bg[:6] + [lambda wv=3*(tau-1)+Dk: w2_touch(wv)] + bg[6:]
            if tau == 1 and Dk == 1: bg = s8_read() + bg
            if tau == 3 and Dk == 0: bg = gelu_b8() + bg
            if Dk == 2 and tau < 3: bg = bg + bias_init(Sbuf[tau+1], tau+1)
            if tau == 3 and Dk == 1: bg = pread(1) + pread(2) + pread(0) + bg
            if tau == 3 and Dk == 2: bg = pread(3) + pread(4) + bg
            bg = bg[:8] + touches(6 + 3*tau + Dk) + bg[8:]
            BAR(bg=bg, pre=pre)
            for own in range(2):
                for j in range(6):
                    p1_group(tau, Sbuf[tau], Dk, own, j, [('bias', tau)] if (Dk == 0 and own == 0 and j == 0) else [])
    OB = {0: Q(18), 1: Q(22)}
    ET = Q(26)
    def epi(j):
        O = OB[j % 2]
        ops = []
        for t in range(2):
            dst = ET + 4*t + 8*(j % 2)
            for sg in range(2):
                for i in range(2):
                    ops.append(lambda t=t, sg=sg, i=i, dst=dst: e(f"v_cvt_pk_bf16_f32 v{dst+2*sg+i}, v{O+(t*2+sg)*4+2*i}, v{O+(t*2+sg)*4+2*i+1}"))
            def st(t=t, dst=dst):
                e(f"s_mov_b32 s{sT}, {(16*j+4*t)*16384}")
                p.vmem(f"buffer_store_dwordx4 {vr(dst,4)}, v{vOO}, s[{SWS}:{SWS+3}], s{sT} offen {STM if STJ[j] == '1' else ''}")
            if not NOST: ops.append(st)
        return ops
    gl3 = gelu_block(SB, 3)
    for i, u in enumerate(p2):
        _, j, k = u
        kd, half = uloc[u]
        if half == 0:
            bg = []; pre = []
            if i == 0: pre = pread(5) + pread(6); bg = gl3[:len(gl3)//2]
            if i == 2: bg = gl3[len(gl3)//2:]
            if i == 4: pre = pread(7) + pread(8) + [lambda t=t: e(f"v_add_u32 v{vA[('p',t,2)]}, 0x18000, v{vA[('p',t,0)]}") for t in (0, 1)]
            BAR(bg=bg, pre=pre)
        slot = slot_of(kd)
        O = OB[j % 2]
        for jj in range(3):
            kk = 3*k + jj
            for t in range(2):
                first = (kk == 0)
                mfs = [lambda wf, t=t, sg=sg, kk=kk, first=first, O=O: f"v_mfma_f32_16x16x32_bf16 {vr(O+(t*2+sg)*4,4)}, {vr(wf,4)}, {vr(Q(2*kk+sg),4)}, " + ("0" if first else vr(O+(t*2+sg)*4,4)) for sg in range(2)]
                G(kd, vA[('p', t, slot >> 1)], (slot & 1) * 24576 + half * 12288 + jj * 4096, 2048, mfs, [('P', kk)])
        if k == 2:
            seq.append(dict(kind='EPI', ops=epi(j)))
    gidx = [i for i, s in enumerate(seq) if s['kind'] == 'G']
    pos_of_g = {g: n for n, g in enumerate(gidx)}
    bars = [i for i, s in enumerate(seq) if s['kind'] == 'BAR']
    first_read_pos = {}; last_use = {}
    for n, g in enumerate(gidx):
        k = seq[g]['unit']
        rp = gidx[n - RA] if n - RA >= 0 else -1
        first_read_pos.setdefault(k, rp)
        last_use[k] = g
    land = {}; rel = {}
    for k in first_read_pos:
        prev = [b for b in bars if b < first_read_pos[k]]
        land.setdefault(prev[-1] if prev else bars[0], []).append(k)
        nxt = [b for b in bars if b > last_use[k]]
        if nxt and k + 4 < len(D) and not (R6 and k + 4 in ISS6): rel.setdefault(nxt[0], []).append(k + 4)
    if R6:
        assert len(D) == 28 and len(bars) == 32 and D[14][0][0] == 'E' and D[13][0][0] == 'B'
        assert rel[bars[21]] == [20]
        for k in sorted(ISS6): rel.setdefault(bars[ISS6[k]], []).append(k)
    if DL:
        rel.setdefault(bars[0], []).append(2)
        rel.setdefault(bars[DL-1], []).append(3)
    wf_of = {}
    def issue_reads(n):
        if n >= len(gidx): return
        s = seq[gidx[n]]
        wf = WF + 4 * (n % NWF)
        wf_of[n] = wf
        if NOREAD: return
        p.ds(f"ds_read_b64_tr_b16 {vr(wf,2)}, v{s['areg']} offset:{s['imm']}", tag=('wf', n))
        p.ds(f"ds_read_b64_tr_b16 {vr(wf+2,2)}, v{s['areg']} offset:{s['imm']+s['d2']}", tag=('wf', n))
    bgq = []
    def groups_left(i):
        c = 0
        for s in seq[i:]:
            if s['kind'] == 'BAR': break
            if s['kind'] == 'G': c += 1
        return c
    delay = []
    for i, s in enumerate(seq):
        if s['kind'] == 'EPI':
            delay.append([3, s['ops']])
        elif s['kind'] == 'BAR':
            for op in bgq: op()
            p.wait(vm=[('u', k) for k in land.get(i, [])], lg=['w'])
            if not NOBAR: e("s_barrier")
            bi = bars.index(i)
            if bi in ((0, 3, 6, 9, 12, 15, 18, 21, 24, 27, 30) if PRO else (0, 9, 18)): stamp(f"bar{bi}")
            if i == bars[0]:
                for n in range(RA): issue_reads(n)
            if bi == 9: e("s_nop 7")
            for op in s['first']: op()
            dm = []
            for k in rel.get(i, []):
                if not NODMA: dm += dma_double(k)
            bgq = []
            b = [] if NOBG else list(s['bg'])
            step = max(1, len(b) // (len(dm) + 1)) if dm else 0
            while dm or b:
                if dm: bgq.append(dm.pop(0))
                take = b[:step] if dm else b
                bgq += take; b = b[len(take):]
        else:
            n = pos_of_g[i]
            left = groups_left(i)
            if seq[i-1]['kind'] == 'BAR': segn = left
            done = segn - left
            if PRIO and (done == 0 or (done * 4) // segn != ((done - 1) * 4) // segn):
                e(f"s_setprio {3 - (done * 4) // segn}")
            left = max(left - FRONT, 1)
            for dl in delay: dl[0] -= 1
            while delay and delay[0][0] <= 0: bgq += delay.pop(0)[1]
            k = -(-len(bgq) // left)
            p.wait(lg=[('wf', n)] + s['need'])
            nm = len(s['mf'])
            for mi_, mf in enumerate(s['mf']):
                e(mf(wf_of[n]))
                if mi_ == 0: issue_reads(n + RA)
                lo = (k * mi_) // nm; hi = (k * (mi_ + 1)) // nm
                for op in bgq[lo:hi]: op()
            bgq = bgq[k:]
    e("s_nop 7")
    for op in bgq: op()
    for dl in delay:
        for op in dl[1]: op()
    if DIAG:
        stamp("lastissue")
        e("s_waitcnt vmcnt(0)")
        stamp("end")
        e("s_memrealtime s[100:101]")
        e("s_waitcnt lgkmcnt(0)")
        e(f"v_writelane_b32 v{TMP}, s100, 40")
        for i in range(len(stamps)):
            e(f"s_sub_u32 s{sT}, s{56+2*i}, s56")
            e(f"v_writelane_b32 v{TMP}, s{sT}, {i}")
        e(f"s_lshl_b32 s{sT}, s2, 3"); e(f"s_add_u32 s{sT}, s{sT}, s{sW}"); e(f"s_lshl_b32 s{sT}, s{sT}, 8")
        e(f"s_add_u32 s{sT}, s{sT}, 0x4000000")
        e(f"v_lshlrev_b32 v{TMP+1}, 2, v{vLANE}")
        e(f"buffer_store_dword v{TMP}, v{TMP+1}, s[{SWS}:{SWS+3}], s{sT} offen")
        open("stamps.txt", "w").write(" ".join(stamps))
    p.label("K1_END")
    e("s_endpgm")
    return p.text()
```
